```python
import torch

def _softmax(x, axis=-1):
    return torch.softmax(x, dim=axis)
def _gelu(x):
    return torch.nn.functional.gelu(x, approximate="tanh")
def _silu(x):
    return torch.nn.functional.silu(x)
def _sigmoid(x):
    return torch.sigmoid(x)
def _layernorm(x, axis=-1, eps=1e-5):
    m = x.mean(dim=axis, keepdim=True)
    v = x.var(dim=axis, keepdim=True, unbiased=False)
    return (x - m) / torch.sqrt(v + eps)
def _scatter_add(tgt, idx, src, axis=0):
    return tgt.clone().index_add_(axis, idx, src)
def _segment_sum(src, seg, n):
    out = torch.zeros((n,) + src.shape[1:], dtype=src.dtype)
    return out.index_add_(0, seg, src)
def _pad(x, pw):
    flat = tuple(v for pair in reversed(pw) for v in pair)
    return torch.nn.functional.pad(x, flat)

kernel_name = 'gated_mix__grouped_kv_mqa__moe_arch_mod__prompt'

def setup_inputs():

    _w = (lambda a: (lambda t: t.to(torch.bfloat16) if t.is_floating_point() else t)(torch.as_tensor(a)))
    def _A_setup():
        B, S, D, H = 1, 2048, 1024, 32
        Dh = D // H
        return {
            "x": _w((lambda *s: torch.randn(*s, dtype=torch.bfloat16) * 0.05)(B, S, D)),
            "wq": _w((lambda *s: torch.randn(*s, dtype=torch.bfloat16) * 0.8)(D, H * Dh)),
            "wk": _w((lambda *s: torch.randn(*s, dtype=torch.bfloat16) * 0.8)(D, Dh)),
            "wv": _w((lambda *s: torch.randn(*s, dtype=torch.bfloat16) * 0.1)(D, Dh)),
            "wo": _w((lambda *s: torch.randn(*s, dtype=torch.bfloat16) * 0.1)(H * Dh, D)),
        }
    _A_in = _A_setup()

    def _B_setup():
        B, S, D, F, C = 1, 2048, 1024, 3584, 8
        return {
            "x": _w((lambda *s: torch.randn(*s, dtype=torch.bfloat16) * 0.05)(B, S, D)),
            "w_r": _w((lambda *s: torch.randn(*s, dtype=torch.bfloat16) * 1.6)(D)),
            "w_gate": _w((lambda *s: torch.randn(*s, dtype=torch.bfloat16) * 0.1)(D, F)),
            "w_up": _w((lambda *s: torch.randn(*s, dtype=torch.bfloat16) * 0.1)(D, F)),
            "w_down": _w((lambda *s: torch.randn(*s, dtype=torch.bfloat16) * 0.1)(F, D)),
        }
    _B_in = _B_setup()

    return {
        "A_x": _A_in["x"],
        "A_wq": _A_in["wq"],
        "A_wk": _A_in["wk"],
        "A_wv": _A_in["wv"],
        "A_wo": _A_in["wo"],
        "B_x": _B_in["x"],
        "B_w_r": _B_in["w_r"],
        "B_w_gate": _B_in["w_gate"],
        "B_w_up": _B_in["w_up"],
        "B_w_down": _B_in["w_down"],
        "gate_w": _w((lambda *s: torch.randn(*s, dtype=torch.bfloat16) * 0.05)(1024) * 16.0),
    }

def reference(A_x, A_wq, A_wk, A_wv, A_wo, B_x, B_w_r, B_w_gate, B_w_up, B_w_down, gate_w):
    def _A_ref(x, wq, wk, wv, wo):
        B, S, D = x.shape
        H = 32
        Dh = D // H
        q = (lambda x, *d: x.permute(*d))((x @ wq).reshape(B, S, H, Dh), 0, 2, 1, 3)
        k = x @ wk
        v = x @ wv
        scores = torch.einsum("bhqd,bkd->bhqk", q, k) * (Dh ** -0.5)
        p = _softmax(scores, axis=-1)
        o = torch.einsum("bhqk,bkd->bhqd", p, v)
        return (lambda x, *d: x.permute(*d))(o, 0, 2, 1, 3).reshape(B, S, H * Dh) @ wo

    def _B_ref(x, w_r, w_gate, w_up, w_down):
        B, S, D = x.shape
        C = 8
        r = x @ w_r
        idx = torch.argsort(-r, axis=-1)[:, :C]
        idx_e = (lambda x, n, axis: torch.repeat_interleave(x, n, dim=axis))(idx.reshape(B, C, 1), D, axis=2)
        x_sel = (lambda x, i, axis: torch.take_along_dim(x, i, dim=axis))(x, idx_e, axis=1)
        g = _silu(x_sel @ w_gate)
        u = x_sel @ w_up
        y = (g * u) @ w_down
        r_sel = _sigmoid((lambda x, i, axis: torch.take_along_dim(x, i, dim=axis))(r, idx, axis=1))
        y = y * r_sel.reshape(B, C, 1)
        b_off = (torch.arange(B) * S).reshape(B, 1)
        flat_idx = (idx + b_off).reshape(B * C)
        zero = (x * 0.0).reshape(B * S, D)
        upd = _scatter_add(zero, flat_idx, y.reshape(B * C, D), axis=0)
        return x + upd.reshape(B, S, D)

    x = A_x
    g = _sigmoid((x * gate_w).sum(-1, keepdims=True))
    a = _A_ref(x, A_wq, A_wk, A_wv, A_wo)
    b = _B_ref(x, B_w_r, B_w_gate, B_w_up, B_w_down)
    return g * a + (1 - g) * b
```

```python
import re


class Asm:
    def __init__(self):
        self.lines = []

    def e(self, s):
        for l in s.strip("\n").split("\n"):
            l = l.strip()
            if l:
                self.lines.append(l)

    def label(self, name):
        self.lines.append(name + ":")

    def text(self):
        out = []
        for l in self.lines:
            if l.endswith(":") or l.startswith("."):
                out.append(l)
            else:
                out.append("    " + l)
        return "\n".join(out) + "\n"


def vr(base, n=1):
    return f"v{base}" if n == 1 else f"v[{base}:{base + n - 1}]"


def sr(base, n=1):
    return f"s{base}" if n == 1 else f"s[{base}:{base + n - 1}]"


_REG = re.compile(r"\b([vsa])(\d+)\b|\b([vsa])\[(\d+):(\d+)\]|\b(vcc|exec|m0|scc)\b")
TRANS = ("v_exp_f32", "v_log_f32", "v_rcp_f32", "v_rsq_f32", "v_sqrt_f32", "v_sin_f32", "v_cos_f32",
         "v_exp_f16", "v_rcp_iflag_f32")


def regs_of(op):
    out = set()
    for m in _REG.finditer(op):
        if m.group(1):
            out.add((m.group(1), int(m.group(2))))
        elif m.group(3):
            for i in range(int(m.group(4)), int(m.group(5)) + 1):
                out.add((m.group(3), i))
        else:
            out.add((m.group(6), 0))
    return out


def split_ops(s):
    ops, depth, cur = [], 0, ""
    for ch in s:
        if ch == "[":
            depth += 1
        if ch == "]":
            depth -= 1
        if ch == "," and depth == 0:
            ops.append(cur.strip())
            cur = ""
        else:
            cur += ch
    if cur.strip():
        ops.append(cur.strip())
    return ops


class Ins:
    def __init__(self, line):
        self.line = line
        line = line.split(";")[0].strip()
        p = line.split(None, 1)
        self.op = p[0]
        rest = p[1] if len(p) > 1 else ""
        self.ops = split_ops(rest)
        op = self.op
        self.is_mfma = op.startswith("v_mfma") or op.startswith("v_smfmac")
        self.is_valu = op.startswith("v_") and not self.is_mfma
        self.is_trans = any(op.startswith(t) for t in TRANS)
        self.is_vmem = op.startswith("buffer_") or op.startswith("global_")
        self.is_ds = op.startswith("ds_")
        self.is_salu = op.startswith("s_")
        self.is_dpp = "row_" in rest or "quad_perm" in rest or "wave_" in rest
        self.is_perm = op.startswith("v_permlane")
        self.is_rdlane = op.startswith("v_readlane") or op.startswith("v_readfirstlane")
        self.is_lds_dma = self.is_vmem and (re.search(r"\blds\b", rest) is not None or "_lds_" in op)
        self.wr, self.rd = set(), set()
        self.srcc = set()
        self.passes = 0
        o = [regs_of(x) for x in self.ops]
        if self.is_mfma:
            self.wr = o[0]
            self.rd = o[1] | o[2]
            if op.startswith("v_smfmac"):
                self.srcc = o[0]
                self.rd |= o[3]
            else:
                self.srcc = o[3]
            self.passes = 8 if "32x32" in op else 4
            self.ab = o[1] | o[2] | (o[3] if op.startswith("v_smfmac") else set())
        elif self.is_valu:
            self.wr = set(o[0])
            for x in o[1:]:
                self.rd |= x
            if op.startswith("v_cmp"):
                pass
            if op.startswith("v_cmpx"):
                self.wr.add(("exec", 0))
            if "_co_" in op:
                self.wr |= o[1]
                self.rd = set()
                for x in o[2:]:
                    self.rd |= x
            if op.startswith("v_fmac") or op.startswith("v_writelane") or self.is_dpp:
                self.rd |= o[0]
            if self.is_perm:
                self.wr |= o[1]
                self.rd |= o[0]
        elif self.is_vmem:
            st = "store" in op or "atomic" in op
            if self.is_lds_dma:
                for x in o:
                    self.rd |= x
                self.rd.add(("m0", 0))
            elif st:
                for x in o:
                    self.rd |= x
                if op.startswith("buffer_"):
                    self.data = o[0]
                else:
                    self.data = o[1]
                if "atomic" in op and "sc0" in rest:
                    self.wr = o[0]
            else:
                self.wr = o[0]
                for x in o[1:]:
                    self.rd |= x
            self.wide_store = st and ("x4" in op or "x3" in op)
        elif self.is_ds:
            if "read" in op or "permute" in op or "swizzle" in op:
                self.wr = o[0]
                for x in o[1:]:
                    self.rd |= x
            else:
                for x in o:
                    self.rd |= x
        elif self.is_salu:
            if op.startswith("s_cmp") or op.startswith("s_cbranch") or op in ("s_waitcnt", "s_barrier", "s_nop", "s_branch", "s_endpgm", "s_setprio", "s_sleep") or op.startswith("s_bitcmp") or op.startswith("s_set_gpr"):
                for x in o:
                    self.rd |= x
            else:
                if o:
                    self.wr = o[0]
                for x in o[1:]:
                    self.rd |= x
                if "saveexec" in op:
                    self.wr = self.wr | {("exec", 0)}

    def states(self):
        if self.op == "s_nop":
            return int(self.ops[0], 0) + 1
        return 1


def required(p, c):
    need = 0
    vw = {r for r in p.wr if r[0] in "va"}
    sw = {r for r in p.wr if r[0] in ("s", "vcc")}
    if p.is_valu:
        if c.is_mfma and vw & (c.rd | c.srcc):
            need = max(need, 2)
        if c.is_perm and vw & c.rd:
            need = max(need, 2)
        if c.is_valu and c.is_dpp and vw & c.rd:
            need = max(need, 2)
        if c.is_rdlane and vw & c.rd:
            need = max(need, 1)
        if p.is_trans and c.is_valu and not c.is_trans and vw & c.rd:
            need = max(need, 1)
        if p.is_trans and c.is_mfma and vw & (c.rd | c.srcc):
            need = max(need, 2)
        if sw:
            if c.is_vmem and sw & c.rd:
                need = max(need, 5)
            if c.is_valu and sw & c.rd:
                need = max(need, 2)
                if c.op.startswith("v_readlane") or c.op.startswith("v_writelane"):
                    need = max(need, 4)
            if c.is_salu and sw & c.rd:
                need = max(need, 1)
        if ("exec", 0) in p.wr:
            if c.is_valu and c.is_dpp:
                need = max(need, 5)
            if c.is_mfma or c.is_perm or c.is_rdlane:
                need = max(need, 4)
    if p.is_mfma:
        n = {4: 8, 8: 12}[p.passes]
        if c.is_mfma:
            if vw & c.ab:
                need = max(need, n)
            ov = vw & c.srcc
            if ov and not (c.srcc == vw and c.passes == p.passes):
                need = max(need, n - 2)
            if (vw & c.wr) and not (c.srcc == vw and c.passes == p.passes) and c.passes < p.passes:
                need = max(need, n - 2)
        elif c.is_valu or c.is_vmem or c.is_ds:
            if vw & (c.rd | c.wr):
                need = max(need, n)
        if c.is_valu and p.srcc & c.wr:
            need = max(need, {4: 3, 8: 7}[p.passes])
    if p.is_vmem and getattr(p, "wide_store", False):
        if c.wr & p.data:
            need = max(need, 2)
    if p.is_salu and ("m0", 0) in p.wr:
        if c.is_lds_dma or c.op.startswith("s_movrel") or "addtid" in c.op:
            need = max(need, 1)
    return need


def check_seq(seq, name=""):
    ins = [Ins(l) for l in seq]
    errs = []
    for j, c in enumerate(ins):
        dist = 0
        for i in range(j - 1, max(-1, j - 24), -1):
            p = ins[i]
            need = required(p, c)
            if need > dist:
                errs.append(f"[{name}] need {need} have {dist}: '{p.line}' -> '{c.line}'")
            dist += p.states()
            if dist >= 20:
                break
    return errs


def check_kernel(lines, name=""):
    code = []
    labels = {}
    for l in lines:
        l0 = l.split(";")[0].strip()
        if not l0 or l0.startswith("."):
            continue
        if l0.endswith(":"):
            labels[l0[:-1]] = len(code)
            continue
        code.append(l0)
    errs = []
    seg = []
    for l in code:
        seg.append(l)
        if l.startswith("s_branch") or l.startswith("s_endpgm"):
            errs += check_seq(seg, name)
            seg = []
    errs += check_seq(seg, name)
    for i, l in enumerate(code):
        if l.startswith("s_cbranch") or l.startswith("s_branch"):
            t = l.split()[1]
            if t in labels:
                pre = []
                for k in range(i, max(-1, i - 24), -1):
                    pre.insert(0, code[k])
                    if k != i and (code[k].startswith("s_branch") or code[k].startswith("s_endpgm")):
                        pre.pop(0)
                        break
                post = []
                for k in range(labels[t], min(len(code), labels[t] + 24)):
                    post.append(code[k])
                    if code[k].startswith("s_branch") or code[k].startswith("s_endpgm"):
                        break
                errs += check_seq(pre + post, name + f" br->{t}")
    return sorted(set(errs))
```

```python
import math
import struct
import sys
import os

sys.path.insert(0, os.path.dirname(os.path.abspath(__file__)))
from asmlib import Asm, vr, sr, check_kernel

NAME = "gated_mix__grouped_kv_mqa__moe_arch_mod__prompt"

WS_QF = 0x000000
WS_OF = 0x400000
WS_WOF = 0x800000
WS_KVF = 0xA00000
WS_KEY = 0xA50000
WS_G = 0xA52000
WS_SEL = 0xA54000
WS_Y = 0xA80000
WS_BYTES = 0xB00000
NREP = 8


def fbits(x):
    return struct.unpack("<I", struct.pack("<f", x))[0]


LOG2E = math.log2(math.e)
QSCALE = LOG2E / math.sqrt(32.0)


def srd(a, base, ptr, nbytes):
    a.e(f"""
    s_mov_b32 s{base}, s{ptr}
    s_mov_b32 s{base+1}, s{ptr+1}
    s_mov_b32 s{base+2}, {nbytes:#x}
    s_mov_b32 s{base+3}, 0x00020000
    """)


def mfma32(d, a_, b_, c):
    cs = "0" if c is None else vr(c, 16)
    return f"v_mfma_f32_32x32x16_bf16 {vr(d,16)}, {vr(a_,4)}, {vr(b_,4)}, {cs}"


K1_SLOT = 28672
K1_NSLOT = 5
K1_RG = K1_SLOT * K1_NSLOT
K1_LDS = K1_RG + 4096


def gen_k1():
    a = Asm()
    a.label("k1_proj_kernel")
    a.e("""
    s_cmp_ge_u32 s2, 256
    s_cbranch_scc1 K1_end
    s_load_dwordx4 s[4:7], s[0:1], 0
    s_load_dwordx4 s[8:11], s[0:1], 16
    s_load_dwordx2 s[12:13], s[0:1], 48
    s_load_dwordx2 s[14:15], s[0:1], 80
    s_load_dwordx2 s[16:17], s[0:1], 104
    v_lshrrev_b32 v2, 6, v0
    v_and_b32 v1, 63, v0
    s_and_b32 s53, s2, 7
    v_readfirstlane_b32 s42, v2
    s_lshr_b32 s54, s2, 3
    s_lshr_b32 s40, s53, 1
    s_lshl_b32 s40, s40, 3
    s_and_b32 s55, s54, 7
    s_add_u32 s40, s40, s55
    s_and_b32 s41, s53, 1
    s_lshl_b32 s41, s41, 2
    s_lshr_b32 s55, s54, 3
    s_add_u32 s41, s41, s55
    """)
    a.e("""
    s_mov_b32 s43, 0
    s_cmp_eq_u32 s41, 0
    s_cselect_b32 s43, 1, s43
    s_cmp_eq_u32 s41, 4
    s_cselect_b32 s43, 2, s43
    s_cmp_eq_u32 s41, 1
    s_cselect_b32 s43, 3, s43
    """)
    a.e("""
    v_lshrrev_b32 v3, 3, v1              ; lane>>3
    v_lshl_add_u32 v3, v2, 3, v3
    v_lshrrev_b32 v12, 1, v3
    v_xor_b32 v12, v12, v1
    v_and_b32 v12, 7, v12
    s_lshl_b32 s53, s40, 6               ; tb*64
    v_add_u32 v3, s53, v3
    v_lshlrev_b32 v3, 11, v3
    v_lshl_add_u32 v4, v12, 4, v3        ; voff_x
    v_lshrrev_b32 v13, 4, v1             ; lane>>4  (g)
    v_lshlrev_b32 v14, 2, v13
    v_and_b32 v15, 15, v1                ; i = lane&15
    v_xor_b32 v14, v14, v15
    v_lshl_add_u32 v3, v2, 3, v13        ; 8w + lane>>4
    v_lshlrev_b32 v3, 11, v3
    v_lshl_add_u32 v3, v14, 4, v3
    s_lshl_b32 s53, s41, 8               ; cb*256
    v_add_u32 v5, s53, v3                ; voff_w0
    v_add_u32 v6, 0x2000, v5             ; voff_w1
    v_lshlrev_b32 v7, 4, v1
    v_lshl_add_u32 v7, v2, 9, v7
    s_lshl_b32 s50, s42, 10              ; xdst
    s_lshl_b32 s51, s42, 11
    s_add_u32 s51, s51, 0x2000           ; wdst
    s_lshl_b32 s52, s42, 9
    s_add_u32 s52, s52, 0x6000           ; edst
    s_waitcnt lgkmcnt(0)
    """)
    srd(a, 20, 4, 2048 * 1024 * 2)
    srd(a, 24, 6, 1024 * 1024 * 2)
    a.e("""
    s_cmp_eq_u32 s43, 2
    s_cselect_b32 s28, s10, s8
    s_cselect_b32 s29, s11, s9
    s_mov_b32 s30, 0
    s_cmp_eq_u32 s43, 1
    s_cselect_b32 s30, 0x10000, s30
    s_cmp_eq_u32 s43, 2
    s_cselect_b32 s30, 0x10000, s30
    s_mov_b32 s31, 0x00020000
    s_mov_b32 s45, 0
    s_mov_b32 s46, 0
    s_mov_b32 s47, 0
    s_mov_b32 s48, 0
    """)

    def dma_issue():
        a.e(f"""
        s_add_u32 m0, s45, s50
        s_nop 0
        buffer_load_dwordx4 v4, s[20:23], s46 offen lds
        s_add_u32 m0, s45, s51
        s_add_u32 s46, s46, 128
        buffer_load_dwordx4 v5, s[24:27], s47 offen lds
        s_add_u32 m0, m0, 1024
        s_mov_b32 exec_hi, 0
        s_mov_b32 exec_hi, -1
        buffer_load_dwordx4 v6, s[24:27], s47 offen lds
        s_add_u32 m0, s45, s52
        s_mov_b32 exec_hi, 0
        buffer_load_dwordx4 v7, s[28:31], s48 offen lds
        s_mov_b32 exec_hi, -1
        s_add_u32 s47, s47, 0x20000
        s_add_u32 s48, s48, 0x1000
        s_add_u32 s45, s45, {K1_SLOT}
        s_cmp_eq_u32 s45, {K1_SLOT*K1_NSLOT}
        s_cselect_b32 s45, 0, s45
        """.replace("        s_mov_b32 exec_hi, 0\n        s_mov_b32 exec_hi, -1\n", "        s_nop 0\n"))

    a.e(f"""
    s_cmp_lg_u32 s43, 3
    s_cbranch_scc1 K1_norg
    s_cmp_ge_u32 s42, 4
    s_cbranch_scc1 K1_norg
    s_cmp_lt_u32 s42, 2
    s_cselect_b32 s36, s12, s14
    s_cselect_b32 s37, s13, s15
    s_mov_b32 s38, 2048
    s_mov_b32 s39, 0x00020000
    s_and_b32 s53, s42, 1
    s_lshl_b32 s53, s53, 10
    v_lshlrev_b32 v3, 4, v1
    s_add_u32 m0, s50, {K1_RG}
    s_nop 0
    buffer_load_dwordx4 v3, s[36:39], s53 offen lds
    """)
    a.label("K1_norg")
    a.e("s_mov_b32 s49, 0")
    a.label("K1_pro")
    dma_issue()
    a.e("""
    s_add_u32 s49, s49, 1
    s_cmp_lt_u32 s49, 4
    s_cbranch_scc1 K1_pro
    """)
    srd(a, 32, 16, WS_BYTES)
    a.e(f"""
    v_and_b32 v12, 31, v1                ; l32
    v_lshrrev_b32 v14, 5, v1             ; hf
    v_and_b32 v16, 1, v2                 ; tt
    v_lshrrev_b32 v17, 1, v2             ; hh
    v_lshl_add_u32 v18, v16, 5, v12
    v_lshlrev_b32 v18, 7, v18            ; row*128
    v_lshrrev_b32 v19, 1, v12
    v_and_b32 v19, 7, v19
    v_xor_b32 v19, v19, v14              ; hf ^ f
    v_lshl_add_u32 v8, v19, 4, v18
    v_lshlrev_b32 v19, 5, v17
    v_xor_b32 v11, v8, v19
    v_lshrrev_b32 v18, 2, v15            ; r = i>>2
    v_and_b32 v19, 3, v15                ; c = i&3
    v_lshl_add_u32 v20, v14, 3, v18      ; 8hf + r
    v_and_b32 v21, 1, v13                ; g&1
    v_lshlrev_b32 v22, 2, v17            ; hh*4
    v_lshl_add_u32 v22, v21, 1, v22      ; + (g&1)*2
    v_lshrrev_b32 v23, 1, v19            ; c>>1
    v_add_u32 v22, v22, v23              ; chunk
    v_lshlrev_b32 v23, 2, v18            ; r<<2
    v_xor_b32 v22, v22, v23
    v_lshlrev_b32 v22, 4, v22
    v_lshl_add_u32 v22, v20, 8, v22      ; + (8hf+r)*256
    v_and_b32 v23, 1, v19
    v_lshl_add_u32 v22, v23, 3, v22      ; + (c&1)*8
    v_add_u32 v9, 0x2000, v22
    v_lshl_add_u32 v20, v17, 4, v20
    v_lshlrev_b32 v20, 6, v20            ; *64
    v_lshl_add_u32 v20, v21, 5, v20      ; + (g&1)*32
    v_lshl_add_u32 v20, v19, 3, v20      ; + c*8
    v_add_u32 v10, 0x6000, v20
    s_cmp_lg_u32 s43, 3
    s_cbranch_scc1 K1_norg2
    v_and_b32 v20, 1, v1
    v_lshlrev_b32 v20, 11, v20           ; (l&1)*2048
    v_lshl_add_u32 v20, v17, 5, v20      ; + hh*32
    v_lshl_add_u32 v20, v14, 4, v20      ; + hf*16
    v_add_u32 v10, {K1_RG}, v20
    """)
    a.label("K1_norg2")
    for i in range(32):
        a.e(f"v_mov_b32 v{64+i}, 0")
    a.e("""
    s_mov_b32 s44, 0
    s_mov_b32 s49, 0
    """)
    a.label("K1_loop")
    a.e("""
    s_waitcnt vmcnt(12)
    s_barrier
    v_add_u32 v12, s44, v8
    v_add_u32 v16, s44, v9
    v_xor_b32 v13, 32, v12
    v_xor_b32 v14, 64, v12
    v_xor_b32 v15, 0x60, v12
    """)
    for ks in range(4):
        a.e(f"""
        ds_read_b128 {vr(20+4*ks,4)}, v{12+ks}
        ds_read_b64_tr_b16 {vr(36+4*ks,2)}, v16 offset:{ks*4096}
        ds_read_b64_tr_b16 {vr(38+4*ks,2)}, v16 offset:{ks*4096+1024}
        """)
    a.e("""
    s_cmp_eq_u32 s43, 0
    s_cbranch_scc1 K1_rd_done
    v_add_u32 v18, s44, v11
    s_cmp_eq_u32 s43, 3
    ds_read_b128 v[52:55], v18
    s_cbranch_scc1 K1_rd_rg
    v_add_u32 v17, s44, v10
    ds_read_b64_tr_b16 v[56:57], v17
    ds_read_b64_tr_b16 v[58:59], v17 offset:256
    s_branch K1_rd_done
    """)
    a.label("K1_rd_rg")
    a.e("""
    ds_read_b128 v[56:59], v10
    v_add_u32 v10, 128, v10
    """)
    a.label("K1_rd_done")
    a.e("""
    s_cmp_lt_u32 s49, 12
    s_cselect_b32 s22, s22, 0
    s_cselect_b32 s26, s26, 0
    s_cselect_b32 s30, s30, 0
    """)
    dma_issue()
    for ks in range(4):
        a.e(f"s_waitcnt lgkmcnt({9-3*ks})")
        a.e(mfma32(64, 36 + 4 * ks, 20 + 4 * ks, 64))
    a.e(f"""
    s_add_u32 s44, s44, {K1_SLOT}
    s_cmp_eq_u32 s44, {K1_SLOT*K1_NSLOT}
    s_cselect_b32 s44, 0, s44
    s_cmp_eq_u32 s43, 0
    s_cbranch_scc1 K1_mm_done
    s_cmp_eq_u32 s43, 2
    s_cbranch_scc1 K1_mm_v
    """)
    a.e(mfma32(80, 56, 52, 80))
    a.e("s_branch K1_mm_done")
    a.label("K1_mm_v")
    a.e(mfma32(80, 52, 56, 80))
    a.label("K1_mm_done")
    a.e("""
    s_add_u32 s49, s49, 1
    s_cmp_lt_u32 s49, 16
    s_cbranch_scc1 K1_loop
    """)
    a.e(f"""
    s_and_b32 s53, s42, 1
    s_lshl_b32 s54, s40, 1
    s_add_u32 s54, s54, s53
    s_lshl_b32 s55, s54, 5
    s_lshl_b32 s56, s41, 2
    s_add_u32 s55, s55, s56
    s_lshr_b32 s56, s42, 1               ; hh
    s_add_u32 s55, s55, s56
    s_lshl_b32 s55, s55, 11
    s_add_u32 s55, s55, {WS_QF}
    v_lshlrev_b32 v3, 4, v1
    s_mov_b32 s57, {fbits(QSCALE):#x}
    s_nop 3
    """)
    for i in range(16):
        a.e(f"v_mul_f32 v{64+i}, s57, v{64+i}")
    for i in range(8):
        a.e(f"v_cvt_pk_bf16_f32 v{20+i}, v{64+2*i}, v{65+2*i}")
    a.e("""
    buffer_store_dwordx4 v[20:23], v3, s[32:35], s55 offen
    buffer_store_dwordx4 v[24:27], v3, s[32:35], s55 offen offset:1024
    """)
    a.e(f"""
    s_cmp_lg_u32 s42, 7
    s_cbranch_scc1 K1_nozero
    v_mov_b32 v28, 0
    v_mov_b32 v29, 0
    v_mov_b32 v30, 0
    v_mov_b32 v31, 0
    s_lshl_b32 s57, s2, 10
    s_add_u32 s57, s57, {WS_Y}
    buffer_store_dwordx4 v[28:31], v3, s[32:35], s57 offen
    """)
    a.label("K1_nozero")
    a.e("""
    s_cmp_eq_u32 s43, 0
    s_cbranch_scc1 K1_end
    s_waitcnt vmcnt(0)
    s_barrier
    s_lshl_b32 s57, s42, 12
    v_add_u32 v12, s57, v3               ; w*4096 + lane*16
    ds_write_b128 v12, v[80:83]
    ds_write_b128 v12, v[84:87] offset:1024
    ds_write_b128 v12, v[88:91] offset:2048
    ds_write_b128 v12, v[92:95] offset:3072
    s_lshl_b32 s57, s53, 12              ; tt*4096
    s_lshl_b32 s58, s56, 10              ; hh*1024
    s_add_u32 s57, s57, s58
    v_add_u32 v12, s57, v3
    s_waitcnt lgkmcnt(0)
    s_barrier
    ds_read_b128 v[32:35], v12
    ds_read_b128 v[36:39], v12 offset:8192
    ds_read_b128 v[40:43], v12 offset:16384
    ds_read_b128 v[44:47], v12 offset:24576
    s_waitcnt lgkmcnt(0)
    """)
    for i in range(4):
        a.e(f"""
        v_add_f32 v{32+i}, v{32+i}, v{36+i}
        v_add_f32 v{40+i}, v{40+i}, v{44+i}
        v_add_f32 v{32+i}, v{32+i}, v{40+i}
        """)
    a.e(f"""
    s_cmp_eq_u32 s43, 3
    s_cbranch_scc1 K1_rg_out
    v_cvt_pk_bf16_f32 v36, v32, v33
    v_cvt_pk_bf16_f32 v37, v34, v35
    s_lshl_b32 s57, s54, 12              ; kt*4096
    s_cmp_eq_u32 s43, 2
    s_cselect_b32 s58, 2048, 0
    s_add_u32 s57, s57, s58
    s_lshr_b32 s58, s56, 1
    s_lshl_b32 s58, s58, 10              ; (hh>>1)*1024
    s_add_u32 s57, s57, s58
    s_and_b32 s58, s56, 1
    s_lshl_b32 s58, s58, 3               ; (hh&1)*8
    s_add_u32 s57, s57, s58
    s_add_u32 s57, s57, {WS_KVF}
    buffer_store_dwordx2 v[36:37], v3, s[32:35], s57 offen
    s_endpgm
    """)
    a.label("K1_rg_out")
    a.e(f"""
    s_cmp_lg_u32 s56, 0
    s_cbranch_scc1 K1_end
    s_mov_b32 exec_hi, 0
    s_lshl_b32 s57, s54, 5
    v_add_u32 v12, s57, v1               ; token
    v_cvt_pk_bf16_f32 v36, v32, v32
    v_mul_f32 v33, {fbits(-LOG2E):#x}, v33
    v_and_b32 v36, 0xffff0000, v36
    v_exp_f32 v33, v33
    v_ashrrev_i32 v37, 31, v36
    v_or_b32 v37, 0x80000000, v37
    v_add_f32 v33, 1.0, v33
    v_xor_b32 v36, v36, v37
    v_rcp_f32 v33, v33
    v_and_b32 v36, 0xffff0000, v36
    v_sub_u32 v37, 2047, v12
    v_or_b32 v36, v36, v37
    v_lshlrev_b32 v12, 2, v12
    s_mov_b32 s57, {WS_KEY}
    s_mov_b32 s58, {WS_G}
    buffer_store_dword v36, v12, s[32:35], s57 offen
    buffer_store_dword v33, v12, s[32:35], s58 offen
    """)
    a.label("K1_end")
    a.e("s_endpgm")
    return a, 96, 64


L_GATE = 0
L_UP = 32768 + 128
L_DOWN = L_UP + 32768
DOWN_STRIDE = 2112
L_XS = L_DOWN + 16 * DOWN_STRIDE
XS_STRIDE = 2064
L_WO = L_XS + 8 * XS_STRIDE
L_COMB = L_WO + 8192
COMB_WAVE = 18 * 256
K2_LDS = L_COMB + 8 * COMB_WAVE

QA, QB = 8, 16
SA, SB = 24, 40
PA, PB = 56, 64
OA, OB = 72, 88
LA, LB = 104, 108
KB = [112, 120]
VB = [128, 136]
ASUM, AIDX = 144, 148
VOFFK, VOFFV = 149, 150
MA, MB = 151, 152
K2_VGPRS = 168


def attn_phase(a, S, P, mf):
    for g in range(4):
        a.e(mf[g])
        b = S + 4 * g
        for i in range(4):
            a.e(f"v_exp_f32 v{b+i}, v{b+i}")
        a.e(f"v_cvt_pk_bf16_f32 v{P+2*g}, v{b}, v{b+1}")
        if g == 3:
            a.e(mf[4])
        a.e(f"v_cvt_pk_bf16_f32 v{P+2*g+1}, v{b+2}, v{b+3}")


def smf(L, P):
    return f"v_smfmac_f32_16x16x64_bf16 {vr(L,4)}, {vr(ASUM,4)}, {vr(P,8)}, v{AIDX}"


def gen_k2():
    a = Asm()
    a.label("k2_attn_kernel")
    a.e("""
    s_cmp_ge_u32 s2, 256
    s_cbranch_scc1 K2_end
    s_load_dwordx2 s[16:17], s[0:1], 104
    v_lshrrev_b32 v2, 6, v0
    v_and_b32 v1, 63, v0
    s_nop 0
    v_readfirstlane_b32 s42, v2
    v_lshlrev_b32 v3, 4, v1              ; lane*16
    s_lshr_b32 s40, s2, 3                ; tb
    s_and_b32 s41, s2, 7                 ; cb
    s_cmp_eq_u32 s42, 8
    s_cbranch_scc1 K2_aux
    s_and_b32 s43, s42, 3                ; rg
    s_lshr_b32 s44, s42, 2               ; kh
    s_lshl_b32 s45, s40, 6               ; 2tb*32
    s_lshl_b32 s46, s41, 2
    s_add_u32 s45, s45, s46
    s_add_u32 s45, s45, s43
    s_lshl_b32 s45, s45, 11
    s_add_u32 s46, s45, 0x10000          ; tile B
    s_lshl_b32 s47, s44, 17              ; kh*32*4096
    """)
    a.e(f"""
    s_add_u32 s47, s47, {WS_KVF}
    v_add_u32 v{VOFFK}, 0x2000, v3
    v_add_u32 v{VOFFV}, 0x1800, v3
    s_waitcnt lgkmcnt(0)
    """)
    srd(a, 32, 16, WS_BYTES)
    a.e(f"""
    buffer_load_dwordx4 {vr(QA,4)}, v3, s[32:35], s45 offen
    buffer_load_dwordx4 {vr(QA+4,4)}, v3, s[32:35], s45 offen offset:1024
    buffer_load_dwordx4 {vr(KB[0],4)}, v3, s[32:35], s47 offen
    buffer_load_dwordx4 {vr(KB[0]+4,4)}, v3, s[32:35], s47 offen offset:1024
    buffer_load_dwordx4 {vr(QB,4)}, v3, s[32:35], s46 offen
    buffer_load_dwordx4 {vr(QB+4,4)}, v3, s[32:35], s46 offen offset:1024
    s_add_u32 s48, s47, 0x1000
    buffer_load_dwordx4 {vr(KB[1],4)}, v3, s[32:35], s48 offen
    buffer_load_dwordx4 {vr(KB[1]+4,4)}, v3, s[32:35], s48 offen offset:1024
    buffer_load_dwordx4 {vr(VB[0],4)}, v3, s[32:35], s47 offen offset:2048
    buffer_load_dwordx4 {vr(VB[0]+4,4)}, v3, s[32:35], s47 offen offset:3072
    """)
    a.e(f"""
    v_and_b32 v4, 1, v1
    v_mov_b32 v5, 0x4444
    v_mov_b32 v6, 0xeeee
    v_cmp_eq_u32 vcc, 1, v4
    v_and_b32 v4, 6, v1
    v_mov_b32 v7, 0x3f803f80
    v_cndmask_b32 v{AIDX}, v5, v6, vcc
    v_cmp_eq_u32 vcc, 0, v4
    v_cmp_eq_u32 s[50:51], 4, v4
    s_nop 0
    v_cndmask_b32 v{ASUM}, 0, v7, vcc
    v_cndmask_b32 v{ASUM+1}, 0, v7, vcc
    v_cndmask_b32 v{ASUM+2}, 0, v7, s[50:51]
    v_cndmask_b32 v{ASUM+3}, 0, v7, s[50:51]
    """)
    for r in list(range(OA, OA + 32)) + list(range(LA, LA + 8)) + list(range(PB, PB + 8)) + list(range(VB[1], VB[1] + 8)) + [MA, MB]:
        a.e(f"v_mov_b32 v{r}, 0")
    a.e(f"""
    s_mov_b32 s49, 0
    s_mov_b32 s48, s47
    s_waitcnt vmcnt(6)
    """)
    a.e(mfma32(SA, KB[0], QA, None))
    a.e(mfma32(SA, KB[0] + 4, QA + 4, SA))
    a.e("s_waitcnt vmcnt(4)")
    a.e("s_nop 10")
    a.e(".p2align 6")
    a.label("K2_loop")
    for par in range(2):
        k0, k1 = KB[par], KB[1 - par]
        v0_, v1_ = VB[par], VB[1 - par]
        attn_phase(a, SA, PA, [
            mfma32(SB, k0, QB, None),
            mfma32(SB, k0 + 4, QB + 4, SB),
            mfma32(OB, v1_, PB, OB),
            mfma32(OB, v1_ + 4, PB + 4, OB),
            smf(LB, PB)])
        a.e(f"""
        buffer_load_dwordx4 {vr(k0,4)}, v{VOFFK}, s[32:35], s48 offen
        buffer_load_dwordx4 {vr(k0+4,4)}, v{VOFFK}, s[32:35], s48 offen offset:1024
        buffer_load_dwordx4 {vr(v1_,4)}, v{VOFFV}, s[32:35], s48 offen
        buffer_load_dwordx4 {vr(v1_+4,4)}, v{VOFFV}, s[32:35], s48 offen offset:1024
        s_add_u32 s48, s48, 0x1000
        s_waitcnt vmcnt(4)
        """)
        attn_phase(a, SB, PB, [
            mfma32(SA, k1, QA, None),
            mfma32(SA, k1 + 4, QA + 4, SA),
            mfma32(OA, v0_, PA, OA),
            mfma32(OA, v0_ + 4, PA + 4, OA),
            smf(LA, PA)])
    a.e("""
    s_add_u32 s49, s49, 1
    s_cmp_lt_u32 s49, 16
    s_cbranch_scc1 K2_loop
    """)
    a.e("s_nop 0")
    a.e(mfma32(OB, VB[1], PB, OB))
    a.e(mfma32(OB, VB[1] + 4, PB + 4, OB))
    a.e(smf(LB, PB))
    a.e("""
    s_nop 15
    s_waitcnt vmcnt(0)
    """)
    a.e(f"""
    v_add_f32 v{LA}, v{LA}, v{LA+1}
    v_add_f32 v{LB}, v{LB}, v{LB+1}
    """)
    a.e(f"v_maximum3_f32 v4, abs(v{OA}), abs(v{OA+1}), 0")
    for i in range(2, 32, 2):
        a.e(f"v_maximum3_f32 v4, abs(v{OA+i}), abs(v{OA+i+1}), v4")
    a.e(f"""
    v_mul_f32 v4, 0x1f800000, v4
    v_maximum3_f32 v4, v4, v{LA}, v{LB}
    v_min_f32 v5, v{LA}, v{LB}
    s_mov_b32 s50, 0x5f800000            ; 2^64
    s_mov_b32 s51, 0x1f800000            ; 2^-64
    v_cmp_nle_f32 vcc, v4, s50
    v_cmp_nge_f32 s[52:53], v5, s51
    s_nop 0
    s_or_b64 vcc, vcc, s[52:53]
    s_cbranch_vccnz K2_fallback
    """)
    a.label("K2_combine")
    a.e(f"""
    s_mul_i32 s50, s42, {COMB_WAVE}
    s_add_u32 s50, s50, {L_COMB}
    v_add_u32 v4, s50, v3
    v_lshlrev_b32 v5, 2, v1
    v_add_u32 v5, s50, v5
    s_cmp_eq_u32 s44, 0
    s_cbranch_scc1 K2_pubB
    """)
    for q in range(4):
        a.e(f"ds_write_b128 v4, {vr(OA+4*q,4)} offset:{q*1024}")
    a.e(f"""
    ds_write_b32 v5, v{LA} offset:4096
    ds_write_b32 v5, v{MA} offset:4352
    s_waitcnt lgkmcnt(0)
    """)
    for i in range(16):
        a.e(f"v_mov_b32 v{OA+i}, v{OB+i}")
    a.e(f"""
    v_mov_b32 v{LA}, v{LB}
    v_mov_b32 v{MA}, v{MB}
    s_mov_b32 s45, s46
    s_branch K2_pub_done
    """)
    a.label("K2_pubB")
    for q in range(4):
        a.e(f"ds_write_b128 v4, {vr(OB+4*q,4)} offset:{q*1024}")
    a.e(f"""
    ds_write_b32 v5, v{LB} offset:4096
    ds_write_b32 v5, v{MB} offset:4352
    s_waitcnt lgkmcnt(0)
    """)
    a.label("K2_pub_done")
    a.e(f"""
    s_barrier
    s_xor_b32 s51, s42, 4
    s_mul_i32 s50, s51, {COMB_WAVE}
    s_add_u32 s50, s50, {L_COMB}
    v_add_u32 v4, s50, v3
    v_lshlrev_b32 v5, 2, v1
    v_add_u32 v5, s50, v5
    ds_read_b32 v{LB}, v5 offset:4096
    ds_read_b32 v{MB}, v5 offset:4352
    """)
    for q in range(4):
        a.e(f"ds_read_b128 {vr(OB+4*q,4)}, v4 offset:{q*1024}")
    a.e(f"""
    s_waitcnt lgkmcnt(4)
    v_max_f32 v6, v{MA}, v{MB}
    v_sub_f32 v{MA}, v{MA}, v6
    v_sub_f32 v{MB}, v{MB}, v6
    v_exp_f32 v{MA}, v{MA}
    v_exp_f32 v{MB}, v{MB}
    s_nop 0
    v_mul_f32 v6, v{LA}, v{MA}
    v_fmac_f32 v6, v{LB}, v{MB}
    v_rcp_f32 v6, v6
    s_nop 0
    v_mul_f32 v{MA}, v{MA}, v6
    v_mul_f32 v{MB}, v{MB}, v6
    s_waitcnt lgkmcnt(0)
    """)
    for i in range(16):
        a.e(f"v_mul_f32 v{OA+i}, v{OA+i}, v{MA}")
    for i in range(16):
        a.e(f"v_fmac_f32 v{OA+i}, v{OB+i}, v{MB}")
    for i in range(8):
        a.e(f"v_cvt_pk_bf16_f32 v{PA+i}, v{OA+2*i}, v{OA+2*i+1}")
    a.e(f"""
    s_add_u32 s45, s45, {WS_OF}
    buffer_store_dwordx4 {vr(PA,4)}, v3, s[32:35], s45 offen
    buffer_store_dwordx4 {vr(PA+4,4)}, v3, s[32:35], s45 offen offset:1024
    """)
    a.label("K2_end")
    a.e("s_endpgm")

    a.label("K2_fallback")
    for r in list(range(OA, OA + 32)) + list(range(LA, LA + 8)):
        a.e(f"v_mov_b32 v{r}, 0")
    a.e(f"""
    v_mov_b32 v{MA}, 0xff800000
    v_mov_b32 v{MB}, 0xff800000
    s_mov_b32 s49, 0
    s_mov_b32 s48, s47
    """)
    a.label("K2_fb_loop")
    a.e(f"""
    buffer_load_dwordx4 {vr(KB[0],4)}, v3, s[32:35], s48 offen
    buffer_load_dwordx4 {vr(KB[0]+4,4)}, v3, s[32:35], s48 offen offset:1024
    buffer_load_dwordx4 {vr(VB[0],4)}, v3, s[32:35], s48 offen offset:2048
    buffer_load_dwordx4 {vr(VB[0]+4,4)}, v3, s[32:35], s48 offen offset:3072
    s_add_u32 s48, s48, 0x1000
    s_waitcnt vmcnt(0)
    """)
    for (Q, O, L, M) in ((QA, OA, LA, MA), (QB, OB, LB, MB)):
        a.e(mfma32(SA, KB[0], Q, None))
        a.e(mfma32(SA, KB[0] + 4, Q + 4, SA))
        a.e("s_nop 15")
        a.e(f"v_max3_f32 v4, v{SA}, v{SA+1}, v{M}")
        for i in range(2, 16, 2):
            a.e(f"v_max3_f32 v4, v{SA+i}, v{SA+i+1}, v4")
        a.e(f"""
        v_mov_b32 v5, v4
        s_nop 1
        v_permlane32_swap_b32 v4, v5
        s_nop 1
        v_max_f32 v4, v4, v5
        v_sub_f32 v5, v{M}, v4
        v_exp_f32 v5, v5                     ; alpha
        v_mov_b32 v{M}, v4
        """)
        for i in range(16):
            a.e(f"v_sub_f32 v{SA+i}, v{SA+i}, v4")
        for i in range(16):
            a.e(f"v_exp_f32 v{SA+i}, v{SA+i}")
        for i in range(16):
            a.e(f"v_mul_f32 v{O+i}, v{O+i}, v5")
        for i in range(4):
            a.e(f"v_mul_f32 v{L+i}, v{L+i}, v5")
        for i in range(8):
            a.e(f"v_cvt_pk_bf16_f32 v{PA+i}, v{SA+2*i}, v{SA+2*i+1}")
        a.e("s_nop 1")
        a.e(mfma32(O, VB[0], PA, O))
        a.e(mfma32(O, VB[0] + 4, PA + 4, O))
        a.e(smf(L, PA))
        a.e("s_nop 15")
    a.e(f"""
    s_add_u32 s49, s49, 1
    s_cmp_lt_u32 s49, 32
    s_cbranch_scc1 K2_fb_loop
    v_add_f32 v{LA}, v{LA}, v{LA+1}
    v_add_f32 v{LB}, v{LB}, v{LB+1}
    s_branch K2_combine
    """)

    gen_k2_aux(a)
    return a, K2_VGPRS, 80


def gen_k2_aux(a):
    KEY = 16
    a.label("K2_aux")
    a.e("""
    s_load_dwordx2 s[4:5], s[0:1], 0     ; x
    s_load_dwordx2 s[6:7], s[0:1], 32    ; wo
    s_load_dwordx4 s[8:11], s[0:1], 56
    s_load_dwordx2 s[12:13], s[0:1], 72  ; w_down
    s_waitcnt lgkmcnt(0)
    """)
    srd(a, 32, 16, WS_BYTES)
    a.e(f"s_mov_b32 s50, {WS_KEY}")
    a.e(f"s_mov_b32 s51, {WS_KEY+4096}")
    for j in range(8):
        a.e(f"buffer_load_dwordx4 {vr(KEY+4*j,4)}, v3, s[32:35], s{50+j//4} offen offset:{(j%4)*1024}")
    srd(a, 20, 4, 2048 * 1024 * 2)
    srd(a, 24, 6, 1024 * 1024 * 2)
    srd(a, 56, 8, 1024 * 3584 * 2)
    srd(a, 60, 10, 1024 * 3584 * 2)
    srd(a, 64, 12, 1024 * 3584 * 2)
    a.e(f"""
    v_lshrrev_b32 v4, 2, v1
    v_lshlrev_b32 v4, 11, v4
    v_and_b32 v5, 3, v1
    v_lshl_add_u32 v4, v5, 4, v4
    s_lshl_b32 s43, s41, 2
    s_and_b32 s44, s40, 3
    s_add_u32 s43, s43, s44              ; ct
    s_lshr_b32 s44, s40, 2               ; krange
    s_lshl_b32 s45, s44, 18              ; krange*128*2048
    s_lshl_b32 s46, s43, 6
    s_add_u32 s45, s45, s46
    s_mov_b32 m0, {L_WO}
    s_mov_b32 s49, 0
    """)
    a.label("K2_wo_dma")
    a.e("""
    buffer_load_dwordx4 v4, s[24:27], s45 offen lds
    s_add_u32 m0, m0, 1024
    s_add_u32 s45, s45, 0x8000
    s_add_u32 s49, s49, 1
    s_cmp_lt_u32 s49, 8
    s_cbranch_scc1 K2_wo_dma
    """)
    a.e("""
    v_lshrrev_b32 v6, 4, v1
    v_and_b32 v6, 1, v6                  ; g&1
    v_lshrrev_b32 v7, 5, v1              ; hf
    v_bfe_u32 v8, v1, 2, 2               ; r
    v_and_b32 v9, 3, v1                  ; c
    s_cmp_ge_u32 s40, 28
    s_cbranch_scc1 K2_aux_wo
    """)
    a.e(f"""
    v_mov_b32 v10, 0
    s_mov_b32 s49, 0
    s_mov_b32 s52, {L_XS}
    s_waitcnt vmcnt(8)
    """)
    a.label("K2_top")
    a.e(f"v_max3_u32 v11, v{KEY}, v{KEY+1}, v{KEY+2}")
    a.e(f"v_max3_u32 v12, v{KEY+3}, v{KEY+4}, v{KEY+5}")
    for i in range(6, 30, 4):
        a.e(f"v_max3_u32 v11, v{KEY+i}, v{KEY+i+1}, v11")
        a.e(f"v_max3_u32 v12, v{KEY+i+2}, v{KEY+i+3}, v12")
    a.e(f"v_max3_u32 v11, v{KEY+30}, v{KEY+31}, v11")
    a.e("v_max_u32 v11, v11, v12")
    for ctl in ("row_shr:1", "row_shr:2", "row_shr:4", "row_shr:8", "row_bcast:15 row_mask:0xa", "row_bcast:31 row_mask:0xc"):
        a.e("s_nop 1")
        a.e(f"v_max_u32_dpp v11, v11, v11 {ctl}")
    a.e(f"""
    s_nop 1
    v_readlane_b32 s53, v11, 63
    s_lshl_b32 exec_lo, 1, s49
    s_lshl_b32 exec_hi, 1, s49
    s_and_b32 s54, s53, 0x7ff
    v_mov_b32 v10, s53
    s_mov_b64 exec, -1
    s_sub_u32 s54, 2047, s54             ; token
    s_lshl_b32 s55, s54, 11
    s_mov_b32 m0, s52
    s_lshr_b32 s68, s54, 8
    buffer_load_dwordx4 v3, s[20:23], s55 offen lds
    buffer_load_dwordx4 v3, s[20:23], s55 offen offset:1024 lds
    s_add_u32 s52, s52, {XS_STRIDE}
    s_lshl_b32 s68, s68, 2
    s_and_b32 s69, s54, 3
    s_add_u32 s68, s68, s69
    s_bfe_u32 s69, s54, 0x60002
    s_lshl_b64 exec, 1, s69
    s_set_gpr_idx_on s68, 0x8
    v_mov_b32 v{KEY}, 0
    s_set_gpr_idx_off
    s_mov_b64 exec, -1
    s_add_u32 s49, s49, 1
    s_cmp_lt_u32 s49, 8
    s_cbranch_scc1 K2_top
    """)
    a.e(f"""
    s_mul_i32 s46, s41, 28
    s_add_u32 s46, s46, s40              ; unit
    v_lshrrev_b32 v4, 1, v1
    v_mul_u32_u24 v4, 7168, v4
    v_and_b32 v5, 1, v1
    v_lshl_add_u32 v4, v5, 4, v4
    s_lshl_b32 s47, s46, 5
    s_mov_b32 s48, {L_GATE}
    s_mov_b32 s49, 0
    """)
    a.label("K2_gu_dma")
    a.e(f"""
    s_mov_b32 m0, s48
    s_add_u32 s49, s49, 1
    buffer_load_dwordx4 v4, s[56:59], s47 offen lds
    s_add_u32 m0, s48, {L_UP-L_GATE}
    s_add_u32 s48, s48, 1024
    buffer_load_dwordx4 v4, s[60:63], s47 offen lds
    s_add_u32 s47, s47, {32*7168}
    s_cmp_lt_u32 s49, 32
    s_cbranch_scc1 K2_gu_dma
    """)
    a.e(f"""
    s_lshl_b32 s47, s46, 15              ; unit*16*2048
    s_mov_b32 m0, {L_DOWN}
    s_mov_b32 s49, 0
    """)
    a.label("K2_dn_dma")
    a.e(f"""
    buffer_load_dwordx4 v3, s[64:67], s47 offen lds
    buffer_load_dwordx4 v3, s[64:67], s47 offen offset:1024 lds
    s_add_u32 m0, m0, {DOWN_STRIDE}
    s_add_u32 s47, s47, 2048
    s_add_u32 s49, s49, 1
    s_cmp_lt_u32 s49, 16
    s_cbranch_scc1 K2_dn_dma
    """)
    a.e(f"""
    s_cmp_lg_u32 s2, 0
    s_cbranch_scc1 K2_nosel
    s_mov_b64 exec, 0xff
    v_lshlrev_b32 v4, 2, v1
    s_mov_b32 s47, {WS_SEL}
    buffer_store_dword v10, v4, s[32:35], s47 offen
    s_mov_b64 exec, -1
    """)
    a.label("K2_nosel")
    a.e(f"""
    v_and_b32 v11, 0xffff0000, v10
    v_ashrrev_i32 v12, 31, v11
    v_not_b32 v12, v12
    v_or_b32 v12, 0x80000000, v12
    v_xor_b32 v11, v11, v12
    v_and_b32 v11, 0xffff0000, v11       ; float r
    v_mul_f32 v11, {fbits(-LOG2E):#x}, v11
    v_exp_f32 v11, v11
    s_nop 0
    v_add_f32 v11, 1.0, v11
    v_rcp_f32 v11, v11
    """)
    a.e(f"""
    v_lshl_add_u32 v12, v7, 3, v8
    v_lshlrev_b32 v12, 5, v12
    v_lshl_add_u32 v12, v9, 3, v12
    v_mul_u32_u24 v13, {L_UP-L_GATE}, v6
    v_add_u32 v12, v12, v13
    v_and_b32 v13, 7, v1
    v_mul_u32_u24 v13, {XS_STRIDE}, v13
    v_lshl_add_u32 v13, v7, 4, v13
    v_add_u32 v13, {L_XS}, v13
    """)
    ACC = 48
    for i in range(16):
        a.e(f"v_mov_b32 v{ACC+i}, 0")
    a.e("""
    s_mov_b32 s49, 0
    s_waitcnt vmcnt(32)
    """)
    a.label("K2_up")
    for ks in range(4):
        a.e(f"""
        ds_read_b128 {vr(64+4*ks,4)}, v13 offset:{ks*32}
        ds_read_b64_tr_b16 {vr(80+4*ks,2)}, v12 offset:{ks*512}
        ds_read_b64_tr_b16 {vr(82+4*ks,2)}, v12 offset:{ks*512+128}
        """)
    a.e("""
    v_add_u32 v12, 2048, v12
    v_add_u32 v13, 128, v13
    """)
    for ks in range(4):
        a.e(f"s_waitcnt lgkmcnt({9-3*ks})")
        a.e(mfma32(ACC, 80 + 4 * ks, 64 + 4 * ks, ACC))
    a.e("""
    s_add_u32 s49, s49, 1
    s_cmp_lt_u32 s49, 16
    s_cbranch_scc1 K2_up
    s_nop 15
    """)
    for i in range(8):
        a.e(f"v_mul_f32 v{64+i}, {fbits(-LOG2E):#x}, v{ACC+i}")
    for i in range(8):
        a.e(f"v_exp_f32 v{64+i}, v{64+i}")
    for i in range(8):
        a.e(f"v_add_f32 v{64+i}, 1.0, v{64+i}")
    for i in range(8):
        a.e(f"v_rcp_f32 v{64+i}, v{64+i}")
    for i in range(8):
        a.e(f"v_mul_f32 v{ACC+i}, v{ACC+i}, v{ACC+8+i}")
    for i in range(8):
        a.e(f"v_mul_f32 v{64+i}, v{64+i}, v11")
    for i in range(8):
        a.e(f"v_mul_f32 v{ACC+i}, v{ACC+i}, v{64+i}")
    for i in range(4):
        a.e(f"v_cvt_pk_bf16_f32 v{72+i}, v{ACC+2*i}, v{ACC+2*i+1}")
    a.e(f"""
    v_lshl_add_u32 v12, v7, 2, v8
    v_mul_u32_u24 v12, {DOWN_STRIDE}, v12
    v_lshl_add_u32 v12, v6, 5, v12
    v_lshl_add_u32 v12, v9, 3, v12
    v_add_u32 v12, {L_DOWN}, v12
    v_and_b32 v13, 31, v1
    v_lshlrev_b32 v13, 2, v13
    v_lshl_add_u32 v76, v7, 14, v13
    v_add_u32 v77, 0x1000, v76
    v_add_u32 v78, 0x2000, v76
    v_add_u32 v79, 0x3000, v76
    s_and_b32 s47, s46, {NREP-1}
    s_lshl_b32 s47, s47, 15
    s_add_u32 s47, s47, {WS_Y}
    s_mov_b32 s49, 0
    s_waitcnt vmcnt(0)
    """)
    a.label("K2_dn")
    a.e(f"""
    ds_read_b64_tr_b16 v[80:81], v12
    ds_read_b64_tr_b16 v[82:83], v12 offset:{8*DOWN_STRIDE}
    ds_read_b64_tr_b16 v[84:85], v12 offset:64
    ds_read_b64_tr_b16 v[86:87], v12 offset:{8*DOWN_STRIDE+64}
    v_add_u32 v12, 128, v12
    s_waitcnt lgkmcnt(2)
    """)
    a.e(mfma32(96, 72, 80, None))
    a.e("s_waitcnt lgkmcnt(0)")
    a.e(mfma32(112, 72, 84, None))
    a.e("s_nop 10")
    for i in range(4):
        a.e(f"buffer_atomic_add_f32 v{96+i}, v{76+i}, s[32:35], s47 offen")
    for i in range(4):
        a.e(f"buffer_atomic_add_f32 v{112+i}, v{76+i}, s[32:35], s47 offen offset:128")
    a.e("""
    s_add_u32 s47, s47, 256
    s_add_u32 s49, s49, 1
    s_cmp_lt_u32 s49, 16
    s_cbranch_scc1 K2_dn
    """)
    a.label("K2_aux_wo")
    a.e(f"""
    v_lshl_add_u32 v12, v7, 2, v8
    v_lshlrev_b32 v12, 6, v12
    v_lshl_add_u32 v12, v6, 5, v12
    v_lshl_add_u32 v12, v9, 3, v12
    v_add_u32 v12, {L_WO}, v12
    s_lshl_b32 s47, s43, 16              ; ct*65536
    s_lshl_b32 s48, s44, 13              ; krange*8*1024
    s_add_u32 s47, s47, s48
    s_add_u32 s47, s47, {WS_WOF}
    s_add_u32 s48, s47, 4096
    s_waitcnt vmcnt(0)
    """)
    for ks in range(8):
        a.e(f"""
        ds_read_b64_tr_b16 {vr(80+4*ks,2)}, v12 offset:{ks*1024}
        ds_read_b64_tr_b16 {vr(82+4*ks,2)}, v12 offset:{ks*1024+512}
        """)
        if ks == 6:
            a.e("s_waitcnt lgkmcnt(6)")
    a.e("s_waitcnt lgkmcnt(0)")
    for ks in range(8):
        a.e(f"buffer_store_dwordx4 {vr(80+4*ks,4)}, v3, s[32:35], s{47+ks//4} offen offset:{(ks%4)*1024}")
    a.e("s_endpgm")


K3_SLOT = 24576
K3_NSLOT = 6
K3_LDS = K3_SLOT * K3_NSLOT


def gen_k3():
    a = Asm()
    a.label("k3_out_kernel")
    a.e("""
    s_cmp_ge_u32 s2, 256
    s_cbranch_scc1 K3_end
    s_load_dwordx2 s[4:5], s[0:1], 0
    s_load_dwordx2 s[6:7], s[0:1], 88
    s_load_dwordx2 s[16:17], s[0:1], 104
    v_lshrrev_b32 v2, 6, v0
    v_and_b32 v1, 63, v0
    s_and_b32 s53, s2, 7
    v_readfirstlane_b32 s42, v2
    s_lshr_b32 s54, s2, 3
    s_lshr_b32 s40, s53, 1
    s_lshl_b32 s40, s40, 3
    s_and_b32 s55, s54, 7
    s_add_u32 s40, s40, s55              ; tb
    s_and_b32 s41, s53, 1
    s_lshl_b32 s41, s41, 2
    s_lshr_b32 s55, s54, 3
    s_add_u32 s41, s41, s55              ; cb
    v_lshlrev_b32 v3, 4, v1
    """)
    a.e(f"""
    s_lshr_b32 s53, s42, 2
    s_lshl_b32 s54, s40, 1
    s_add_u32 s53, s53, s54
    s_lshl_b32 s46, s53, 16
    s_and_b32 s54, s42, 3
    s_lshl_b32 s54, s54, 10
    s_add_u32 s46, s46, s54
    s_add_u32 s46, s46, {WS_OF}
    s_lshr_b32 s53, s42, 1
    s_lshl_b32 s54, s41, 2
    s_add_u32 s53, s53, s54
    s_lshl_b32 s47, s53, 16
    s_and_b32 s54, s42, 1
    s_lshl_b32 s54, s54, 11
    s_add_u32 s47, s47, s54
    s_add_u32 s47, s47, {WS_WOF}
    s_lshl_b32 s50, s42, 10
    s_lshl_b32 s51, s42, 11
    s_add_u32 s51, s51, 0x2000
    s_mov_b32 s45, 0
    s_mov_b32 s49, 0
    s_waitcnt lgkmcnt(0)
    """)
    srd(a, 32, 16, WS_BYTES)
    srd(a, 36, 16, WS_BYTES)
    a.e(f"s_load_dwordx8 s[56:63], s[16:17], {WS_SEL:#x}") if False else None

    def dma_issue():
        a.e(f"""
        s_add_u32 m0, s45, s50
        s_nop 0
        buffer_load_dwordx4 v3, s[36:39], s46 offen lds
        s_add_u32 m0, s45, s51
        s_add_u32 s46, s46, 0x1000
        buffer_load_dwordx4 v3, s[36:39], s47 offen lds
        buffer_load_dwordx4 v3, s[36:39], s47 offen offset:1024 lds
        s_add_u32 s47, s47, 0x1000
        s_add_u32 s45, s45, {K3_SLOT}
        s_cmp_eq_u32 s45, {K3_SLOT*K3_NSLOT}
        s_cselect_b32 s45, 0, s45
        """)

    a.label("K3_pro")
    dma_issue()
    a.e(f"""
    s_add_u32 s49, s49, 1
    s_cmp_lt_u32 s49, {K3_NSLOT-1}
    s_cbranch_scc1 K3_pro
    s_add_u32 s18, s16, {WS_SEL}
    s_addc_u32 s19, s17, 0
    s_load_dwordx8 s[56:63], s[18:19], 0
    """)
    srd(a, 20, 4, 2048 * 1024 * 2)
    srd(a, 24, 6, 2048 * 1024 * 2)
    a.e(f"""
    s_and_b32 s53, s42, 1
    s_lshr_b32 s54, s42, 1
    s_lshl_b32 s55, s53, 12
    v_add_u32 v8, s55, v3
    s_lshl_b32 s55, s54, 12
    s_add_u32 s55, s55, 0x2000
    v_add_u32 v9, s55, v3
    v_and_b32 v4, 31, v1
    s_lshl_b32 s55, s40, 1
    s_add_u32 s55, s55, s53
    s_lshl_b32 s55, s55, 5
    v_add_u32 v4, s55, v4                ; token
    v_lshrrev_b32 v5, 5, v1              ; hf
    s_lshl_b32 s55, s41, 2
    s_add_u32 s55, s55, s54              ; ct
    s_lshl_b32 s64, s55, 6
    v_lshlrev_b32 v6, 11, v4
    v_lshl_add_u32 v6, v5, 4, v6
    v_lshlrev_b32 v7, 2, v4
    s_mov_b32 s65, {WS_G}
    buffer_load_dwordx4 v[52:55], v6, s[20:23], s64 offen
    buffer_load_dwordx4 v[56:59], v6, s[20:23], s64 offen offset:32
    buffer_load_dword v60, v7, s[32:35], s65 offen
    """)
    for i in range(16):
        a.e(f"v_mov_b32 v{64+i}, 0")
    a.e("""
    v_mov_b32 v10, -1
    v_sub_u32 v11, 2047, v4
    s_waitcnt lgkmcnt(0)
    """)
    for i in range(8):
        a.e(f"""
        s_and_b32 s{56+i}, s{56+i}, 0x7ff
        v_cmp_eq_u32 vcc, s{56+i}, v11
        s_nop 1
        v_cndmask_b32 v10, v10, {i}, vcc
        """.replace(f"v_cndmask_b32 v10, v10, {i}, vcc", f"v_cndmask_b32_e64 v10, v10, {i}, vcc"))
    a.e(f"""
    v_cmp_le_i32 s[66:67], 0, v10
    s_nop 1
    s_cmp_eq_u64 s[66:67], 0
    s_cbranch_scc1 K3_nosel
    s_mov_b64 exec, s[66:67]
    v_lshlrev_b32 v10, 12, v10
    v_lshl_add_u32 v10, v5, 5, v10
    s_lshl_b32 s65, s55, 7
    s_add_u32 s65, s65, {WS_Y}
    """)
    for rep in range(NREP):
        for q in range(4):
            off = (q // 2) * 64 + (q % 2) * 16
            a.e(f"buffer_load_dwordx4 {vr(96+16*rep+4*q,4)}, v10, s[32:35], s65 offen offset:{off}")
        if rep < NREP - 1:
            a.e("s_add_u32 s65, s65, 0x8000")
    a.e("s_mov_b64 exec, -1")
    a.label("K3_nosel")
    a.e("""
    s_mov_b32 s44, 0
    s_mov_b32 s49, 0
    """)
    a.label("K3_loop")
    a.e(f"""
    s_waitcnt vmcnt({3*(K3_NSLOT-2)})
    s_barrier
    v_add_u32 v12, s44, v8
    v_add_u32 v13, s44, v9
    """)
    for ks in range(4):
        a.e(f"""
        ds_read_b128 {vr(20+4*ks,4)}, v12 offset:{ks*1024}
        ds_read_b128 {vr(36+4*ks,4)}, v13 offset:{ks*1024}
        """)
    a.e(f"""
    s_cmp_lt_u32 s49, {16-(K3_NSLOT-1)}
    s_cselect_b32 s38, s38, 0
    """)
    dma_issue()
    for ks in range(4):
        a.e(f"s_waitcnt lgkmcnt({6-2*ks})")
        a.e(mfma32(64, 36 + 4 * ks, 20 + 4 * ks, 64))
    a.e(f"""
    s_add_u32 s44, s44, {K3_SLOT}
    s_cmp_eq_u32 s44, {K3_SLOT*K3_NSLOT}
    s_cselect_b32 s44, 0, s44
    s_add_u32 s49, s49, 1
    s_cmp_lt_u32 s49, 16
    s_cbranch_scc1 K3_loop
    """)
    for i in range(8):
        a.e(f"""
        v_lshlrev_b32 v{20+2*i}, 16, v{52+i}
        v_and_b32 v{21+2*i}, 0xffff0000, v{52+i}
        """)
    a.e("""
    s_cmp_eq_u64 s[66:67], 0
    s_cbranch_scc1 K3_noy
    s_mov_b64 exec, s[66:67]
    """)
    for rep in range(NREP):
        for i in range(16):
            a.e(f"v_add_f32 v{20+i}, v{20+i}, v{96+16*rep+i}")
    a.e("s_mov_b64 exec, -1")
    a.label("K3_noy")
    a.e("v_sub_f32 v61, 1.0, v60")
    for i in range(4):
        a.e(f"v_permlane32_swap_b32 v{64+i}, v{68+i}")
    for i in range(4):
        a.e(f"v_permlane32_swap_b32 v{72+i}, v{76+i}")
    for i in range(16):
        a.e(f"v_mul_f32 v{20+i}, v{20+i}, v61")
    for i in range(16):
        a.e(f"v_fmac_f32 v{20+i}, v{64+i}, v60")
    for i in range(8):
        a.e(f"v_cvt_pk_bf16_f32 v{36+i}, v{20+2*i}, v{21+2*i}")
    a.e("""
    buffer_store_dwordx4 v[36:39], v6, s[24:27], s64 offen
    buffer_store_dwordx4 v[40:43], v6, s[24:27], s64 offen offset:32
    """)
    a.label("K3_end")
    a.e("s_endpgm")
    return a, 96 + 16 * NREP, 72


def kd(name, vgprs, sgprs):
    acc = (vgprs + 3) // 4 * 4
    return f""".p2align 6
.amdhsa_kernel {name}
  .amdhsa_next_free_vgpr {vgprs}
  .amdhsa_next_free_sgpr {sgprs}
  .amdhsa_accum_offset {acc}
  .amdhsa_group_segment_fixed_size 0
  .amdhsa_kernarg_size 112
  .amdhsa_user_sgpr_count 2
  .amdhsa_user_sgpr_kernarg_segment_ptr 1
  .amdhsa_system_sgpr_workgroup_id_x 1
  .amdhsa_float_denorm_mode_32 3
.end_amdhsa_kernel
"""


def main(out):
    ref = open(f"cdna_kernels/{NAME}.s.ref").read().split("\n")
    head = [l for l in ref if l.startswith(";") and "@launch" not in l and "Override" not in l and "grid=ceil" not in l]
    ks = [("k1_proj_kernel", gen_k1, 512, K1_LDS), ("k2_attn_kernel", gen_k2, 576, K2_LDS), ("k3_out_kernel", gen_k3, 512, K3_LDS)]
    txt = "\n".join(head) + "\n"
    for n, _, thr, lds in ks:
        txt += f"; @launch kernel={n} grid=(256,1,1) block=({thr},1,1) lds={lds}\n"
    txt += '.amdgcn_target "amdgcn-amd-amdhsa--gfx950"\n.text\n'
    kds = ""
    bad = 0
    for n, g, thr, lds in ks:
        a, vg, sg = g()
        errs = check_kernel(a.lines, n)
        for e in errs:
            print("HAZARD", e)
            bad += 1
        txt += f".globl {n}\n.p2align 8\n.type {n},@function\n" + a.text()
        kds += kd(n, vg, sg)
    txt += '.section .rodata,"a"\n' + kds
    open(out, "w").write(txt)
    print("wrote", out, "hazards:", bad, "K2 lds", K2_LDS)


if __name__ == "__main__":
    main(sys.argv[1] if len(sys.argv) > 1 else f"cdna_kernels/{NAME}.s")
```

```python
import math
import struct
import sys
import os

sys.path.insert(0, os.path.dirname(os.path.abspath(__file__)))
from asmlib import Asm, vr, sr, check_kernel

NAME = "gated_mix__grouped_kv_mqa__moe_arch_mod__prompt"

WS_QF = 0x000000
WS_OF = 0x400000
WS_WOF = 0x800000
WS_KVF = 0xA00000
WS_KEY = 0xA50000
WS_G = 0xA52000
WS_SEL = 0xA54000
WS_HX = 0xA58000
WS_YF = 0xA70000
WS_PX = 0xB00000
WS_BYTES = 0xC00000
ROT = int(os.environ.get("ROT", "2"))


def fbits(x):
    return struct.unpack("<I", struct.pack("<f", x))[0]


LOG2E = math.log2(math.e)
QSCALE = LOG2E / math.sqrt(32.0)


PROF = int(os.environ.get("PROF", "0"))
WS_PROF = 0xC00000
if PROF:
    WS_BYTES = 0xF00000
PS0 = 84


def stamp(a, i, real=False, wait=True):
    if PROF:
        a.e(f"{'s_memrealtime' if real else 's_memtime'} s[{PS0+2*i}:{PS0+2*i+1}]")
        if wait:
            a.e("s_waitcnt lgkmcnt(0)")


def stamp_flush(a, kidx, srd_s=32, wave_s=42):
    if PROF:
        a.e(f"""
        s_memtime s[{PS0+12}:{PS0+13}]
        s_memrealtime s[{PS0+14}:{PS0+15}]
        s_waitcnt lgkmcnt(0)
        """)
        if PROF >= 2:
            a.e(f"""
            s_mov_b64 exec, -1
            s_lshl_b32 s82, s2, 11
            s_lshl_b32 s83, s{wave_s}, 8
            s_add_u32 s82, s82, s83
            s_add_u32 s82, s82, {WS_PROF + 0x100000 + kidx*0x80000}
            v_mbcnt_lo_u32_b32 v0, -1, 0
            v_mbcnt_hi_u32_b32 v0, -1, v0
            v_lshlrev_b32 v0, 2, v0
            buffer_store_dword v{TRV}, v0, s[{srd_s}:{srd_s+3}], s82 offen
            """)
        a.e(f"""
        s_mov_b64 exec, 1
        s_lshl_b32 s82, s2, 10
        s_lshl_b32 s83, s{wave_s}, 6
        s_add_u32 s82, s82, s83
        s_add_u32 s82, s82, {WS_PROF + kidx*0x40000}
        v_mov_b32 v0, 0
        """)
        for i in range(8):
            a.e(f"""
            v_mov_b32 v1, s{PS0+2*i}
            buffer_store_dword v1, v0, s[{srd_s}:{srd_s+3}], s82 offen offset:{4*i}
            """)
        a.e("""
        s_getreg_b32 s83, hwreg(HW_REG_HW_ID)
        v_mov_b32 v1, s83
        """)
        a.e(f"buffer_store_dword v1, v0, s[{srd_s}:{srd_s+3}], s82 offen offset:32")
        a.e("""
        s_getreg_b32 s83, hwreg(HW_REG_XCC_ID)
        v_mov_b32 v1, s83
        """)
        a.e(f"buffer_store_dword v1, v0, s[{srd_s}:{srd_s+3}], s82 offen offset:36")


TRV = 250


def trace(a, idx_s, add=0):
    if PROF >= 2:
        a.e(f"""
        s_memtime s[80:81]
        s_add_u32 m0, s{idx_s}, {add}
        s_waitcnt lgkmcnt(0)
        v_writelane_b32 v{TRV}, s80, m0
        """)


def srd(a, base, ptr, nbytes):
    a.e(f"""
    s_mov_b32 s{base}, s{ptr}
    s_mov_b32 s{base+1}, s{ptr+1}
    s_mov_b32 s{base+2}, {nbytes:#x}
    s_mov_b32 s{base+3}, 0x00020000
    """)


def mfma32(d, a_, b_, c):
    cs = "0" if c is None else vr(c, 16)
    return f"v_mfma_f32_32x32x16_bf16 {vr(d,16)}, {vr(a_,4)}, {vr(b_,4)}, {cs}"


def ids_tb_cb(a, ROT=ROT):
    a.e("""
    v_lshrrev_b32 v2, 6, v0
    v_and_b32 v1, 63, v0
    s_and_b32 s53, s2, 7
    v_readfirstlane_b32 s42, v2
    v_lshlrev_b32 v3, 4, v1
    s_lshr_b32 s54, s2, 3
    s_lshr_b32 s40, s53, 1
    s_lshl_b32 s40, s40, 3
    s_and_b32 s55, s54, 7
    s_add_u32 s40, s40, s55              ; tb
    s_and_b32 s41, s53, 1
    s_lshl_b32 s41, s41, 2
    s_lshr_b32 s56, s54, 3
    s_add_u32 s41, s41, s56              ; cb
    """)
    if ROT == 2:
        a.e("""
        s_lshl_b32 s59, s55, 1
        s_lshl_b32 s56, s56, 2
        s_add_u32 s59, s59, s56
        s_and_b32 s59, s59, 15
        """)
    elif ROT == 1:
        a.e("""
        s_lshl_b32 s59, s55, 2
        s_lshl_b32 s56, s56, 3
        s_add_u32 s59, s59, s56
        s_and_b32 s59, s59, 15
        """)
    elif ROT == 3:
        a.e("""
        s_add_u32 s59, s55, s56
        s_lshl_b32 s59, s59, 3
        s_and_b32 s59, s59, 15
        """)
    else:
        a.e("s_mov_b32 s59, 0")


def ring_loader(a, pfx, n, nslot, slot, nstage, D, flags, issue, ring0=0, init=None, sleep=1):
    minprog = f"""
    v_readlane_b32 s58, v23, 0
    v_readlane_b32 s57, v23, 1
    v_readlane_b32 s56, v23, 2
    v_readlane_b32 s55, v23, 3
    s_min_u32 s58, s58, s57
    s_min_u32 s56, s56, s55
    s_min_u32 s58, s58, s56
    s_add_u32 s58, s58, {nslot}
    """
    a.e(f"""
    s_mov_b32 s45, {ring0}
    s_mov_b32 s49, 0
    """)
    issue()
    for l in init:
        a.e(l)
    a.e(f"""
    s_mov_b32 s45, {ring0 + slot}
    s_mov_b32 s49, 1
    """)
    a.label(f"{pfx}_go")
    if PROF >= 2:
        a.e(f"""
        s_add_u32 m0, s49, 0
        v_writelane_b32 v{TRV}, s80, m0
        s_add_u32 m0, s49, 16
        v_writelane_b32 v{TRV}, s78, m0
        s_memtime s[80:81]
        """)
    a.e("ds_read_b32 v23, v20")
    issue()
    if PROF >= 2:
        a.e("s_memtime s[78:79]")
    a.e(f"""
    s_add_u32 s45, s45, {slot}
    s_cmp_eq_u32 s45, {ring0 + slot*nslot}
    s_cselect_b32 s45, {ring0}, s45
    s_add_u32 s49, s49, 1
    s_sub_u32 s54, s49, {D}
    s_max_i32 s54, s54, 0
    v_mov_b32 v22, s54
    s_waitcnt vmcnt({min(63, D*n)}) lgkmcnt(0)
    ds_write_b32 v21, v22
    """)
    a.e(minprog)
    a.e(f"""
    s_min_u32 s58, s58, {nstage}
    s_cmp_lt_u32 s49, s58
    s_cbranch_scc1 {pfx}_go
    s_cmp_lt_u32 s49, {nstage}
    s_cbranch_scc1 {pfx}_poll
    """)
    for j in range(D - 1, -1, -1):
        a.e(f"""
        v_mov_b32 v22, {nstage - j}
        s_waitcnt vmcnt({j*n})
        ds_write_b32 v21, v22
        """)
    a.e(f"""
    s_waitcnt lgkmcnt(0)
    s_branch {pfx}_done
    """)
    a.label(f"{pfx}_poll")
    if PROF:
        a.e(f"s_add_u32 s{PS0+10}, s{PS0+10}, 1")
    a.e(f"""
    ds_read_b32 v23, v20
    s_waitcnt lgkmcnt(0)
    """)
    a.e(minprog)
    a.e(f"""
    s_cmp_lt_u32 s49, s58
    s_cbranch_scc1 {pfx}_go
    s_sleep {sleep}
    s_branch {pfx}_poll
    """)
    a.label(f"{pfx}_done")


def bar_loader(a, pfx, n, nslot, slot, issue):
    a.e("""
    s_mov_b32 s45, 0
    s_mov_b32 s49, 0
    """)
    a.label(f"{pfx}_ld")
    issue()
    a.e(f"""
    s_add_u32 s45, s45, {slot}
    s_cmp_eq_u32 s45, {slot*nslot}
    s_cselect_b32 s45, 0, s45
    s_add_u32 s49, s49, 1
    s_cmp_lt_u32 s49, {nslot-1}
    s_cbranch_scc1 {pfx}_ld
    s_cmp_lt_u32 s49, 16
    s_waitcnt vmcnt({min(63, n*(nslot-2))})
    s_barrier
    s_cbranch_scc1 {pfx}_ld
    """)
    for i in range(nslot - 3, -1, -1):
        a.e(f"""
        s_waitcnt vmcnt({min(63, n*i)})
        s_barrier
        """)


def flag_init_lines(flags):
    return [f"v_add_u32 v22, {flags}, v3",
            "v_mov_b32 v24, 0", "v_mov_b32 v25, 0", "v_mov_b32 v26, 0", "v_mov_b32 v27, 0",
            "ds_write_b128 v22, v[24:27]",
            "ds_write_b128 v21, v[24:27]",
            "s_waitcnt lgkmcnt(0)", "s_barrier"]


def loader_flag_regs(a, flags):
    a.e(f"""
    v_and_b32 v20, 3, v1
    v_lshlrev_b32 v20, 8, v20
    v_add_u32 v20, {flags}, v20
    s_lshl_b32 s57, s42, 2
    s_add_u32 s57, s57, {flags + 1024}
    v_mov_b32 v21, s57
    """)


FLAG_BYTES = 1024 + 64

K1_SLOT = 28672
K1_NSLOT = int(os.environ.get("NS", "4"))
K1_RG = K1_SLOT * K1_NSLOT
K1_FL = K1_RG + 4096
K1_LDS = K1_FL + FLAG_BYTES
GEMM_D = int(os.environ.get("GD", "2"))


def consumer_poll(a, pfx, vfl):
    a.label(f"{pfx}_poll")
    if PROF:
        a.e(f"s_add_u32 s{PS0+10}, s{PS0+10}, 1")
    a.e(f"""
    ds_read_b64 v[4:5], v{vfl}
    s_waitcnt lgkmcnt(0)
    v_min_u32 v4, v4, v5
    s_nop 0
    v_readfirstlane_b32 s47, v4
    s_nop 0
    s_cmp_gt_u32 s47, s49
    s_cbranch_scc1 {pfx}_ok
    s_branch {pfx}_poll
    """)


def gen_k1():
    a = Asm()
    a.label("k1_proj_kernel")
    a.e("""
    s_cmp_ge_u32 s2, 256
    s_cbranch_scc1 K1_end
    """)
    stamp(a, 0, True, False)
    stamp(a, 1, False, True)
    if PROF:
        a.e(f"s_mov_b32 s{PS0+10}, s{PS0+2}")
    a.e("""
    s_load_dwordx4 s[4:7], s[0:1], 0
    s_load_dwordx4 s[8:11], s[0:1], 16
    s_load_dwordx2 s[12:13], s[0:1], 48
    s_load_dwordx2 s[14:15], s[0:1], 80
    s_load_dwordx2 s[16:17], s[0:1], 104
    """)
    ids_tb_cb(a)
    a.e("""
    s_mov_b32 s43, 0
    s_cmp_eq_u32 s41, 0
    s_cselect_b32 s43, 1, s43
    s_cmp_eq_u32 s41, 4
    s_cselect_b32 s43, 2, s43
    s_cmp_eq_u32 s41, 1
    s_cselect_b32 s43, 3, s43
    v_lshrrev_b32 v13, 4, v1             ; lane>>4
    s_cmp_ge_u32 s42, 2
    s_cbranch_scc1 K1_compute
    v_lshlrev_b32 v14, 2, v13
    v_and_b32 v15, 15, v1
    v_xor_b32 v14, v14, v15
    v_lshlrev_b32 v8, 11, v13
    v_lshl_add_u32 v8, v14, 4, v8
    s_lshl_b32 s53, s41, 8
    v_add_u32 v8, s53, v8
    v_add_u32 v9, 0x1c00, v8             ; + q*8192 - q*1024
    v_add_u32 v10, 0x3800, v8
    v_add_u32 v11, 0x5400, v8
    """)
    a.e("s_waitcnt lgkmcnt(0)")
    srd(a, 24, 6, 1024 * 1024 * 2)
    if PROF:
        srd(a, 32, 16, WS_BYTES)
    a.e("""
    s_cmp_eq_u32 s42, 0
    s_cbranch_scc1 K1_ldx
    """)

    def adv():
        a.e("""
        s_add_u32 s59, s59, 1
        s_and_b32 s59, s59, 15
        """)

    def wgroup(g, first):
        a.e(f"s_add_u32 m0, s45, {0x2000 + g*4096}")
        a.e(first)
        for q in range(4):
            a.e(f"buffer_load_dwordx4 v{8+q}, s[24:27], s47 offen offset:{q*1024} lds")

    def issue_w():
        for g in range(3):
            wgroup(g, "s_lshl_b32 s47, s59, 17" if g == 0 else "s_add_u32 s47, s47, 0x8000")
        adv()
    bar_loader(a, "K1w", 12, K1_NSLOT, K1_SLOT, issue_w)
    a.e("s_branch K1_fin")
    a.label("K1_ldx")
    a.e("""
    v_lshrrev_b32 v14, 3, v1
    s_lshl_b32 s53, s40, 6
    v_add_u32 v14, s53, v14
    v_lshlrev_b32 v14, 11, v14
    v_xor_b32 v15, v13, v1
    v_and_b32 v15, 7, v15
    v_lshl_add_u32 v4, v15, 4, v14
    v_xor_b32 v15, 4, v15                ; odd q
    v_lshl_add_u32 v5, v15, 4, v14
    v_add_u32 v5, 0x3c00, v5             ; + 16384 - 1024
    v_add_u32 v6, 0x7800, v4
    v_add_u32 v7, 0x7800, v5
    """)
    srd(a, 20, 4, 2048 * 1024 * 2)

    def issue_x(extra=False):
        a.e("""
        s_mov_b32 m0, s45
        s_lshl_b32 s46, s59, 7
        """)
        for q in range(4):
            a.e(f"buffer_load_dwordx4 v{4+q}, s[20:23], s46 offen offset:{q*1024} lds")
        a.e("""
        s_add_u32 m0, s45, 0x1000
        s_add_u32 s46, s46, 0x10000
        """)
        for q in range(4):
            a.e(f"buffer_load_dwordx4 v{4+q}, s[20:23], s46 offen offset:{q*1024} lds")
        a.e("s_lshl_b32 s47, s59, 17")
        wgroup(3, "s_add_u32 s47, s47, 0x18000")
        if extra:
            a.e("""
            s_add_u32 m0, s45, 0x6000
            s_lshl_b32 s48, s59, 12
            """)
            for q in range(4):
                a.e(f"buffer_load_dwordx4 v3, s[28:31], s48 offen offset:{q*1024} lds")
        adv()
    a.e(f"""
    s_cmp_eq_u32 s43, 1
    s_cbranch_scc1 K1_ldxe
    s_cmp_eq_u32 s43, 2
    s_cbranch_scc1 K1_ldxe
    s_cmp_lg_u32 s43, 3
    s_cbranch_scc1 K1_norg
    s_mov_b32 m0, {K1_RG}
    """)
    srd(a, 36, 12, 2048)
    a.e(f"""
    buffer_load_dwordx4 v3, s[36:39], 0 offen lds
    buffer_load_dwordx4 v3, s[36:39], 0 offen offset:1024 lds
    s_mov_b32 m0, {K1_RG+2048}
    """)
    srd(a, 28, 14, 2048)
    a.e("""
    buffer_load_dwordx4 v3, s[28:31], 0 offen lds
    buffer_load_dwordx4 v3, s[28:31], 0 offen offset:1024 lds
    """)
    a.label("K1_norg")
    bar_loader(a, "K1x", 12, K1_NSLOT, K1_SLOT, issue_x)
    a.e("s_branch K1_fin")
    a.label("K1_ldxe")
    a.e("""
    s_cmp_eq_u32 s43, 2
    s_cselect_b32 s28, s10, s8
    s_cselect_b32 s29, s11, s9
    s_mov_b32 s30, 0x10000
    s_mov_b32 s31, 0x00020000
    """)
    bar_loader(a, "K1e", 16, K1_NSLOT, K1_SLOT, lambda: issue_x(True))
    a.e("s_branch K1_fin")

    a.label("K1_compute")
    SETS = [dict(X0=32, X1=48, W=64, WE=80), dict(X0=84, X1=100, W=116, WE=132)]
    ACC = [136, 152]
    ACC2 = [168, 184]
    AXB, AWB, AEB = 8, 9, 10
    AWBS = [9, 28, 29, 30]
    AX = [12, 13, 14, 15]
    AW = [16, 17, 18, 19]
    VPA, VPV, VFL = 6, 7, 11
    a.e(f"""
    v_subrev_u32 v17, 2, v2              ; hh
    s_sub_u32 s60, s42, 2
    v_and_b32 v15, 15, v1                ; i
    v_and_b32 v12, 31, v1                ; l32
    v_lshrrev_b32 v14, 5, v1             ; hf
    v_lshlrev_b32 v18, 7, v12            ; row*128
    v_lshrrev_b32 v19, 1, v12
    v_and_b32 v19, 7, v19
    v_xor_b32 v19, v19, v14              ; hf ^ f
    v_lshl_add_u32 v8, v19, 4, v18
    v_lshlrev_b32 v19, 5, v17
    v_xor_b32 v8, v8, v19
    v_lshrrev_b32 v18, 2, v15            ; r = i>>2
    v_and_b32 v19, 3, v15                ; c = i&3
    v_lshl_add_u32 v20, v14, 3, v18      ; 8hf + r
    v_and_b32 v21, 1, v13                ; g&1
    v_lshlrev_b32 v22, 2, v17            ; hh*4
    v_lshl_add_u32 v22, v21, 1, v22      ; + (g&1)*2
    v_lshrrev_b32 v23, 1, v19            ; c>>1
    v_add_u32 v22, v22, v23              ; chunk
    v_lshlrev_b32 v23, 2, v18            ; r<<2
    v_xor_b32 v22, v22, v23
    v_lshlrev_b32 v22, 4, v22
    v_lshl_add_u32 v22, v20, 8, v22      ; + (8hf+r)*256
    v_and_b32 v23, 1, v19
    v_lshl_add_u32 v22, v23, 3, v22      ; + (c&1)*8
    v_lshl_add_u32 v22, v17, 12, v22     ; + hh*4096
    v_xor_b32 v28, 0x1000, v22
    v_xor_b32 v29, 0x2000, v22
    v_xor_b32 v30, 0x3000, v22
    v_add_u32 v9, 0x2000, v22
    v_add_u32 v28, 0x2000, v28
    v_add_u32 v29, 0x2000, v29
    v_add_u32 v30, 0x2000, v30
    v_lshl_add_u32 v20, v17, 4, v20
    v_lshlrev_b32 v20, 6, v20            ; *64
    v_lshl_add_u32 v20, v21, 5, v20      ; + (g&1)*32
    v_lshl_add_u32 v20, v19, 3, v20      ; + c*8
    v_add_u32 v10, 0x6000, v20
    s_lshl_b32 s53, s60, 8
    s_add_u32 s53, s53, {K1_FL}
    v_lshl_add_u32 v{VPA}, v1, 2, s53
    v_mov_b32 v{VPV}, 0
    v_mov_b32 v{VFL}, {K1_FL+1024}
    s_cmp_lg_u32 s43, 3
    s_cbranch_scc1 K1_norg2
    v_and_b32 v20, 1, v1
    v_lshlrev_b32 v20, 11, v20           ; (l&1)*2048
    v_lshl_add_u32 v20, v17, 5, v20      ; + hh*32
    v_lshl_add_u32 v20, v14, 4, v20      ; + hf*16
    v_add_u32 v10, {K1_RG}, v20
    """)
    a.label("K1_norg2")
    for i in range(84, 200):
        a.e(f"v_mov_b32 v{i}, 0")
    a.e("""
    s_mov_b32 s44, 0
    s_mov_b32 s49, 0
    s_mov_b32 s47, 0
    s_waitcnt lgkmcnt(0)
    """)
    srd(a, 32, 16, WS_BYTES)
    stamp(a, 2)

    def mm_extra(s_, tag):
        a.e(f"""
        s_cmp_eq_u32 s43, 0
        s_cbranch_scc1 K1_mm_done{tag}
        s_cmp_eq_u32 s43, 2
        s_cbranch_scc1 K1_mm_v{tag}
        """)
        a.e(mfma32(ACC2[0], s_["WE"], s_["X0"], ACC2[0]))
        a.e(mfma32(ACC2[1], s_["WE"], s_["X1"], ACC2[1]))
        a.e(f"s_branch K1_mm_done{tag}")
        a.label(f"K1_mm_v{tag}")
        a.e(mfma32(ACC2[0], s_["X0"], s_["WE"], ACC2[0]))
        a.e(mfma32(ACC2[1], s_["X1"], s_["WE"], ACC2[1]))
        a.label(f"K1_mm_done{tag}")

    def addr_update():
        a.e(f"""
        v_add_u32 v12, s44, v8
        v_add_u32 v16, s44, v9
        v_add_u32 v17, s44, v28
        v_add_u32 v18, s44, v29
        v_add_u32 v19, s44, v30
        v_xor_b32 v13, 32, v12
        v_xor_b32 v14, 64, v12
        v_xor_b32 v15, 0x60, v12
        v_add_u32 v20, s61, v10
        v_add_u32 v{VPV}, 1, v{VPV}
        """)
    a.e("""
    s_lshl_b32 s61, s59, 7
    s_cmp_eq_u32 s43, 3
    s_cselect_b32 s61, s61, 0
    """)
    addr_update()
    a.label("K1_loop")
    for par in range(2):
        cur, prev = SETS[par], SETS[1 - par]
        a.e("s_barrier")
        trace(a, 49)
        if par == 0 and PROF:
            a.e("s_cmp_lg_u32 s49, 0\ns_cbranch_scc1 K1_nostamp")
            stamp(a, 3)
            a.label("K1_nostamp")
        mms = []
        for i in range(4):
            mms.append(mfma32(ACC[0], prev["W"] + 4 * i, prev["X0"] + 4 * i, ACC[0]))
            mms.append(mfma32(ACC[1], prev["W"] + 4 * i, prev["X1"] + 4 * i, ACC[1]))
        for i in range(4):
            a.e(mms[i])
            a.e(f"""
            ds_read_b128 {vr(cur['X0']+4*i,4)}, v{AX[i]}
            ds_read_b128 {vr(cur['X1']+4*i,4)}, v{AX[i]} offset:4096
            ds_read_b64_tr_b16 {vr(cur['W']+4*i,2)}, v{AW[i]}
            ds_read_b64_tr_b16 {vr(cur['W']+4*i+2,2)}, v{AW[i]} offset:1024
            """)
            if i == 2:
                a.e("s_waitcnt lgkmcnt(7)")
        a.e(mms[4])
        a.e(f"""
        s_cmp_eq_u32 s43, 0
        s_cbranch_scc1 K1_rd_done{par}
        s_cmp_eq_u32 s43, 3
        s_cbranch_scc1 K1_rd_rg{par}
        ds_read_b64_tr_b16 {vr(cur['WE'],2)}, v20
        ds_read_b64_tr_b16 {vr(cur['WE']+2,2)}, v20 offset:256
        s_branch K1_rd_done{par}
        """)
        a.label(f"K1_rd_rg{par}")
        a.e(f"ds_read_b128 {vr(cur['WE'],4)}, v20")
        a.label(f"K1_rd_done{par}")
        a.e(mms[5])
        a.e(f"""
        s_add_u32 s44, s44, {K1_SLOT}
        s_cmp_eq_u32 s44, {K1_SLOT*K1_NSLOT}
        s_cselect_b32 s44, 0, s44
        s_add_u32 s59, s59, 1
        s_and_b32 s59, s59, 15
        s_lshl_b32 s61, s59, 7
        s_cmp_eq_u32 s43, 3
        s_cselect_b32 s61, s61, s44
        """)
        a.e(mms[6])
        addr_update()
        a.e(mms[7])
        mm_extra(prev, par)
        a.e(f"""
        s_add_u32 s49, s49, 1
        s_waitcnt lgkmcnt(0)
        """)
    a.e("""
    s_cmp_lt_u32 s49, 16
    s_cbranch_scc1 K1_loop
    """)
    mm_extra(SETS[1], 2)
    for i in range(4):
        a.e(mfma32(ACC[0], SETS[1]["W"] + 4 * i, SETS[1]["X0"] + 4 * i, ACC[0]))
        a.e(mfma32(ACC[1], SETS[1]["W"] + 4 * i, SETS[1]["X1"] + 4 * i, ACC[1]))
    stamp(a, 4)
    a.e(f"""
    s_lshl_b32 s55, s40, 6               ; 2tb*32
    s_lshl_b32 s56, s41, 2
    s_add_u32 s55, s55, s56
    s_add_u32 s55, s55, s60
    s_lshl_b32 s55, s55, 11
    s_add_u32 s55, s55, {WS_QF}
    s_add_u32 s56, s55, 0x10000
    s_mov_b32 s57, {fbits(QSCALE):#x}
    s_cmp_eq_u32 s43, 0
    s_cbranch_scc1 K1_nored
    s_barrier
    s_lshl_b32 s53, s60, 13
    v_add_u32 v12, s53, v3
    """)
    for t in range(2):
        for q in range(4):
            a.e(f"ds_write_b128 v12, {vr(ACC2[t]+4*q,4)} offset:{t*4096+q*1024}")
    a.label("K1_nored")
    a.e("s_nop 3")
    for t in range(2):
        for i in range(16):
            a.e(f"v_mul_f32 v{ACC[t]+i}, s57, v{ACC[t]+i}")
        for i in range(8):
            a.e(f"v_cvt_pk_bf16_f32 v{32+8*t+i}, v{ACC[t]+2*i}, v{ACC[t]+1+2*i}")
        a.e(f"""
        buffer_store_dwordx4 {vr(32+8*t,4)}, v3, s[32:35], s{55+t} offen
        buffer_store_dwordx4 {vr(36+8*t,4)}, v3, s[32:35], s{55+t} offen offset:1024
        """)
    a.e(f"""
    v_mov_b32 v48, -1
    v_mov_b32 v49, -1
    v_mov_b32 v50, -1
    v_mov_b32 v51, -1
    s_lshl_b32 s57, s2, 12
    s_lshl_b32 s58, s60, 10
    s_add_u32 s57, s57, s58
    s_add_u32 s57, s57, {WS_PX}
    buffer_store_dwordx4 v[48:51], v3, s[32:35], s57 offen
    s_cmp_lg_u32 s60, 3
    s_cbranch_scc1 K1_nozero
    v_lshlrev_b32 v29, 2, v1
    s_lshl_b32 s57, s2, 8
    s_add_u32 s57, s57, {WS_HX}
    buffer_store_dword v48, v29, s[32:35], s57 offen
    """)
    a.label("K1_nozero")
    a.e(f"""
    s_cmp_eq_u32 s43, 0
    s_cbranch_scc1 K1_fin
    s_lshl_b32 s53, s60, 10
    v_add_u32 v12, s53, v3
    s_waitcnt lgkmcnt(0)
    s_barrier
    """)
    for t in range(2):
        for w in range(4):
            a.e(f"ds_read_b128 {vr(64+16*t+4*w,4)}, v12 offset:{w*8192+t*4096}")
    a.e("s_waitcnt lgkmcnt(0)")
    for t in range(2):
        b = 64 + 16 * t
        for i in range(4):
            a.e(f"""
            v_add_f32 v{b+i}, v{b+i}, v{b+4+i}
            v_add_f32 v{b+8+i}, v{b+8+i}, v{b+12+i}
            v_add_f32 v{b+i}, v{b+i}, v{b+8+i}
            """)
    a.e(f"""
    s_cmp_eq_u32 s43, 3
    s_cbranch_scc1 K1_rg_out
    v_cvt_pk_bf16_f32 v52, v64, v65
    v_cvt_pk_bf16_f32 v53, v66, v67
    v_cvt_pk_bf16_f32 v54, v80, v81
    v_cvt_pk_bf16_f32 v55, v82, v83
    s_lshl_b32 s57, s40, 13              ; 2tb*4096
    s_cmp_eq_u32 s43, 2
    s_cselect_b32 s58, 2048, 0
    s_add_u32 s57, s57, s58
    s_lshr_b32 s58, s60, 1
    s_lshl_b32 s58, s58, 10              ; (hh>>1)*1024
    s_add_u32 s57, s57, s58
    s_and_b32 s58, s60, 1
    s_lshl_b32 s58, s58, 3               ; (hh&1)*8
    s_add_u32 s57, s57, s58
    s_add_u32 s57, s57, {WS_KVF}
    s_add_u32 s58, s57, 0x1000
    buffer_store_dwordx2 v[52:53], v3, s[32:35], s57 offen
    buffer_store_dwordx2 v[54:55], v3, s[32:35], s58 offen
    s_branch K1_fin
    """)
    a.label("K1_rg_out")
    a.e(f"""
    s_cmp_lg_u32 s60, 0
    s_cbranch_scc1 K1_fin
    s_mov_b32 exec_lo, 0
    v_mov_b32 v64, v80
    v_mov_b32 v65, v81
    s_mov_b32 exec_lo, -1
    s_lshl_b32 s57, s40, 6
    v_add_u32 v12, s57, v1               ; token
    v_cvt_pk_bf16_f32 v36, v64, v64
    v_mul_f32 v33, {fbits(-LOG2E):#x}, v65
    v_and_b32 v36, 0xffff0000, v36
    v_exp_f32 v33, v33
    v_ashrrev_i32 v37, 31, v36
    v_or_b32 v37, 0x80000000, v37
    v_add_f32 v33, 1.0, v33
    v_xor_b32 v36, v36, v37
    v_rcp_f32 v33, v33
    v_and_b32 v36, 0xffff0000, v36
    v_sub_u32 v37, 2047, v12
    v_or_b32 v36, v36, v37
    v_lshlrev_b32 v12, 2, v12
    s_mov_b32 s57, {WS_KEY}
    s_mov_b32 s58, {WS_G}
    buffer_store_dword v36, v12, s[32:35], s57 offen
    buffer_store_dword v33, v12, s[32:35], s58 offen
    """)
    a.label("K1_fin")
    if PROF:
        a.e("s_waitcnt vmcnt(0)")
    stamp_flush(a, 0)
    a.label("K1_end")
    a.e("s_endpgm")
    return a, 200, 64


RING_R = 5
RING_SLOT = 16384
L_RING = 0
L_GATE = RING_R * RING_SLOT
L_UP = L_GATE + 32768 + 64
L_DOWN = L_GATE
XS_STRIDE = 528
L_XS = L_UP + 32768
L_WO = L_XS + 8 * XS_STRIDE
K2_FL = L_WO + 8192
K2_LDS = K2_FL + FLAG_BYTES

QA, QB = 8, 16
SA, SB = 24, 40
PA, PB = 56, 64
OA, OB = 72, 88
LA, LB = 104, 108
KB, VB = [112, 120], [128, 136]
ASUM, AIDX = 144, 148
VCUR, VNEXT, VPA, VPV, VM, VFL = 149, 150, 151, 152, 153, 154
K2_VGPRS = 160


def smf(L, P):
    return f"v_smfmac_f32_16x16x64_bf16 {vr(L,4)}, {vr(ASUM,4)}, {vr(P,8)}, v{AIDX}"


def attn_phase(a, S, P, mf, fill):
    for g in range(4):
        a.e(mf[g])
        for l in fill[g]:
            a.e(l)
        b = S + 4 * g
        for i in range(4):
            a.e(f"v_exp_f32 v{b+i}, v{b+i}")
        a.e(f"v_cvt_pk_bf16_f32 v{P+2*g}, v{b}, v{b+1}")
        if g == 3:
            a.e(mf[4])
            for l in fill[4]:
                a.e(l)
        a.e(f"v_cvt_pk_bf16_f32 v{P+2*g+1}, v{b+2}, v{b+3}")


def softmax_check(a, O, L, lab):
    a.e(f"v_add_f32 v{L}, v{L}, v{L+1}")
    a.e(f"v_maximum3_f32 v4, abs(v{O}), abs(v{O+1}), 0")
    for i in range(2, 16, 2):
        a.e(f"v_maximum3_f32 v4, abs(v{O+i}), abs(v{O+i+1}), v4")
    a.e(f"""
    v_mul_f32 v4, s51, v4
    v_maximum3_f32 v4, v4, v{L}, v{L}
    v_cmp_nle_f32 vcc, v4, s50
    v_cmp_nge_f32 s[52:53], v{L}, s51
    s_nop 0
    s_or_b64 vcc, vcc, s[52:53]
    s_cbranch_vccnz {lab}
    """)


def gen_k2():
    a = Asm()
    a.label("k2_attn_kernel")
    a.e("""
    s_cmp_ge_u32 s2, 256
    s_cbranch_scc1 K2_end
    """)
    stamp(a, 0, True, False)
    stamp(a, 1, False, True)
    if PROF:
        a.e(f"s_mov_b32 s{PS0+10}, s{PS0+2}")
    a.e("""
    s_load_dwordx2 s[16:17], s[0:1], 104
    v_lshrrev_b32 v2, 6, v0
    v_and_b32 v1, 63, v0
    s_lshr_b32 s40, s2, 3                ; tb
    v_readfirstlane_b32 s42, v2
    v_lshlrev_b32 v3, 4, v1              ; lane*16
    s_and_b32 s41, s2, 7                 ; cb
    s_cmp_eq_u32 s42, 1
    s_cbranch_scc1 K2_aux
    s_waitcnt lgkmcnt(0)
    """)
    srd(a, 32, 16, WS_BYTES)
    a.e("""
    s_cmp_lg_u32 s42, 0
    s_cbranch_scc1 K2_attn
    s_setprio 3
    """)
    loader_flag_regs(a, K2_FL)
    a.e(f"s_mov_b32 s46, {WS_KVF}")

    def issue():
        for g in range(4):
            a.e(f"s_add_u32 m0, s45, {g*4096}")
            a.e("s_nop 0")
            for q in range(4):
                a.e(f"buffer_load_dwordx4 v3, s[32:35], s46 offen offset:{q*1024} lds")
            a.e("s_add_u32 s46, s46, 0x1000")
    ring_loader(a, "K2l", 16, RING_R, RING_SLOT, 16, 1, K2_FL, issue, ring0=L_RING, init=flag_init_lines(K2_FL), sleep=8)
    a.e("s_branch K2_fin")
    a.label("K2_attn")
    a.e(f"""
    s_sub_u32 s60, s42, 2                ; hh
    s_lshl_b32 s45, s40, 6
    s_lshl_b32 s46, s41, 2
    s_add_u32 s45, s45, s46
    s_add_u32 s45, s45, s60
    s_lshl_b32 s45, s45, 11
    s_add_u32 s46, s45, 0x10000          ; tile B
    buffer_load_dwordx4 {vr(QA,4)}, v3, s[32:35], s45 offen
    buffer_load_dwordx4 {vr(QA+4,4)}, v3, s[32:35], s45 offen offset:1024
    buffer_load_dwordx4 {vr(QB,4)}, v3, s[32:35], s46 offen
    buffer_load_dwordx4 {vr(QB+4,4)}, v3, s[32:35], s46 offen offset:1024
    v_and_b32 v4, 1, v1
    v_mov_b32 v5, 0x4444
    v_mov_b32 v6, 0xeeee
    v_cmp_eq_u32 vcc, 1, v4
    v_and_b32 v4, 6, v1
    v_mov_b32 v7, 0x3f803f80
    v_cndmask_b32 v{AIDX}, v5, v6, vcc
    v_cmp_eq_u32 vcc, 0, v4
    v_cmp_eq_u32 s[50:51], 4, v4
    s_lshl_b32 s52, s60, 8
    v_cndmask_b32 v{ASUM}, 0, v7, vcc
    v_cndmask_b32 v{ASUM+1}, 0, v7, vcc
    v_cndmask_b32 v{ASUM+2}, 0, v7, s[50:51]
    v_cndmask_b32 v{ASUM+3}, 0, v7, s[50:51]
    s_add_u32 s52, s52, {K2_FL}
    v_lshl_add_u32 v{VPA}, v1, 2, s52
    v_mov_b32 v{VPV}, 1
    v_mov_b32 v{VFL}, {K2_FL+1024}
    v_add_u32 v{VCUR}, {L_RING}, v3
    v_add_u32 v{VNEXT}, {L_RING+RING_SLOT}, v3
    s_mov_b32 s48, {L_RING+RING_SLOT}
    """)
    for r in list(range(OA, OA + 40)) + list(range(PB, PB + 8)) + list(range(VB[1], VB[1] + 8)):
        a.e(f"v_mov_b32 v{r}, 0")
    a.e("""
    s_mov_b32 s49, 2
    s_barrier
    """)
    a.label("K2_first")
    a.e(f"""
    ds_read_b32 v4, v{VFL}
    s_waitcnt lgkmcnt(0)
    v_readfirstlane_b32 s47, v4
    s_nop 0
    s_cmp_lg_u32 s47, 0
    s_cbranch_scc0 K2_first
    ds_read_b128 {vr(KB[0],4)}, v{VCUR}
    ds_read_b128 {vr(KB[0]+4,4)}, v{VCUR} offset:1024
    ds_read_b128 {vr(KB[1],4)}, v{VCUR} offset:4096
    ds_read_b128 {vr(KB[1]+4,4)}, v{VCUR} offset:5120
    ds_read_b128 {vr(VB[0],4)}, v{VCUR} offset:2048
    ds_read_b128 {vr(VB[0]+4,4)}, v{VCUR} offset:3072
    s_waitcnt vmcnt(0) lgkmcnt(4)
    """)
    a.e(mfma32(SA, KB[0], QA, None))
    a.e(mfma32(SA, KB[0] + 4, QA + 4, SA))
    a.e("s_nop 9")
    a.e("s_waitcnt lgkmcnt(0)")
    stamp(a, 2)
    a.e(".p2align 6")
    a.label("K2_loop")
    for j in range(4):
        p, n = j % 2, (j + 1) % 2
        ka = (VCUR, (j + 2) * 4096) if j < 2 else (VNEXT, (j - 2) * 4096)
        va = (VCUR, (j + 1) * 4096 + 2048) if j < 3 else (VNEXT, 2048)
        attn_phase(a, SA, PA, [
            mfma32(SB, KB[p], QB, None),
            mfma32(SB, KB[p] + 4, QB + 4, SB),
            mfma32(OB, VB[n], PB, OB),
            mfma32(OB, VB[n] + 4, PB + 4, OB),
            smf(LB, PB)],
            [[f"ds_read_b128 {vr(KB[p],4)}, v{ka[0]} offset:{ka[1]}"],
             [f"ds_read_b128 {vr(KB[p]+4,4)}, v{ka[0]} offset:{ka[1]+1024}"],
             [f"ds_read_b128 {vr(VB[n],4)}, v{va[0]} offset:{va[1]}"],
             [f"ds_read_b128 {vr(VB[n]+4,4)}, v{va[0]} offset:{va[1]+1024}"],
             ["s_waitcnt lgkmcnt(4)"]])
        fill = [[], [], [], [], []]
        if j == 0:
            fill[0] = [f"ds_read_b32 v4, v{VFL}"]
            fill[1] = [f"s_add_u32 s48, s48, {RING_SLOT}"]
            fill[2] = [f"s_cmp_eq_u32 s48, {L_RING + RING_R*RING_SLOT}"]
            fill[3] = [f"s_cselect_b32 s48, {L_RING}, s48"]
        if j == 1:
            fill[0] = ["v_readfirstlane_b32 s47, v4"]
            fill[2] = ["s_cmp_ge_u32 s47, s49"]
            fill[3] = ["s_cbranch_scc0 K2_poll", "K2_ok:"]
        if j == 2:
            fill[0] = [f"ds_write_b32 v{VPA}, v{VPV}"]
            fill[1] = ["s_add_u32 s49, s49, 1"]
        if j == 3:
            fill[0] = [f"v_mov_b32 v{VCUR}, v{VNEXT}", f"v_add_u32 v{VNEXT}, s48, v3", f"v_add_u32 v{VPV}, 1, v{VPV}"]
            fill[3] = ["s_cmp_lt_u32 s49, 18"]
        attn_phase(a, SB, PB, [
            mfma32(SA, KB[n], QA, None),
            mfma32(SA, KB[n] + 4, QA + 4, SA),
            mfma32(OA, VB[p], PA, OA),
            mfma32(OA, VB[p] + 4, PA + 4, OA),
            smf(LA, PA)], fill)
    a.e("s_cbranch_scc1 K2_loop")
    a.e("s_waitcnt lgkmcnt(0)")
    stamp(a, 3)
    a.e("s_nop 0")
    a.e(mfma32(OB, VB[1], PB, OB))
    a.e(mfma32(OB, VB[1] + 4, PB + 4, OB))
    a.e(smf(LB, PB))
    a.e(f"""
    s_mov_b32 s50, 0x5f800000            ; 2^64
    s_mov_b32 s51, 0x1f800000            ; 2^-64
    s_add_u32 s45, s45, {WS_OF}
    s_add_u32 s46, s46, {WS_OF}
    s_nop 3
    """)
    softmax_check(a, OA, LA, "K2_fallback")
    softmax_check(a, OB, LB, "K2_fallback")
    a.label("K2_norm")
    for (O, L, P, so) in ((OA, LA, PA, 45), (OB, LB, PB, 46)):
        a.e(f"""
        v_rcp_f32 v6, v{L}
        s_nop 0
        """)
        for i in range(16):
            a.e(f"v_mul_f32 v{O+i}, v{O+i}, v6")
        for i in range(8):
            a.e(f"v_cvt_pk_bf16_f32 v{P+i}, v{O+2*i}, v{O+2*i+1}")
        a.e(f"""
        buffer_store_dwordx4 {vr(P,4)}, v3, s[32:35], s{so} offen
        buffer_store_dwordx4 {vr(P+4,4)}, v3, s[32:35], s{so} offen offset:1024
        """)
    a.label("K2_fin")
    if PROF:
        a.e("s_waitcnt vmcnt(0)")
    stamp_flush(a, 1)
    a.label("K2_end")
    a.e("s_endpgm")
    a.label("K2_poll")
    if PROF:
        a.e(f"s_add_u32 s{PS0+10}, s{PS0+10}, 1")
    a.e(f"""
    s_cmp_gt_u32 s49, 16
    s_cbranch_scc1 K2_ok
    ds_read_b32 v4, v{VFL}
    s_waitcnt lgkmcnt(0)
    v_readfirstlane_b32 s47, v4
    s_nop 0
    s_cmp_ge_u32 s47, s49
    s_cbranch_scc1 K2_ok
    s_branch K2_poll
    """)

    a.label("K2_fallback")
    for r in range(OA, OA + 40):
        a.e(f"v_mov_b32 v{r}, 0")
    MA, MB = VM, VFL
    a.e(f"""
    v_mov_b32 v{MA}, 0xff800000
    v_mov_b32 v{MB}, 0xff800000
    s_mov_b32 s49, 0
    s_mov_b32 s48, {WS_KVF}
    """)
    a.label("K2_fb_loop")
    a.e(f"""
    buffer_load_dwordx4 {vr(KB[0],4)}, v3, s[32:35], s48 offen
    buffer_load_dwordx4 {vr(KB[0]+4,4)}, v3, s[32:35], s48 offen offset:1024
    buffer_load_dwordx4 {vr(VB[0],4)}, v3, s[32:35], s48 offen offset:2048
    buffer_load_dwordx4 {vr(VB[0]+4,4)}, v3, s[32:35], s48 offen offset:3072
    s_add_u32 s48, s48, 0x1000
    s_waitcnt vmcnt(0)
    """)
    for (Q, O, L, M) in ((QA, OA, LA, MA), (QB, OB, LB, MB)):
        a.e(mfma32(SA, KB[0], Q, None))
        a.e(mfma32(SA, KB[0] + 4, Q + 4, SA))
        a.e("s_nop 15")
        a.e(f"v_max3_f32 v4, v{SA}, v{SA+1}, v{M}")
        for i in range(2, 16, 2):
            a.e(f"v_max3_f32 v4, v{SA+i}, v{SA+i+1}, v4")
        a.e(f"""
        v_mov_b32 v5, v4
        s_nop 1
        v_permlane32_swap_b32 v4, v5
        s_nop 1
        v_max_f32 v4, v4, v5
        v_sub_f32 v5, v{M}, v4
        v_exp_f32 v5, v5                     ; alpha
        v_mov_b32 v{M}, v4
        """)
        for i in range(16):
            a.e(f"v_sub_f32 v{SA+i}, v{SA+i}, v4")
        for i in range(16):
            a.e(f"v_exp_f32 v{SA+i}, v{SA+i}")
        for i in range(16):
            a.e(f"v_mul_f32 v{O+i}, v{O+i}, v5")
        for i in range(4):
            a.e(f"v_mul_f32 v{L+i}, v{L+i}, v5")
        for i in range(8):
            a.e(f"v_cvt_pk_bf16_f32 v{PA+i}, v{SA+2*i}, v{SA+2*i+1}")
        a.e("s_nop 1")
        a.e(mfma32(O, VB[0], PA, O))
        a.e(mfma32(O, VB[0] + 4, PA + 4, O))
        a.e(smf(L, PA))
        a.e("s_nop 15")
    a.e(f"""
    s_add_u32 s49, s49, 1
    s_cmp_lt_u32 s49, 64
    s_cbranch_scc1 K2_fb_loop
    v_add_f32 v{LA}, v{LA}, v{LA+1}
    v_add_f32 v{LB}, v{LB}, v{LB+1}
    s_branch K2_norm
    """)
    gen_k2_aux(a)
    return a, K2_VGPRS, 80


def gather64(a, lab, base, voff, soff, stride):
    a.e("s_mov_b32 s49, 0")
    a.label(lab)
    for q in range(16):
        a.e(f"buffer_load_dwordx4 {vr(base+4*q,4)}, v{voff}, s[32:35], s{soff} offen offset:{q*stride} sc1")
    a.e("s_waitcnt vmcnt(0)")
    a.e(f"v_max3_u32 v14, v{base}, v{base+1}, v{base+2}")
    a.e(f"v_max3_u32 v15, v{base+3}, v{base+4}, v{base+5}")
    for i in range(6, 62, 4):
        a.e(f"v_max3_u32 v14, v{base+i}, v{base+i+1}, v14")
        a.e(f"v_max3_u32 v15, v{base+i+2}, v{base+i+3}, v15")
    a.e(f"""
    v_max3_u32 v14, v{base+62}, v{base+63}, v14
    v_max_u32 v14, v14, v15
    v_cmp_eq_u32 vcc, -1, v14
    s_add_u32 s49, s49, 1
    s_cmp_ge_u32 s49, 0x4000
    s_cbranch_scc1 {lab}_done
    s_cbranch_vccz {lab}_done
    s_sleep 8
    s_branch {lab}
    """)
    a.label(f"{lab}_done")


def gen_k2_aux(a):
    KEY = 16
    a.label("K2_aux")
    a.e("""
    s_setprio 2
    s_load_dwordx2 s[4:5], s[0:1], 0     ; x
    s_load_dwordx2 s[6:7], s[0:1], 32    ; wo
    s_load_dwordx4 s[8:11], s[0:1], 56
    s_load_dwordx2 s[12:13], s[0:1], 72  ; w_down
    s_barrier
    s_waitcnt lgkmcnt(0)
    """)
    srd(a, 32, 16, WS_BYTES)
    a.e(f"s_mov_b32 s50, {WS_KEY}")
    a.e(f"s_mov_b32 s51, {WS_KEY+4096}")
    for j in range(8):
        a.e(f"buffer_load_dwordx4 {vr(KEY+4*j,4)}, v3, s[32:35], s{50+j//4} offen offset:{(j%4)*1024}")
    srd(a, 20, 4, 2048 * 1024 * 2)
    srd(a, 24, 6, 1024 * 1024 * 2)
    srd(a, 56, 8, 1024 * 3584 * 2)
    srd(a, 60, 10, 1024 * 3584 * 2)
    srd(a, 64, 12, 1024 * 3584 * 2)
    a.e(f"""
    v_lshrrev_b32 v4, 2, v1
    v_lshlrev_b32 v4, 11, v4
    v_and_b32 v5, 3, v1
    v_lshl_add_u32 v4, v5, 4, v4
    s_lshl_b32 s43, s41, 2
    s_and_b32 s44, s40, 3
    s_add_u32 s43, s43, s44              ; ct
    s_lshr_b32 s44, s40, 2               ; krange
    s_lshl_b32 s45, s44, 18              ; krange*128*2048
    s_lshl_b32 s46, s43, 6
    s_add_u32 s45, s45, s46
    s_mov_b32 m0, {L_WO}
    s_mov_b32 s49, 0
    """)
    a.label("K2_wo_dma")
    a.e("""
    buffer_load_dwordx4 v4, s[24:27], s45 offen lds
    s_add_u32 m0, m0, 1024
    s_add_u32 s45, s45, 0x8000
    s_add_u32 s49, s49, 1
    s_cmp_lt_u32 s49, 8
    s_cbranch_scc1 K2_wo_dma
    v_lshrrev_b32 v6, 4, v1
    v_and_b32 v6, 1, v6                  ; g&1
    v_lshrrev_b32 v7, 5, v1              ; hf
    v_bfe_u32 v8, v1, 2, 2               ; r
    v_and_b32 v9, 3, v1                  ; c
    s_mov_b32 s70, 0
    s_cmp_ge_u32 s40, 28
    s_cbranch_scc1 K2_aux_wo
    s_mov_b32 s70, 1
    """)
    a.e(f"""
    s_mul_i32 s46, s41, 28
    s_add_u32 s46, s46, s40              ; unit
    s_and_b32 s74, s46, 3                ; kq
    v_lshrrev_b32 v4, 3, v1
    v_mul_u32_u24 v4, 7168, v4
    v_and_b32 v5, 7, v1
    v_lshl_add_u32 v4, v5, 4, v4
    s_lshr_b32 s47, s46, 2
    s_lshl_b32 s47, s47, 7
    s_mul_i32 s48, s74, {256*7168}
    s_add_u32 s47, s47, s48
    s_mov_b32 s48, 0
    s_lshl_b32 s75, s74, 9               ; kq*512
    v_mov_b32 v10, 0
    s_mov_b32 s49, 0
    s_mov_b32 s52, {L_XS}
    s_waitcnt vmcnt(8)
    """)
    stamp(a, 2)
    a.label("K2_top")
    for i in range(4):
        a.e(f"""
        s_add_u32 m0, s48, {L_GATE}
        s_nop 0
        buffer_load_dwordx4 v4, s[56:59], s47 offen lds
        s_add_u32 m0, s48, {L_UP}
        s_add_u32 s48, s48, 1024
        buffer_load_dwordx4 v4, s[60:63], s47 offen lds
        s_add_u32 s47, s47, {8*7168}
        """)
    a.e(f"v_max3_u32 v11, v{KEY}, v{KEY+1}, v{KEY+2}")
    a.e(f"v_max3_u32 v12, v{KEY+3}, v{KEY+4}, v{KEY+5}")
    for i in range(6, 30, 4):
        a.e(f"v_max3_u32 v11, v{KEY+i}, v{KEY+i+1}, v11")
        a.e(f"v_max3_u32 v12, v{KEY+i+2}, v{KEY+i+3}, v12")
    a.e(f"v_max3_u32 v11, v{KEY+30}, v{KEY+31}, v11")
    a.e("v_max_u32 v11, v11, v12")
    for ctl in ("row_shr:1", "row_shr:2", "row_shr:4", "row_shr:8", "row_bcast:15 row_mask:0xa", "row_bcast:31 row_mask:0xc"):
        a.e("s_nop 1")
        a.e(f"v_max_u32_dpp v11, v11, v11 {ctl}")
    a.e(f"""
    s_nop 1
    v_readlane_b32 s53, v11, 63
    s_lshl_b32 exec_lo, 1, s49
    s_lshl_b32 exec_hi, 1, s49
    s_and_b32 s54, s53, 0x7ff
    v_mov_b32 v10, s53
    s_mov_b32 exec_lo, -1
    s_mov_b32 exec_hi, 0
    s_sub_u32 s54, 2047, s54             ; token
    s_lshl_b32 s55, s54, 11
    s_mov_b32 m0, s52
    s_add_u32 s55, s55, s75
    buffer_load_dwordx4 v3, s[20:23], s55 offen lds
    s_lshr_b32 s68, s54, 8
    s_add_u32 s52, s52, {XS_STRIDE}
    s_lshl_b32 s68, s68, 2
    s_and_b32 s69, s54, 3
    s_add_u32 s68, s68, s69
    s_bfe_u32 s69, s54, 0x60002
    s_lshl_b64 exec, 1, s69
    s_set_gpr_idx_on s68, 0x8
    v_mov_b32 v{KEY}, 0
    s_set_gpr_idx_off
    s_mov_b64 exec, -1
    s_add_u32 s49, s49, 1
    s_cmp_lt_u32 s49, 8
    s_cbranch_scc1 K2_top
    """)
    stamp(a, 3)
    a.e(f"""
    s_cmp_lg_u32 s2, 0
    s_cbranch_scc1 K2_nosel
    s_mov_b64 exec, 0xff
    v_lshlrev_b32 v4, 2, v1
    s_mov_b32 s47, {WS_SEL}
    buffer_store_dword v10, v4, s[32:35], s47 offen
    s_mov_b64 exec, -1
    """)
    a.label("K2_nosel")
    a.e(f"""
    s_mov_b32 s71, {L_GATE}
    v_and_b32 v11, 0xffff0000, v10
    v_ashrrev_i32 v12, 31, v11
    v_not_b32 v12, v12
    v_or_b32 v12, 0x80000000, v12
    v_xor_b32 v11, v11, v12
    v_and_b32 v11, 0xffff0000, v11       ; float r
    v_mul_f32 v11, {fbits(-LOG2E):#x}, v11
    v_exp_f32 v11, v11
    v_lshl_add_u32 v12, v7, 3, v8
    v_add_f32 v11, 1.0, v11
    v_rcp_f32 v11, v11
    v_lshlrev_b32 v12, 7, v12
    v_lshl_add_u32 v12, v9, 3, v12
    v_mul_u32_u24 v13, {L_UP-L_GATE}, v6
    v_add3_u32 v12, v12, v13, s71
    v_and_b32 v13, 7, v1
    v_mul_u32_u24 v13, {XS_STRIDE}, v13
    v_lshl_add_u32 v13, v7, 4, v13
    v_add_u32 v13, {L_XS}, v13
    """)
    ACC = 16
    for i in range(64):
        a.e(f"v_mov_b32 v{ACC+i}, 0")
    a.e("""
    s_mov_b32 s49, 0
    s_waitcnt vmcnt(0)
    """)
    stamp(a, 4)
    a.label("K2_up")
    a.e("ds_read_b128 v[80:83], v13")
    for j in range(4):
        a.e(f"""
        ds_read_b64_tr_b16 {vr(84+4*j,2)}, v12 offset:{j*32}
        ds_read_b64_tr_b16 {vr(86+4*j,2)}, v12 offset:{j*32+512}
        """)
    a.e("""
    v_add_u32 v12, 2048, v12
    v_add_u32 v13, 32, v13
    s_add_u32 s49, s49, 1
    s_cmp_lt_u32 s49, 16
    """)
    for j in range(4):
        a.e(f"s_waitcnt lgkmcnt({6-2*j})")
        a.e(mfma32(ACC + 16 * j, 84 + 4 * j, 80, ACC + 16 * j))
    a.e("s_cbranch_scc1 K2_up")
    a.e(f"""
    v_and_b32 v13, 7, v1
    v_lshl_add_u32 v13, v7, 3, v13
    v_lshlrev_b32 v13, 4, v13            ; ((l&7) + 8hf)*16
    s_andn2_b32 s48, s46, 3
    s_lshl_b32 s48, s48, 12
    s_lshl_b32 s47, s74, 10
    s_add_u32 s48, s48, s47
    s_add_u32 s48, s48, {WS_PX}
    s_mov_b32 exec_lo, 0xff
    s_mov_b32 exec_hi, 0xff
    s_nop 2
    """)
    for j in range(4):
        for q in range(4):
            a.e(f"buffer_store_dwordx4 {vr(ACC+16*j+4*q,4)}, v13, s[32:35], s48 offen offset:{q*256} sc1")
        if j < 3:
            a.e("s_add_u32 s48, s48, 0x1000")
    a.e(f"""
    s_mov_b64 exec, -1
    v_lshrrev_b32 v4, 3, v1
    v_lshlrev_b32 v4, 11, v4
    v_and_b32 v5, 7, v1
    v_lshl_add_u32 v4, v5, 4, v4
    s_lshr_b32 s72, s46, 4               ; ks
    s_and_b32 s73, s46, 15               ; cgp
    s_lshl_b32 s47, s72, 19              ; ks*256*2048
    s_lshl_b32 s48, s73, 7
    s_add_u32 s47, s47, s48
    s_mov_b32 m0, {L_DOWN}
    s_mov_b32 s49, 0
    """)
    a.label("K2_dn_dma")
    a.e("""
    buffer_load_dwordx4 v4, s[64:67], s47 offen lds
    s_add_u32 m0, m0, 1024
    s_add_u32 s47, s47, 0x4000
    s_add_u32 s49, s49, 1
    s_cmp_lt_u32 s49, 32
    s_cbranch_scc1 K2_dn_dma
    """)
    a.label("K2_aux_wo")
    a.e(f"""
    v_lshl_add_u32 v12, v7, 2, v8
    v_lshlrev_b32 v12, 6, v12
    v_lshl_add_u32 v12, v6, 5, v12
    v_lshl_add_u32 v12, v9, 3, v12
    v_add_u32 v12, {L_WO}, v12
    s_lshl_b32 s47, s43, 16              ; ct*65536
    s_lshl_b32 s48, s44, 13              ; krange*8*1024
    s_add_u32 s47, s47, s48
    s_add_u32 s47, s47, {WS_WOF}
    s_add_u32 s48, s47, 4096
    s_cmp_eq_u32 s70, 1
    s_cbranch_scc1 K2_wo_landed
    s_waitcnt vmcnt(0)
    """)
    a.label("K2_wo_landed")
    for ks in range(8):
        a.e(f"""
        ds_read_b64_tr_b16 {vr(80+4*ks,2)}, v12 offset:{ks*1024}
        ds_read_b64_tr_b16 {vr(82+4*ks,2)}, v12 offset:{ks*1024+512}
        """)
        if ks == 6:
            a.e("s_waitcnt lgkmcnt(6)")
    a.e("s_waitcnt lgkmcnt(0)")
    for ks in range(8):
        a.e(f"buffer_store_dwordx4 {vr(80+4*ks,4)}, v3, s[32:35], s{47+ks//4} offen offset:{(ks%4)*1024}")
    a.e(f"""
    s_cmp_eq_u32 s70, 0
    s_cbranch_scc1 K2_fin
    s_lshl_b32 s48, s46, 12
    s_add_u32 s48, s48, {WS_PX}
    """)
    gather64(a, "K2_px", 16, 13, 48, 256)
    stamp(a, 5)
    for i in range(16):
        a.e(f"v_add_f32 v{16+i}, v{16+i}, v{32+i}")
    for i in range(16):
        a.e(f"v_add_f32 v{48+i}, v{48+i}, v{64+i}")
    for i in range(16):
        a.e(f"v_add_f32 v{16+i}, v{16+i}, v{48+i}")
    G = 16
    for i in range(8):
        a.e(f"v_mul_f32 v{64+i}, {fbits(-LOG2E):#x}, v{G+i}")
    for i in range(8):
        a.e(f"v_exp_f32 v{64+i}, v{64+i}")
    for i in range(8):
        a.e(f"v_add_f32 v{64+i}, 1.0, v{64+i}")
    for i in range(8):
        a.e(f"v_rcp_f32 v{64+i}, v{64+i}")
    for i in range(8):
        a.e(f"v_mul_f32 v{G+i}, v{G+i}, v{G+8+i}")
    for i in range(8):
        a.e(f"v_mul_f32 v{64+i}, v{64+i}, v11")
    for i in range(8):
        a.e(f"v_mul_f32 v{G+i}, v{G+i}, v{64+i}")
    for i in range(4):
        a.e(f"v_cvt_pk_bf16_f32 v{80+i}, v{G+2*i}, v{G+2*i+1}")
    for i in range(4):
        a.e(f"v_min_u32 v{80+i}, -2, v{80+i}")
    a.e(f"""
    s_lshl_b32 s48, s46, 8
    s_add_u32 s48, s48, {WS_HX}
    s_mov_b32 exec_lo, 0xff
    s_mov_b32 exec_hi, 0xff
    buffer_store_dwordx4 v[80:83], v13, s[32:35], s48 offen sc1
    s_mov_b64 exec, -1
    s_lshl_b32 s48, s72, 12
    s_add_u32 s48, s48, {WS_HX}
    """)
    HF = 16
    gather64(a, "K2_hx", HF, 13, 48, 256)
    a.e(f"""
    v_lshl_add_u32 v12, v7, 2, v8
    v_lshlrev_b32 v12, 7, v12
    v_lshl_add_u32 v12, v6, 5, v12
    v_lshl_add_u32 v12, v9, 3, v12
    v_add_u32 v12, {L_DOWN}, v12
    """)
    D0, D1 = 96, 112
    for q2 in range(8):
        for qq in range(2):
            q = 2 * q2 + qq
            b = 80 + 8 * qq
            a.e(f"""
            ds_read_b64_tr_b16 {vr(b,2)}, v12 offset:{q*2048}
            ds_read_b64_tr_b16 {vr(b+2,2)}, v12 offset:{q*2048+1024}
            ds_read_b64_tr_b16 {vr(b+4,2)}, v12 offset:{q*2048+64}
            ds_read_b64_tr_b16 {vr(b+6,2)}, v12 offset:{q*2048+1024+64}
            """)
        for qq in range(2):
            q = 2 * q2 + qq
            b = 80 + 8 * qq
            a.e(f"s_waitcnt lgkmcnt({4-4*qq})")
            a.e(mfma32(D0, HF + 4 * q, b, None if q == 0 else D0))
            a.e(mfma32(D1, HF + 4 * q, b + 4, None if q == 0 else D1))
    a.e(f"""
    s_mul_i32 s47, s73, {2*7168}
    s_lshr_b32 s48, s72, 1
    s_lshl_b32 s48, s48, 10
    s_add_u32 s47, s47, s48
    s_and_b32 s48, s72, 1
    s_lshl_b32 s48, s48, 3
    s_add_u32 s47, s47, s48
    s_add_u32 s47, s47, {WS_YF}
    s_add_u32 s48, s47, 7168
    s_nop 3
    v_cvt_pk_bf16_f32 v80, v{D0}, v{D0+1}
    v_cvt_pk_bf16_f32 v81, v{D0+2}, v{D0+3}
    v_cvt_pk_bf16_f32 v82, v{D1}, v{D1+1}
    v_cvt_pk_bf16_f32 v83, v{D1+2}, v{D1+3}
    buffer_store_dwordx2 v[80:81], v3, s[32:35], s47 offen
    buffer_store_dwordx2 v[82:83], v3, s[32:35], s48 offen
    s_branch K2_fin
    """)


DBG3 = os.environ.get("DBG3", "")
K3_SLOT = 24576
K3_NSLOT = int(os.environ.get("NS3", "6"))
K3_FL = K3_SLOT * K3_NSLOT
K3_LDS = K3_FL + FLAG_BYTES


def gen_k3():
    a = Asm()
    a.label("k3_out_kernel")
    a.e("""
    s_cmp_ge_u32 s2, 256
    s_cbranch_scc1 K3_end
    """)
    stamp(a, 0, True, False)
    stamp(a, 1, False, True)
    if PROF:
        a.e(f"s_mov_b32 s{PS0+10}, s{PS0+2}")
    a.e("""
    s_load_dwordx2 s[16:17], s[0:1], 104
    s_load_dwordx2 s[4:5], s[0:1], 0
    s_load_dwordx2 s[6:7], s[0:1], 88
    """)
    ids_tb_cb(a, int(os.environ.get("ROT3", "0")))
    a.e("""
    s_cmp_ge_u32 s42, 2
    s_cbranch_scc1 K3_compute
    """)
    a.e(f"""
    s_lshl_b32 s53, s40, 17
    s_add_u32 s53, s53, {WS_OF}
    s_lshl_b32 s54, s41, 18
    s_add_u32 s54, s54, {WS_WOF}
    s_add_u32 s55, s54, 0x10000
    s_cmp_eq_u32 s42, 0
    s_cselect_b32 s61, s53, s55
    s_add_u32 s62, s61, 0x10000
    s_add_u32 s55, s54, 0x30000
    s_cmp_eq_u32 s42, 0
    s_cselect_b32 s63, s54, s55
    s_mul_i32 s50, s42, 0x3000
    s_waitcnt lgkmcnt(0)
    """)
    srd(a, 32, 16, WS_BYTES)
    srd(a, 36, 16, 0 if DBG3 == "noload" else WS_BYTES)

    def issue():
        a.e("s_lshl_b32 s46, s59, 12")
        a.e("s_add_u32 s51, s45, s50")
        for g in range(3):
            a.e(f"s_add_u32 m0, s51, {g*4096}")
            a.e(f"s_add_u32 s47, s46, s{61+g}")
            for q in range(4):
                a.e(f"buffer_load_dwordx4 v3, s[36:39], s47 offen offset:{q*1024} lds")
        a.e("""
        s_add_u32 s59, s59, 1
        s_and_b32 s59, s59, 15
        """)
    init = ["s_cmp_lg_u32 s42, 0", "s_cbranch_scc1 K3_initbar"] + flag_init_lines(K3_FL)[:-1] + ["K3_initbar:", "s_barrier"]
    bar_loader(a, "K3l", 12, K3_NSLOT, K3_SLOT, issue)
    a.e("s_branch K3_fin")

    a.label("K3_compute")
    SETS = [dict(X0=32, X1=48, W=64), dict(X0=80, X1=96, W=112)]
    ACC = [128, 144]
    XR = [160, 168]
    YA = [176, 192]
    YF_ = 208
    SELB = [236, 240]
    VPA, VPV, VFL = 16, 17, 18
    a.e(f"""
    s_sub_u32 s60, s42, 2                ; ctl
    v_lshrrev_b32 v5, 5, v1              ; hf
    v_lshlrev_b32 v19, 4, v5
    s_mov_b32 s53, {WS_SEL}
    s_waitcnt lgkmcnt(0)
    """)
    srd(a, 32, 16, WS_BYTES)
    a.e("buffer_load_dwordx4 v[24:27], v19, s[32:35], s53 offen")
    srd(a, 20, 4, 2048 * 1024 * 2)
    srd(a, 24, 6, 2048 * 1024 * 2)
    a.e(f"""
    s_lshl_b32 s55, s60, 12
    s_add_u32 s55, s55, 0x2000
    v_add_u32 v9, s55, v3
    v_and_b32 v10, 31, v1
    s_lshl_b32 s55, s40, 6
    v_add_u32 v10, s55, v10
    s_lshl_b32 s55, s41, 2
    s_add_u32 s55, s55, s60              ; ct
    s_lshl_b32 s72, s55, 6
    s_add_u32 s73, s72, 0x10000
    v_lshlrev_b32 v6, 11, v10
    v_lshl_add_u32 v6, v5, 4, v6
    v_lshlrev_b32 v7, 2, v10
    s_lshl_b32 s53, s60, 8
    s_add_u32 s53, s53, {K3_FL}
    v_lshl_add_u32 v{VPA}, v1, 2, s53
    v_mov_b32 v{VPV}, 0
    v_mov_b32 v{VFL}, {K3_FL+1024}
    """)
    for i in range(80, 160):
        a.e(f"v_mov_b32 v{i}, 0")
    a.e(f"""
    v_sub_u32 v11, 2047, v10
    v_subrev_u32 v19, 32, v11
    v_mov_b32 v20, 0x3f80
    v_mov_b32 v21, 0x3f800000
    s_waitcnt vmcnt(0)
    """)
    for i in range(4):
        a.e(f"v_and_b32 v{24+i}, 0x7ff, v{24+i}")
    for t in range(2):
        tv = [11, 19][t]
        a.e(f"""
        v_cmp_eq_u32 s[64:65], v24, v{tv}
        v_cmp_eq_u32 s[66:67], v25, v{tv}
        v_cmp_eq_u32 s[68:69], v26, v{tv}
        v_cmp_eq_u32 s[70:71], v27, v{tv}
        v_cndmask_b32 v{SELB[t]}, 0, v20, s[64:65]
        v_cndmask_b32 v22, 0, v21, s[66:67]
        v_cndmask_b32 v{SELB[t]+1}, 0, v20, s[68:69]
        v_cndmask_b32 v23, 0, v21, s[70:71]
        v_or_b32 v{SELB[t]}, v{SELB[t]}, v22
        v_or_b32 v{SELB[t]+1}, v{SELB[t]+1}, v23
        v_mov_b32 v{SELB[t]+2}, v{SELB[t]}
        v_mov_b32 v{SELB[t]+3}, v{SELB[t]+1}
        s_or_b64 s[64:65], s[64:65], s[66:67]
        s_or_b64 s[68:69], s[68:69], s[70:71]
        s_or_b64 s[64:65], s[64:65], s[68:69]
        s_or_b32 s{74+t}, s64, s65
        """)
    a.e(f"""
    s_or_b32 s76, s74, s75
    s_cmp_eq_u32 s76, 0
    s_cbranch_scc1 K3_nosel
    s_mul_i32 s53, s55, 7168
    s_add_u32 s53, s53, {WS_YF}
    s_add_u32 s54, s53, 4096
    """)
    for k in range(7):
        a.e(f"buffer_load_dwordx4 {vr(YF_+4*k,4)}, v3, s[32:35], s{53+k//4} offen offset:{(k%4)*1024}")
    a.label("K3_nosel")
    a.e(f"""
    s_mov_b32 s53, {WS_G}
    buffer_load_dwordx4 {vr(XR[0],4)}, v6, s[20:23], s72 offen
    buffer_load_dwordx4 {vr(XR[0]+4,4)}, v6, s[20:23], s72 offen offset:32
    buffer_load_dwordx4 {vr(XR[1],4)}, v6, s[20:23], s73 offen
    buffer_load_dwordx4 {vr(XR[1]+4,4)}, v6, s[20:23], s73 offen offset:32
    buffer_load_dword v14, v7, s[32:35], s53 offen
    buffer_load_dword v15, v7, s[32:35], s53 offen offset:128
    """)
    a.e("""
    s_mov_b32 s44, 0
    s_mov_b32 s49, 0
    s_mov_b32 s47, 0
    """)
    stamp(a, 2)
    a.e(f"""
    v_mov_b32 v12, v3
    v_mov_b32 v13, v9
    v_mov_b32 v{VPV}, 1
    """)
    a.label("K3_loop")
    for par in range(2):
        cur, prev = SETS[par], SETS[1 - par]
        a.e("s_barrier")
        trace(a, 49)
        if par == 0 and PROF:
            a.e("s_cmp_lg_u32 s49, 0\ns_cbranch_scc1 K3_nostamp")
            stamp(a, 3)
            a.label("K3_nostamp")
        mms = []
        for i in range(4):
            mms.append(mfma32(ACC[0], prev["W"] + 4 * i, prev["X0"] + 4 * i, ACC[0]))
            mms.append(mfma32(ACC[1], prev["W"] + 4 * i, prev["X1"] + 4 * i, ACC[1]))
        if DBG3 in ("nocomp", "nomfma"):
            mms = ["s_nop 0"] * 8
        for i in range(4):
            a.e(mms[i])
            if DBG3 in ("nocomp", "noread"):
                continue
            a.e(f"""
            ds_read_b128 {vr(cur['X0']+4*i,4)}, v12 offset:{i*1024}
            ds_read_b128 {vr(cur['W']+4*i,4)}, v13 offset:{i*1024}
            ds_read_b128 {vr(cur['X1']+4*i,4)}, v12 offset:{4096+i*1024}
            """)
        a.e(mms[4])
        a.e(mms[5])
        a.e(f"""
        s_add_u32 s44, s44, {K3_SLOT}
        s_cmp_eq_u32 s44, {K3_SLOT*K3_NSLOT}
        s_cselect_b32 s44, 0, s44
        """)
        a.e(mms[6])
        a.e(f"""
        v_add_u32 v12, s44, v3
        v_add_u32 v13, s44, v9
        v_add_u32 v{VPV}, 1, v{VPV}
        """)
        a.e(mms[7])
        a.e("""
        s_add_u32 s49, s49, 1
        s_waitcnt lgkmcnt(0)
        """)
    a.e("""
    s_cmp_lt_u32 s49, 16
    s_cbranch_scc1 K3_loop
    """)
    for i in range(4):
        a.e(mfma32(ACC[0], SETS[1]["W"] + 4 * i, SETS[1]["X0"] + 4 * i, ACC[0]))
        a.e(mfma32(ACC[1], SETS[1]["W"] + 4 * i, SETS[1]["X1"] + 4 * i, ACC[1]))
    stamp(a, 4)
    a.e("s_waitcnt vmcnt(0)")
    B = [32, 48]
    for t in range(2):
        for i in range(8):
            a.e(f"""
            v_lshlrev_b32 v{B[t]+2*i}, 16, v{XR[t]+i}
            v_and_b32 v{B[t]+1+2*i}, 0xffff0000, v{XR[t]+i}
            """)
    a.e("""
    s_cmp_lg_u32 s76, 0
    s_cbranch_scc1 K3_y
    """)
    a.label("K3_yback")
    for t in range(2):
        g_ = 14 + t
        a.e(f"v_sub_f32 v8, 1.0, v{g_}")
        for i in range(4):
            a.e(f"v_permlane32_swap_b32 v{ACC[t]+i}, v{ACC[t]+4+i}")
        for i in range(4):
            a.e(f"v_permlane32_swap_b32 v{ACC[t]+8+i}, v{ACC[t]+12+i}")
        for i in range(16):
            a.e(f"v_mul_f32 v{B[t]+i}, v{B[t]+i}, v8")
        for i in range(16):
            a.e(f"v_fmac_f32 v{B[t]+i}, v{ACC[t]+i}, v{g_}")
        for i in range(8):
            a.e(f"v_cvt_pk_bf16_f32 v{64+8*t+i}, v{B[t]+2*i}, v{B[t]+1+2*i}")
        a.e(f"""
        buffer_store_dwordx4 {vr(64+8*t,4)}, v6, s[24:27], s{72+t} offen
        buffer_store_dwordx4 {vr(68+8*t,4)}, v6, s[24:27], s{72+t} offen offset:32
        """)
    a.label("K3_fin")
    if PROF:
        a.e("s_waitcnt vmcnt(0)")
    stamp_flush(a, 2)
    a.label("K3_end")
    a.e("s_endpgm")
    a.label("K3_y")
    for k in range(7):
        for t in range(2):
            a.e(mfma32(YA[t], YF_ + 4 * k, SELB[t], None if k == 0 else YA[t]))
    a.e("s_nop 15")
    for t in range(2):
        for i in range(4):
            a.e(f"v_permlane32_swap_b32 v{YA[t]+i}, v{YA[t]+4+i}")
        for i in range(4):
            a.e(f"v_permlane32_swap_b32 v{YA[t]+8+i}, v{YA[t]+12+i}")
        a.e(f"""
        s_mov_b32 exec_lo, s{74+t}
        s_mov_b32 exec_hi, s{74+t}
        """)
        for i in range(16):
            a.e(f"v_add_f32 v{B[t]+i}, v{B[t]+i}, v{YA[t]+i}")
        a.e("s_mov_b64 exec, -1")
    a.e("s_branch K3_yback")
    return a, 244, 80


def kd(name, vgprs, sgprs):
    acc = (vgprs + 3) // 4 * 4
    return f""".p2align 6
.amdhsa_kernel {name}
  .amdhsa_next_free_vgpr {vgprs}
  .amdhsa_next_free_sgpr {sgprs}
  .amdhsa_accum_offset {acc}
  .amdhsa_group_segment_fixed_size 0
  .amdhsa_kernarg_size 112
  .amdhsa_user_sgpr_count 2
  .amdhsa_user_sgpr_kernarg_segment_ptr 1
  .amdhsa_system_sgpr_workgroup_id_x 1
  .amdhsa_float_denorm_mode_32 3
.end_amdhsa_kernel
"""


def main(out):
    ref = open(f"cdna_kernels/{NAME}.s.ref").read().split("\n")
    head = [l for l in ref if l.startswith(";") and "@launch" not in l and "Override" not in l and "grid=ceil" not in l]
    ks = [("k1_proj_kernel", gen_k1, 384, K1_LDS), ("k2_attn_kernel", gen_k2, 384, K2_LDS), ("k3_out_kernel", gen_k3, 384, K3_LDS)]
    txt = "\n".join(head) + "\n"
    for n, _, thr, lds in ks:
        txt += f"; @launch kernel={n} grid=(256,1,1) block=({thr},1,1) lds={lds}\n"
    txt += '.amdgcn_target "amdgcn-amd-amdhsa--gfx950"\n.text\n'
    kds = ""
    bad = 0
    for n, g, thr, lds in ks:
        a, vg, sg = g()
        errs = check_kernel(a.lines, n)
        for e in errs:
            print("HAZARD", e)
            bad += 1
        txt += f".globl {n}\n.p2align 8\n.type {n},@function\n" + a.text()
        kds += kd(n, 256 if PROF >= 2 else vg, 102 if PROF else sg)
    txt += '.section .rodata,"a"\n' + kds
    open(out, "w").write(txt)
    print("wrote", out, "hazards:", bad, "K2 lds", K2_LDS)


if __name__ == "__main__":
    main(sys.argv[1] if len(sys.argv) > 1 else f"cdna_kernels/{NAME}.s")
```

```python
import math
import struct
import sys
import os

sys.path.insert(0, os.path.dirname(os.path.abspath(__file__)))
from asmlib import Asm, vr, sr, check_kernel

NAME = "gated_mix__grouped_kv_mqa__moe_arch_mod__prompt"

WS_QF = 0x000000
WS_OF = 0x400000
WS_WOF = 0x800000
WS_KVF = 0xA00000
WS_KEY = 0xA50000
WS_G = 0xA52000
WS_CNT = 0xA54000
WS_HX = 0xA58000
WS_YF = 0xA70000
WS_PX = 0xB00000
WS_BYTES = 0xC00000
ROT = int(os.environ.get("ROT", "2"))


def fbits(x):
    return struct.unpack("<I", struct.pack("<f", x))[0]


LOG2E = math.log2(math.e)
QSCALE = LOG2E / math.sqrt(32.0)


PROF = int(os.environ.get("PROF", "0"))
WS_PROF = 0xC00000
if PROF:
    WS_BYTES = 0xF00000
PS0 = 84


def stamp(a, i, real=False, wait=True):
    if PROF:
        a.e(f"{'s_memrealtime' if real else 's_memtime'} s[{PS0+2*i}:{PS0+2*i+1}]")
        if wait:
            a.e("s_waitcnt lgkmcnt(0)")


def stamp_flush(a, kidx, srd_s=32, wave_s=42):
    if PROF:
        a.e(f"""
        s_memtime s[{PS0+12}:{PS0+13}]
        s_memrealtime s[{PS0+14}:{PS0+15}]
        s_waitcnt lgkmcnt(0)
        """)
        if PROF >= 2:
            a.e(f"""
            s_mov_b64 exec, -1
            s_lshl_b32 s82, s2, 11
            s_lshl_b32 s83, s{wave_s}, 8
            s_add_u32 s82, s82, s83
            s_add_u32 s82, s82, {WS_PROF + 0x100000 + kidx*0x80000}
            v_mbcnt_lo_u32_b32 v0, -1, 0
            v_mbcnt_hi_u32_b32 v0, -1, v0
            v_lshlrev_b32 v0, 2, v0
            buffer_store_dword v{TRV}, v0, s[{srd_s}:{srd_s+3}], s82 offen
            """)
        a.e(f"""
        s_mov_b64 exec, 1
        s_lshl_b32 s82, s2, 10
        s_lshl_b32 s83, s{wave_s}, 6
        s_add_u32 s82, s82, s83
        s_add_u32 s82, s82, {WS_PROF + kidx*0x40000}
        v_mov_b32 v0, 0
        """)
        for i in range(8):
            a.e(f"""
            v_mov_b32 v1, s{PS0+2*i}
            buffer_store_dword v1, v0, s[{srd_s}:{srd_s+3}], s82 offen offset:{4*i}
            """)
        a.e("""
        s_getreg_b32 s83, hwreg(HW_REG_HW_ID)
        v_mov_b32 v1, s83
        """)
        a.e(f"buffer_store_dword v1, v0, s[{srd_s}:{srd_s+3}], s82 offen offset:32")
        a.e("""
        s_getreg_b32 s83, hwreg(HW_REG_XCC_ID)
        v_mov_b32 v1, s83
        """)
        a.e(f"buffer_store_dword v1, v0, s[{srd_s}:{srd_s+3}], s82 offen offset:36")


TRV = 250


def trace(a, idx_s, add=0):
    if PROF >= 2:
        a.e(f"""
        s_memtime s[80:81]
        s_add_u32 m0, s{idx_s}, {add}
        s_waitcnt lgkmcnt(0)
        v_writelane_b32 v{TRV}, s80, m0
        """)


def srd(a, base, ptr, nbytes):
    a.e(f"""
    s_mov_b32 s{base}, s{ptr}
    s_mov_b32 s{base+1}, s{ptr+1}
    s_mov_b32 s{base+2}, {nbytes:#x}
    s_mov_b32 s{base+3}, 0x00020000
    """)


def mfma32(d, a_, b_, c):
    cs = "0" if c is None else vr(c, 16)
    return f"v_mfma_f32_32x32x16_bf16 {vr(d,16)}, {vr(a_,4)}, {vr(b_,4)}, {cs}"


def ids_tb_cb(a, ROT=ROT):
    a.e("""
    v_lshrrev_b32 v2, 6, v0
    v_and_b32 v1, 63, v0
    s_and_b32 s53, s2, 7
    v_readfirstlane_b32 s42, v2
    v_lshlrev_b32 v3, 4, v1
    s_lshr_b32 s54, s2, 3
    s_lshr_b32 s40, s53, 1
    s_lshl_b32 s40, s40, 3
    s_and_b32 s55, s54, 7
    s_add_u32 s40, s40, s55              ; tb
    s_and_b32 s41, s53, 1
    s_lshl_b32 s41, s41, 2
    s_lshr_b32 s56, s54, 3
    s_add_u32 s41, s41, s56              ; cb
    """)
    if ROT == 2:
        a.e("""
        s_lshl_b32 s59, s55, 1
        s_lshl_b32 s56, s56, 2
        s_add_u32 s59, s59, s56
        s_and_b32 s59, s59, 15
        """)
    elif ROT == 1:
        a.e("""
        s_lshl_b32 s59, s55, 2
        s_lshl_b32 s56, s56, 3
        s_add_u32 s59, s59, s56
        s_and_b32 s59, s59, 15
        """)
    elif ROT == 3:
        a.e("""
        s_add_u32 s59, s55, s56
        s_lshl_b32 s59, s59, 3
        s_and_b32 s59, s59, 15
        """)
    else:
        a.e("s_mov_b32 s59, 0")


def ring_loader(a, pfx, n, nslot, slot, nstage, D, flags, issue, ring0=0, init=None, sleep=1):
    minprog = f"""
    v_readlane_b32 s58, v23, 0
    v_readlane_b32 s57, v23, 1
    v_readlane_b32 s56, v23, 2
    v_readlane_b32 s55, v23, 3
    s_min_u32 s58, s58, s57
    s_min_u32 s56, s56, s55
    s_min_u32 s58, s58, s56
    s_add_u32 s58, s58, {nslot}
    """
    a.e(f"""
    s_mov_b32 s45, {ring0}
    s_mov_b32 s49, 0
    """)
    issue()
    for l in init:
        a.e(l)
    a.e(f"""
    s_mov_b32 s45, {ring0 + slot}
    s_mov_b32 s49, 1
    """)
    a.label(f"{pfx}_go")
    if PROF >= 2:
        a.e(f"""
        s_add_u32 m0, s49, 0
        v_writelane_b32 v{TRV}, s80, m0
        s_add_u32 m0, s49, 16
        v_writelane_b32 v{TRV}, s78, m0
        s_memtime s[80:81]
        """)
    a.e("ds_read_b32 v23, v20")
    issue()
    if PROF >= 2:
        a.e("s_memtime s[78:79]")
    a.e(f"""
    s_add_u32 s45, s45, {slot}
    s_cmp_eq_u32 s45, {ring0 + slot*nslot}
    s_cselect_b32 s45, {ring0}, s45
    s_add_u32 s49, s49, 1
    s_sub_u32 s54, s49, {D}
    s_max_i32 s54, s54, 0
    v_mov_b32 v22, s54
    s_waitcnt vmcnt({min(63, D*n)}) lgkmcnt(0)
    ds_write_b32 v21, v22
    """)
    a.e(minprog)
    a.e(f"""
    s_min_u32 s58, s58, {nstage}
    s_cmp_lt_u32 s49, s58
    s_cbranch_scc1 {pfx}_go
    s_cmp_lt_u32 s49, {nstage}
    s_cbranch_scc1 {pfx}_poll
    """)
    for j in range(D - 1, -1, -1):
        a.e(f"""
        v_mov_b32 v22, {nstage - j}
        s_waitcnt vmcnt({j*n})
        ds_write_b32 v21, v22
        """)
    a.e(f"""
    s_waitcnt lgkmcnt(0)
    s_branch {pfx}_done
    """)
    a.label(f"{pfx}_poll")
    if PROF:
        a.e(f"s_add_u32 s{PS0+10}, s{PS0+10}, 1")
    a.e(f"""
    ds_read_b32 v23, v20
    s_waitcnt lgkmcnt(0)
    """)
    a.e(minprog)
    a.e(f"""
    s_cmp_lt_u32 s49, s58
    s_cbranch_scc1 {pfx}_go
    s_sleep {sleep}
    s_branch {pfx}_poll
    """)
    a.label(f"{pfx}_done")


def bar_loader(a, pfx, n, nslot, slot, issue):
    a.e("""
    s_mov_b32 s45, 0
    s_mov_b32 s49, 0
    """)
    a.label(f"{pfx}_ld")
    issue()
    a.e(f"""
    s_add_u32 s45, s45, {slot}
    s_cmp_eq_u32 s45, {slot*nslot}
    s_cselect_b32 s45, 0, s45
    s_add_u32 s49, s49, 1
    s_cmp_lt_u32 s49, {nslot-1}
    s_cbranch_scc1 {pfx}_ld
    s_cmp_lt_u32 s49, 16
    s_waitcnt vmcnt({min(63, n*(nslot-2))})
    s_barrier
    s_cbranch_scc1 {pfx}_ld
    """)
    for i in range(nslot - 3, -1, -1):
        a.e(f"""
        s_waitcnt vmcnt({min(63, n*i)})
        s_barrier
        """)


def flag_init_lines(flags):
    return [f"v_add_u32 v22, {flags}, v3",
            "v_mov_b32 v24, 0", "v_mov_b32 v25, 0", "v_mov_b32 v26, 0", "v_mov_b32 v27, 0",
            "ds_write_b128 v22, v[24:27]",
            "ds_write_b128 v21, v[24:27]",
            "s_waitcnt lgkmcnt(0)", "s_barrier"]


def loader_flag_regs(a, flags):
    a.e(f"""
    v_and_b32 v20, 3, v1
    v_lshlrev_b32 v20, 8, v20
    v_add_u32 v20, {flags}, v20
    s_lshl_b32 s57, s42, 2
    s_add_u32 s57, s57, {flags + 1024}
    v_mov_b32 v21, s57
    """)


FLAG_BYTES = 1024 + 64

K1_SLOT = 28672
K1_NSLOT = int(os.environ.get("NS", "4"))
K1_RG = K1_SLOT * K1_NSLOT
K1_FL = K1_RG + 4096
K1_LDS = K1_FL + FLAG_BYTES
GEMM_D = int(os.environ.get("GD", "2"))


def consumer_poll(a, pfx, vfl):
    a.label(f"{pfx}_poll")
    if PROF:
        a.e(f"s_add_u32 s{PS0+10}, s{PS0+10}, 1")
    a.e(f"""
    ds_read_b64 v[4:5], v{vfl}
    s_waitcnt lgkmcnt(0)
    v_min_u32 v4, v4, v5
    s_nop 0
    v_readfirstlane_b32 s47, v4
    s_nop 0
    s_cmp_gt_u32 s47, s49
    s_cbranch_scc1 {pfx}_ok
    s_branch {pfx}_poll
    """)


def gen_k1():
    a = Asm()
    a.label("k1_proj_kernel")
    a.e("""
    s_cmp_ge_u32 s2, 256
    s_cbranch_scc1 K1_end
    """)
    stamp(a, 0, True, False)
    stamp(a, 1, False, True)
    if PROF:
        a.e(f"s_mov_b32 s{PS0+10}, s{PS0+2}")
    a.e("""
    s_load_dwordx4 s[4:7], s[0:1], 0
    s_load_dwordx4 s[8:11], s[0:1], 16
    s_load_dwordx2 s[12:13], s[0:1], 48
    s_load_dwordx2 s[14:15], s[0:1], 80
    s_load_dwordx2 s[16:17], s[0:1], 104
    """)
    ids_tb_cb(a)
    a.e("""
    s_mov_b32 s43, 0
    s_cmp_eq_u32 s41, 0
    s_cselect_b32 s43, 1, s43
    s_cmp_eq_u32 s41, 4
    s_cselect_b32 s43, 2, s43
    s_cmp_eq_u32 s41, 1
    s_cselect_b32 s43, 3, s43
    v_lshrrev_b32 v13, 4, v1             ; lane>>4
    s_cmp_ge_u32 s42, 2
    s_cbranch_scc1 K1_compute
    v_lshlrev_b32 v14, 2, v13
    v_and_b32 v15, 15, v1
    v_xor_b32 v14, v14, v15
    v_lshlrev_b32 v8, 11, v13
    v_lshl_add_u32 v8, v14, 4, v8
    s_lshl_b32 s53, s41, 8
    v_add_u32 v8, s53, v8
    v_add_u32 v9, 0x1c00, v8             ; + q*8192 - q*1024
    v_add_u32 v10, 0x3800, v8
    v_add_u32 v11, 0x5400, v8
    """)
    a.e("s_waitcnt lgkmcnt(0)")
    srd(a, 24, 6, 1024 * 1024 * 2)
    if PROF:
        srd(a, 32, 16, WS_BYTES)
    a.e("""
    s_cmp_eq_u32 s42, 0
    s_cbranch_scc1 K1_ldx
    """)

    def adv():
        a.e("""
        s_add_u32 s59, s59, 1
        s_and_b32 s59, s59, 15
        """)

    def wgroup(g, first):
        a.e(f"s_add_u32 m0, s45, {0x2000 + g*4096}")
        a.e(first)
        for q in range(4):
            a.e(f"buffer_load_dwordx4 v{8+q}, s[24:27], s47 offen offset:{q*1024} lds")

    def issue_w():
        for g in range(3):
            wgroup(g, "s_lshl_b32 s47, s59, 17" if g == 0 else "s_add_u32 s47, s47, 0x8000")
        adv()
    bar_loader(a, "K1w", 12, K1_NSLOT, K1_SLOT, issue_w)
    a.e("s_branch K1_fin")
    a.label("K1_ldx")
    a.e("""
    v_lshrrev_b32 v14, 3, v1
    s_lshl_b32 s53, s40, 6
    v_add_u32 v14, s53, v14
    v_lshlrev_b32 v14, 11, v14
    v_xor_b32 v15, v13, v1
    v_and_b32 v15, 7, v15
    v_lshl_add_u32 v4, v15, 4, v14
    v_xor_b32 v15, 4, v15                ; odd q
    v_lshl_add_u32 v5, v15, 4, v14
    v_add_u32 v5, 0x3c00, v5             ; + 16384 - 1024
    v_add_u32 v6, 0x7800, v4
    v_add_u32 v7, 0x7800, v5
    """)
    srd(a, 20, 4, 2048 * 1024 * 2)

    def issue_x(extra=False):
        a.e("""
        s_mov_b32 m0, s45
        s_lshl_b32 s46, s59, 7
        """)
        for q in range(4):
            a.e(f"buffer_load_dwordx4 v{4+q}, s[20:23], s46 offen offset:{q*1024} lds")
        a.e("""
        s_add_u32 m0, s45, 0x1000
        s_add_u32 s46, s46, 0x10000
        """)
        for q in range(4):
            a.e(f"buffer_load_dwordx4 v{4+q}, s[20:23], s46 offen offset:{q*1024} lds")
        a.e("s_lshl_b32 s47, s59, 17")
        wgroup(3, "s_add_u32 s47, s47, 0x18000")
        if extra:
            a.e("""
            s_add_u32 m0, s45, 0x6000
            s_lshl_b32 s48, s59, 12
            """)
            for q in range(4):
                a.e(f"buffer_load_dwordx4 v3, s[28:31], s48 offen offset:{q*1024} lds")
        adv()
    a.e(f"""
    s_cmp_eq_u32 s43, 1
    s_cbranch_scc1 K1_ldxe
    s_cmp_eq_u32 s43, 2
    s_cbranch_scc1 K1_ldxe
    s_cmp_lg_u32 s43, 3
    s_cbranch_scc1 K1_norg
    s_mov_b32 m0, {K1_RG}
    """)
    srd(a, 36, 12, 2048)
    a.e(f"""
    buffer_load_dwordx4 v3, s[36:39], 0 offen lds
    buffer_load_dwordx4 v3, s[36:39], 0 offen offset:1024 lds
    s_mov_b32 m0, {K1_RG+2048}
    """)
    srd(a, 28, 14, 2048)
    a.e("""
    buffer_load_dwordx4 v3, s[28:31], 0 offen lds
    buffer_load_dwordx4 v3, s[28:31], 0 offen offset:1024 lds
    """)
    a.label("K1_norg")
    bar_loader(a, "K1x", 12, K1_NSLOT, K1_SLOT, issue_x)
    a.e("s_branch K1_fin")
    a.label("K1_ldxe")
    a.e("""
    s_cmp_eq_u32 s43, 2
    s_cselect_b32 s28, s10, s8
    s_cselect_b32 s29, s11, s9
    s_mov_b32 s30, 0x10000
    s_mov_b32 s31, 0x00020000
    """)
    bar_loader(a, "K1e", 16, K1_NSLOT, K1_SLOT, lambda: issue_x(True))
    a.e("s_branch K1_fin")

    a.label("K1_compute")
    SETS = [dict(X0=32, X1=48, W=64, WE=80), dict(X0=84, X1=100, W=116, WE=132)]
    ACC = [136, 152]
    ACC2 = [168, 184]
    AXB, AWB, AEB = 8, 9, 10
    AWBS = [9, 28, 29, 30]
    AX = [12, 13, 14, 15]
    AW = [16, 17, 18, 19]
    VPA, VPV, VFL = 6, 7, 11
    a.e(f"""
    v_subrev_u32 v17, 2, v2              ; hh
    s_sub_u32 s60, s42, 2
    v_and_b32 v15, 15, v1                ; i
    v_and_b32 v12, 31, v1                ; l32
    v_lshrrev_b32 v14, 5, v1             ; hf
    v_lshlrev_b32 v18, 7, v12            ; row*128
    v_lshrrev_b32 v19, 1, v12
    v_and_b32 v19, 7, v19
    v_xor_b32 v19, v19, v14              ; hf ^ f
    v_lshl_add_u32 v8, v19, 4, v18
    v_lshlrev_b32 v19, 5, v17
    v_xor_b32 v8, v8, v19
    v_lshrrev_b32 v18, 2, v15            ; r = i>>2
    v_and_b32 v19, 3, v15                ; c = i&3
    v_lshl_add_u32 v20, v14, 3, v18      ; 8hf + r
    v_and_b32 v21, 1, v13                ; g&1
    v_lshlrev_b32 v22, 2, v17            ; hh*4
    v_lshl_add_u32 v22, v21, 1, v22      ; + (g&1)*2
    v_lshrrev_b32 v23, 1, v19            ; c>>1
    v_add_u32 v22, v22, v23              ; chunk
    v_lshlrev_b32 v23, 2, v18            ; r<<2
    v_xor_b32 v22, v22, v23
    v_lshlrev_b32 v22, 4, v22
    v_lshl_add_u32 v22, v20, 8, v22      ; + (8hf+r)*256
    v_and_b32 v23, 1, v19
    v_lshl_add_u32 v22, v23, 3, v22      ; + (c&1)*8
    v_lshl_add_u32 v22, v17, 12, v22     ; + hh*4096
    v_xor_b32 v28, 0x1000, v22
    v_xor_b32 v29, 0x2000, v22
    v_xor_b32 v30, 0x3000, v22
    v_add_u32 v9, 0x2000, v22
    v_add_u32 v28, 0x2000, v28
    v_add_u32 v29, 0x2000, v29
    v_add_u32 v30, 0x2000, v30
    v_lshl_add_u32 v20, v17, 4, v20
    v_lshlrev_b32 v20, 6, v20            ; *64
    v_lshl_add_u32 v20, v21, 5, v20      ; + (g&1)*32
    v_lshl_add_u32 v20, v19, 3, v20      ; + c*8
    v_add_u32 v10, 0x6000, v20
    s_lshl_b32 s53, s60, 8
    s_add_u32 s53, s53, {K1_FL}
    v_lshl_add_u32 v{VPA}, v1, 2, s53
    v_mov_b32 v{VPV}, 0
    v_mov_b32 v{VFL}, {K1_FL+1024}
    s_cmp_lg_u32 s43, 3
    s_cbranch_scc1 K1_norg2
    v_and_b32 v20, 1, v1
    v_lshlrev_b32 v20, 11, v20           ; (l&1)*2048
    v_lshl_add_u32 v20, v17, 5, v20      ; + hh*32
    v_lshl_add_u32 v20, v14, 4, v20      ; + hf*16
    v_add_u32 v10, {K1_RG}, v20
    """)
    a.label("K1_norg2")
    for i in range(84, 200):
        a.e(f"v_mov_b32 v{i}, 0")
    a.e("""
    s_mov_b32 s44, 0
    s_mov_b32 s49, 0
    s_mov_b32 s47, 0
    s_waitcnt lgkmcnt(0)
    """)
    srd(a, 32, 16, WS_BYTES)
    stamp(a, 2)

    def mm_extra(s_, tag):
        a.e(f"""
        s_cmp_eq_u32 s43, 0
        s_cbranch_scc1 K1_mm_done{tag}
        s_cmp_eq_u32 s43, 2
        s_cbranch_scc1 K1_mm_v{tag}
        """)
        a.e(mfma32(ACC2[0], s_["WE"], s_["X0"], ACC2[0]))
        a.e(mfma32(ACC2[1], s_["WE"], s_["X1"], ACC2[1]))
        a.e(f"s_branch K1_mm_done{tag}")
        a.label(f"K1_mm_v{tag}")
        a.e(mfma32(ACC2[0], s_["X0"], s_["WE"], ACC2[0]))
        a.e(mfma32(ACC2[1], s_["X1"], s_["WE"], ACC2[1]))
        a.label(f"K1_mm_done{tag}")

    def addr_update():
        a.e(f"""
        v_add_u32 v12, s44, v8
        v_add_u32 v16, s44, v9
        v_add_u32 v17, s44, v28
        v_add_u32 v18, s44, v29
        v_add_u32 v19, s44, v30
        v_xor_b32 v13, 32, v12
        v_xor_b32 v14, 64, v12
        v_xor_b32 v15, 0x60, v12
        v_add_u32 v20, s61, v10
        v_add_u32 v{VPV}, 1, v{VPV}
        """)
    a.e("""
    s_lshl_b32 s61, s59, 7
    s_cmp_eq_u32 s43, 3
    s_cselect_b32 s61, s61, 0
    """)
    addr_update()
    a.label("K1_loop")
    for par in range(2):
        cur, prev = SETS[par], SETS[1 - par]
        a.e("s_barrier")
        trace(a, 49)
        if par == 0 and PROF:
            a.e("s_cmp_lg_u32 s49, 0\ns_cbranch_scc1 K1_nostamp")
            stamp(a, 3)
            a.label("K1_nostamp")
        mms = []
        for i in range(4):
            mms.append(mfma32(ACC[0], prev["W"] + 4 * i, prev["X0"] + 4 * i, ACC[0]))
            mms.append(mfma32(ACC[1], prev["W"] + 4 * i, prev["X1"] + 4 * i, ACC[1]))
        for i in range(4):
            a.e(mms[i])
            a.e(f"""
            ds_read_b128 {vr(cur['X0']+4*i,4)}, v{AX[i]}
            ds_read_b128 {vr(cur['X1']+4*i,4)}, v{AX[i]} offset:4096
            ds_read_b64_tr_b16 {vr(cur['W']+4*i,2)}, v{AW[i]}
            ds_read_b64_tr_b16 {vr(cur['W']+4*i+2,2)}, v{AW[i]} offset:1024
            """)
            if i == 2:
                a.e("s_waitcnt lgkmcnt(7)")
        a.e(mms[4])
        a.e(f"""
        s_cmp_eq_u32 s43, 0
        s_cbranch_scc1 K1_rd_done{par}
        s_cmp_eq_u32 s43, 3
        s_cbranch_scc1 K1_rd_rg{par}
        ds_read_b64_tr_b16 {vr(cur['WE'],2)}, v20
        ds_read_b64_tr_b16 {vr(cur['WE']+2,2)}, v20 offset:256
        s_branch K1_rd_done{par}
        """)
        a.label(f"K1_rd_rg{par}")
        a.e(f"ds_read_b128 {vr(cur['WE'],4)}, v20")
        a.label(f"K1_rd_done{par}")
        a.e(mms[5])
        a.e(f"""
        s_add_u32 s44, s44, {K1_SLOT}
        s_cmp_eq_u32 s44, {K1_SLOT*K1_NSLOT}
        s_cselect_b32 s44, 0, s44
        s_add_u32 s59, s59, 1
        s_and_b32 s59, s59, 15
        s_lshl_b32 s61, s59, 7
        s_cmp_eq_u32 s43, 3
        s_cselect_b32 s61, s61, s44
        """)
        a.e(mms[6])
        addr_update()
        a.e(mms[7])
        mm_extra(prev, par)
        a.e(f"""
        s_add_u32 s49, s49, 1
        s_waitcnt lgkmcnt(0)
        """)
    a.e("""
    s_cmp_lt_u32 s49, 16
    s_cbranch_scc1 K1_loop
    """)
    mm_extra(SETS[1], 2)
    for i in range(4):
        a.e(mfma32(ACC[0], SETS[1]["W"] + 4 * i, SETS[1]["X0"] + 4 * i, ACC[0]))
        a.e(mfma32(ACC[1], SETS[1]["W"] + 4 * i, SETS[1]["X1"] + 4 * i, ACC[1]))
    stamp(a, 4)
    a.e(f"""
    s_lshl_b32 s55, s40, 6               ; 2tb*32
    s_lshl_b32 s56, s41, 2
    s_add_u32 s55, s55, s56
    s_add_u32 s55, s55, s60
    s_lshl_b32 s55, s55, 11
    s_add_u32 s55, s55, {WS_QF}
    s_add_u32 s56, s55, 0x10000
    s_mov_b32 s57, {fbits(QSCALE):#x}
    s_cmp_eq_u32 s43, 0
    s_cbranch_scc1 K1_nored
    s_barrier
    s_lshl_b32 s53, s60, 13
    v_add_u32 v12, s53, v3
    """)
    for t in range(2):
        for q in range(4):
            a.e(f"ds_write_b128 v12, {vr(ACC2[t]+4*q,4)} offset:{t*4096+q*1024}")
    a.label("K1_nored")
    a.e("s_nop 3")
    for t in range(2):
        for i in range(16):
            a.e(f"v_mul_f32 v{ACC[t]+i}, s57, v{ACC[t]+i}")
        for i in range(8):
            a.e(f"v_cvt_pk_bf16_f32 v{32+8*t+i}, v{ACC[t]+2*i}, v{ACC[t]+1+2*i}")
        a.e(f"""
        buffer_store_dwordx4 {vr(32+8*t,4)}, v3, s[32:35], s{55+t} offen
        buffer_store_dwordx4 {vr(36+8*t,4)}, v3, s[32:35], s{55+t} offen offset:1024
        """)
    a.e(f"""
    v_mov_b32 v48, -1
    v_mov_b32 v49, -1
    v_mov_b32 v50, -1
    v_mov_b32 v51, -1
    s_lshl_b32 s57, s2, 12
    s_lshl_b32 s58, s60, 10
    s_add_u32 s57, s57, s58
    s_add_u32 s57, s57, {WS_PX}
    buffer_store_dwordx4 v[48:51], v3, s[32:35], s57 offen
    s_cmp_lg_u32 s60, 3
    s_cbranch_scc1 K1_nozero
    v_lshlrev_b32 v29, 2, v1
    s_lshl_b32 s57, s2, 8
    s_add_u32 s57, s57, {WS_HX}
    buffer_store_dword v48, v29, s[32:35], s57 offen
    """)
    a.label("K1_nozero")
    a.e(f"""
    s_cmp_lg_u32 s60, 2
    s_cbranch_scc1 K1_nozero2
    s_lshl_b32 s57, s2, 10
    s_add_u32 s57, s57, {WS_YF}
    buffer_store_dwordx4 v[48:51], v3, s[32:35], s57 offen
    s_cmp_lg_u32 s2, 255
    s_cbranch_scc1 K1_nozero2
    v_lshlrev_b32 v29, 6, v1
    v_mov_b32 v30, 0
    s_mov_b32 s57, {WS_CNT}
    buffer_store_dword v30, v29, s[32:35], s57 offen
    """)
    a.label("K1_nozero2")
    a.e(f"""
    s_cmp_eq_u32 s43, 0
    s_cbranch_scc1 K1_fin
    s_lshl_b32 s53, s60, 10
    v_add_u32 v12, s53, v3
    s_waitcnt lgkmcnt(0)
    s_barrier
    """)
    for t in range(2):
        for w in range(4):
            a.e(f"ds_read_b128 {vr(64+16*t+4*w,4)}, v12 offset:{w*8192+t*4096}")
    a.e("s_waitcnt lgkmcnt(0)")
    for t in range(2):
        b = 64 + 16 * t
        for i in range(4):
            a.e(f"""
            v_add_f32 v{b+i}, v{b+i}, v{b+4+i}
            v_add_f32 v{b+8+i}, v{b+8+i}, v{b+12+i}
            v_add_f32 v{b+i}, v{b+i}, v{b+8+i}
            """)
    a.e(f"""
    s_cmp_eq_u32 s43, 3
    s_cbranch_scc1 K1_rg_out
    v_cvt_pk_bf16_f32 v52, v64, v65
    v_cvt_pk_bf16_f32 v53, v66, v67
    v_cvt_pk_bf16_f32 v54, v80, v81
    v_cvt_pk_bf16_f32 v55, v82, v83
    s_lshl_b32 s57, s40, 13              ; 2tb*4096
    s_cmp_eq_u32 s43, 2
    s_cselect_b32 s58, 2048, 0
    s_add_u32 s57, s57, s58
    s_lshr_b32 s58, s60, 1
    s_lshl_b32 s58, s58, 10              ; (hh>>1)*1024
    s_add_u32 s57, s57, s58
    s_and_b32 s58, s60, 1
    s_lshl_b32 s58, s58, 3               ; (hh&1)*8
    s_add_u32 s57, s57, s58
    s_add_u32 s57, s57, {WS_KVF}
    s_add_u32 s58, s57, 0x1000
    buffer_store_dwordx2 v[52:53], v3, s[32:35], s57 offen
    buffer_store_dwordx2 v[54:55], v3, s[32:35], s58 offen
    s_branch K1_fin
    """)
    a.label("K1_rg_out")
    a.e(f"""
    s_cmp_lg_u32 s60, 0
    s_cbranch_scc1 K1_fin
    s_mov_b32 exec_lo, 0
    v_mov_b32 v64, v80
    v_mov_b32 v65, v81
    s_mov_b32 exec_lo, -1
    s_lshl_b32 s57, s40, 6
    v_add_u32 v12, s57, v1               ; token
    v_cvt_pk_bf16_f32 v36, v64, v64
    v_mul_f32 v33, {fbits(-LOG2E):#x}, v65
    v_and_b32 v36, 0xffff0000, v36
    v_exp_f32 v33, v33
    v_ashrrev_i32 v37, 31, v36
    v_or_b32 v37, 0x80000000, v37
    v_add_f32 v33, 1.0, v33
    v_xor_b32 v36, v36, v37
    v_rcp_f32 v33, v33
    v_and_b32 v36, 0xffff0000, v36
    v_sub_u32 v37, 2047, v12
    v_or_b32 v36, v36, v37
    v_lshlrev_b32 v12, 2, v12
    s_mov_b32 s57, {WS_KEY}
    s_mov_b32 s58, {WS_G}
    buffer_store_dword v36, v12, s[32:35], s57 offen
    buffer_store_dword v33, v12, s[32:35], s58 offen
    """)
    a.label("K1_fin")
    if PROF:
        a.e("s_waitcnt vmcnt(0)")
    stamp_flush(a, 0)
    a.label("K1_end")
    a.e("s_endpgm")
    return a, 200, 64


L_GATE = 0
L_UP = 32768
L_DOWN = L_GATE
RING_R = 4
RING_SLOT = 16384
L_RING = 65536
L_ORING = L_RING + 32768
L_XT = 131072
XS_STRIDE = 528
L_XS = L_XT + 16384
K2_FL = L_XS + 8 * XS_STRIDE
F_READY, F_A1, F_A2, F_SEL = K2_FL + 1024, K2_FL + 1028, K2_FL + 1032, K2_FL + 1040
K2_LDS = K2_FL + FLAG_BYTES

QA, QB = 8, 16
SA, SB = 24, 40
PA, PB = 56, 64
OA, OB = 72, 88
LA, LB = 104, 108
KB, VB = [112, 120], [128, 136]
ASUM, AIDX = 144, 148
VCUR, VNEXT, VPA, VPV, VM, VFL = 149, 150, 151, 152, 153, 154
VG0, VG1 = 155, 156
K2_VGPRS = 248


def smf(L, P):
    return f"v_smfmac_f32_16x16x64_bf16 {vr(L,4)}, {vr(ASUM,4)}, {vr(P,8)}, v{AIDX}"


def attn_phase(a, S, P, mf, fill):
    for g in range(4):
        a.e(mf[g])
        for l in fill[g]:
            a.e(l)
        b = S + 4 * g
        for i in range(4):
            a.e(f"v_exp_f32 v{b+i}, v{b+i}")
        a.e(f"v_cvt_pk_bf16_f32 v{P+2*g}, v{b}, v{b+1}")
        if g == 3:
            a.e(mf[4])
            for l in fill[4]:
                a.e(l)
        a.e(f"v_cvt_pk_bf16_f32 v{P+2*g+1}, v{b+2}, v{b+3}")


def softmax_check(a, O, L, lab):
    a.e(f"v_add_f32 v{L}, v{L}, v{L+1}")
    a.e(f"v_maximum3_f32 v4, abs(v{O}), abs(v{O+1}), 0")
    for i in range(2, 16, 2):
        a.e(f"v_maximum3_f32 v4, abs(v{O+i}), abs(v{O+i+1}), v4")
    a.e(f"""
    v_mul_f32 v4, s51, v4
    v_maximum3_f32 v4, v4, v{L}, v{L}
    v_cmp_nle_f32 vcc, v4, s50
    v_cmp_nge_f32 s[52:53], v{L}, s51
    s_nop 0
    s_or_b64 vcc, vcc, s[52:53]
    s_cbranch_vccnz {lab}
    """)


def gather64(a, lab, base, voff, soff, stride):
    a.e("s_mov_b32 s49, 0")
    a.label(lab)
    for q in range(16):
        a.e(f"buffer_load_dwordx4 {vr(base+4*q,4)}, v{voff}, s[32:35], s{soff} offen offset:{q*stride} sc1")
    a.e("s_waitcnt vmcnt(0)")
    a.e(f"v_max3_u32 v14, v{base}, v{base+1}, v{base+2}")
    a.e(f"v_max3_u32 v15, v{base+3}, v{base+4}, v{base+5}")
    for i in range(6, 62, 4):
        a.e(f"v_max3_u32 v14, v{base+i}, v{base+i+1}, v14")
        a.e(f"v_max3_u32 v15, v{base+i+2}, v{base+i+3}, v15")
    a.e(f"""
    v_max3_u32 v14, v{base+62}, v{base+63}, v14
    v_max_u32 v14, v14, v15
    v_cmp_eq_u32 vcc, -1, v14
    s_add_u32 s49, s49, 1
    s_cmp_ge_u32 s49, 0x4000
    s_cbranch_scc1 {lab}_done
    s_cbranch_vccz {lab}_done
    s_sleep 8
    s_branch {lab}
    """)
    a.label(f"{lab}_done")


def lds_wait(a, lab, addr, sleep):
    a.e(f"v_mov_b32 v15, {addr}")
    a.label(lab)
    a.e(f"""
    s_sleep {sleep}
    ds_read_b32 v14, v15
    s_waitcnt lgkmcnt(0)
    v_readfirstlane_b32 s57, v14
    s_nop 0
    s_cmp_eq_u32 s57, 0
    s_cbranch_scc1 {lab}
    """)


def lds_set(a, addr):
    a.e(f"""
    v_mov_b32 v14, 1
    v_mov_b32 v15, {addr}
    ds_write_b32 v15, v14
    """)


def lane_parts(a):
    a.e("""
    v_lshrrev_b32 v6, 4, v1
    v_and_b32 v6, 1, v6                  ; g&1
    v_lshrrev_b32 v7, 5, v1              ; hf
    v_bfe_u32 v8, v1, 2, 2               ; r
    v_and_b32 v9, 3, v1                  ; c
    """)


def gen_k2():
    a = Asm()
    a.label("k2_attn_kernel")
    a.e("""
    s_cmp_ge_u32 s2, 256
    s_cbranch_scc1 K2_end
    """)
    stamp(a, 0, True, False)
    stamp(a, 1, False, True)
    if PROF:
        a.e(f"s_mov_b32 s{PS0+10}, s{PS0+2}")
    a.e("""
    s_load_dwordx2 s[16:17], s[0:1], 104
    s_load_dwordx2 s[4:5], s[0:1], 0     ; x
    s_load_dwordx2 s[6:7], s[0:1], 32    ; wo
    s_load_dwordx4 s[8:11], s[0:1], 56
    s_load_dwordx2 s[12:13], s[0:1], 72  ; w_down
    s_load_dwordx2 s[14:15], s[0:1], 88  ; out
    """)
    ids_tb_cb(a, 0)
    a.e("""
    s_mul_i32 s46, s53, 28
    s_add_u32 s46, s46, s54
    s_cmp_lt_u32 s54, 28
    s_cselect_b32 s70, 1, 0
    s_waitcnt lgkmcnt(0)
    """)
    srd(a, 32, 16, WS_BYTES)
    a.e("""
    s_cmp_ge_u32 s42, 4
    s_cbranch_scc1 K2_attn
    s_cmp_lg_u32 s42, 0
    s_cbranch_scc1 K2_aux
    """)
    loader_flag_regs(a, K2_FL)
    a.e(f"s_mov_b32 s46, {WS_KVF}")

    def issue():
        for g in range(4):
            a.e(f"s_add_u32 m0, s45, {g*4096}")
            a.e("s_nop 0")
            for q in range(4):
                a.e(f"buffer_load_dwordx4 v3, s[32:35], s46 offen offset:{q*1024} lds")
            a.e("s_add_u32 s46, s46, 0x1000")
    ring_loader(a, "K2l", 16, RING_R, RING_SLOT, 16, 1, K2_FL, issue, ring0=L_RING, init=flag_init_lines(K2_FL), sleep=8)
    stamp(a, 2)
    a.e(f"""
    s_lshl_b32 s50, s40, 7
    s_add_u32 s50, s50, {WS_CNT}
    s_lshl_b32 s46, s40, 17
    s_add_u32 s46, s46, {WS_OF}
    s_add_u32 s47, s46, 0x10000
    v_mov_b32 v4, 0
    s_mov_b32 s49, 0
    s_barrier
    """)
    stamp(a, 3)
    a.label("K2_opoll")
    a.e("""
    buffer_load_dword v5, v4, s[32:35], s50 offen sc1
    s_add_u32 s49, s49, 1
    s_waitcnt vmcnt(0)
    v_readfirstlane_b32 s51, v5
    s_cmp_ge_u32 s49, 0x20000
    s_cbranch_scc1 K2_oready
    s_cmp_lt_u32 s51, 32
    s_cbranch_scc1 K2_opoll
    """)
    a.label("K2_oready")
    stamp(a, 4)
    a.e(f"""
    s_mov_b32 s45, {L_ORING}
    s_mov_b32 s49, 0
    """)
    a.label("K2_old")
    a.e("""
    s_mov_b32 m0, s45
    s_add_u32 s49, s49, 1
    """)
    for q in range(4):
        a.e(f"buffer_load_dwordx4 v3, s[32:35], s46 offen offset:{q*1024} sc1 lds")
    a.e("""
    s_add_u32 m0, s45, 0x1000
    s_add_u32 s46, s46, 0x1000
    """)
    for q in range(4):
        a.e(f"buffer_load_dwordx4 v3, s[32:35], s47 offen offset:{q*1024} sc1 lds")
    a.e(f"""
    s_add_u32 s47, s47, 0x1000
    s_add_u32 s45, s45, 0x2000
    s_cmp_eq_u32 s45, {L_ORING + 32768}
    s_cselect_b32 s45, {L_ORING}, s45
    s_cmp_lt_u32 s49, 3
    s_cbranch_scc1 K2_old
    s_cmp_lt_u32 s49, 16
    s_waitcnt vmcnt(16)
    s_barrier
    s_cbranch_scc1 K2_old
    s_waitcnt vmcnt(8)
    s_barrier
    s_waitcnt vmcnt(0)
    s_barrier
    s_branch K2_fin
    """)
    a.label("K2_attn")
    a.e(f"""
    s_sub_u32 s60, s42, 4                ; hh
    s_lshl_b32 s45, s40, 6
    s_lshl_b32 s46, s41, 2
    s_add_u32 s45, s45, s46
    s_add_u32 s45, s45, s60
    s_lshl_b32 s45, s45, 11
    s_add_u32 s46, s45, 0x10000          ; tile B
    buffer_load_dwordx4 {vr(QA,4)}, v3, s[32:35], s45 offen
    buffer_load_dwordx4 {vr(QA+4,4)}, v3, s[32:35], s45 offen offset:1024
    buffer_load_dwordx4 {vr(QB,4)}, v3, s[32:35], s46 offen
    buffer_load_dwordx4 {vr(QB+4,4)}, v3, s[32:35], s46 offen offset:1024
    v_and_b32 v4, 31, v1
    v_lshlrev_b32 v4, 2, v4
    s_lshl_b32 s52, s40, 8
    s_add_u32 s52, s52, {WS_G}
    buffer_load_dword v{VG0}, v4, s[32:35], s52 offen
    buffer_load_dword v{VG1}, v4, s[32:35], s52 offen offset:128
    v_and_b32 v4, 1, v1
    v_mov_b32 v5, 0x4444
    v_mov_b32 v6, 0xeeee
    v_cmp_eq_u32 vcc, 1, v4
    v_and_b32 v4, 6, v1
    v_mov_b32 v7, 0x3f803f80
    v_cndmask_b32 v{AIDX}, v5, v6, vcc
    v_cmp_eq_u32 vcc, 0, v4
    v_cmp_eq_u32 s[50:51], 4, v4
    s_lshl_b32 s52, s60, 8
    v_cndmask_b32 v{ASUM}, 0, v7, vcc
    v_cndmask_b32 v{ASUM+1}, 0, v7, vcc
    v_cndmask_b32 v{ASUM+2}, 0, v7, s[50:51]
    v_cndmask_b32 v{ASUM+3}, 0, v7, s[50:51]
    s_add_u32 s52, s52, {K2_FL}
    v_lshl_add_u32 v{VPA}, v1, 2, s52
    v_mov_b32 v{VPV}, 1
    v_mov_b32 v{VFL}, {F_READY}
    v_add_u32 v{VCUR}, {L_RING}, v3
    v_add_u32 v{VNEXT}, {L_RING+RING_SLOT}, v3
    s_mov_b32 s48, {L_RING+RING_SLOT}
    """)
    for r in list(range(OA, OA + 40)) + list(range(PB, PB + 8)) + list(range(VB[1], VB[1] + 8)):
        a.e(f"v_mov_b32 v{r}, 0")
    a.e("""
    s_mov_b32 s49, 2
    s_barrier
    """)
    a.label("K2_first")
    a.e(f"""
    ds_read_b32 v4, v{VFL}
    s_waitcnt lgkmcnt(0)
    v_readfirstlane_b32 s47, v4
    s_nop 0
    s_cmp_lg_u32 s47, 0
    s_cbranch_scc0 K2_first
    ds_read_b128 {vr(KB[0],4)}, v{VCUR}
    ds_read_b128 {vr(KB[0]+4,4)}, v{VCUR} offset:1024
    ds_read_b128 {vr(KB[1],4)}, v{VCUR} offset:4096
    ds_read_b128 {vr(KB[1]+4,4)}, v{VCUR} offset:5120
    ds_read_b128 {vr(VB[0],4)}, v{VCUR} offset:2048
    ds_read_b128 {vr(VB[0]+4,4)}, v{VCUR} offset:3072
    s_waitcnt vmcnt(0) lgkmcnt(4)
    """)
    a.e(mfma32(SA, KB[0], QA, None))
    a.e(mfma32(SA, KB[0] + 4, QA + 4, SA))
    a.e("s_nop 9")
    a.e("s_waitcnt lgkmcnt(0)")
    stamp(a, 2)
    a.e(".p2align 6")
    a.label("K2_loop")
    for j in range(4):
        p, n = j % 2, (j + 1) % 2
        ka = (VCUR, (j + 2) * 4096) if j < 2 else (VNEXT, (j - 2) * 4096)
        va = (VCUR, (j + 1) * 4096 + 2048) if j < 3 else (VNEXT, 2048)
        attn_phase(a, SA, PA, [
            mfma32(SB, KB[p], QB, None),
            mfma32(SB, KB[p] + 4, QB + 4, SB),
            mfma32(OB, VB[n], PB, OB),
            mfma32(OB, VB[n] + 4, PB + 4, OB),
            smf(LB, PB)],
            [[f"ds_read_b128 {vr(KB[p],4)}, v{ka[0]} offset:{ka[1]}"],
             [f"ds_read_b128 {vr(KB[p]+4,4)}, v{ka[0]} offset:{ka[1]+1024}"],
             [f"ds_read_b128 {vr(VB[n],4)}, v{va[0]} offset:{va[1]}"],
             [f"ds_read_b128 {vr(VB[n]+4,4)}, v{va[0]} offset:{va[1]+1024}"],
             ["s_waitcnt lgkmcnt(4)"]])
        fill = [[], [], [], [], []]
        if j == 0:
            fill[0] = [f"ds_read_b32 v4, v{VFL}"]
            fill[1] = [f"s_add_u32 s48, s48, {RING_SLOT}"]
            fill[2] = [f"s_cmp_eq_u32 s48, {L_RING + RING_R*RING_SLOT}"]
            fill[3] = [f"s_cselect_b32 s48, {L_RING}, s48"]
        if j == 1:
            fill[0] = ["v_readfirstlane_b32 s47, v4"]
            fill[2] = ["s_cmp_ge_u32 s47, s49"]
            fill[3] = ["s_cbranch_scc0 K2_poll", "K2_ok:"]
        if j == 2:
            fill[0] = [f"ds_write_b32 v{VPA}, v{VPV}"]
            fill[1] = ["s_add_u32 s49, s49, 1"]
        if j == 3:
            fill[0] = [f"v_mov_b32 v{VCUR}, v{VNEXT}", f"v_add_u32 v{VNEXT}, s48, v3", f"v_add_u32 v{VPV}, 1, v{VPV}"]
            fill[3] = ["s_cmp_lt_u32 s49, 18"]
        attn_phase(a, SB, PB, [
            mfma32(SA, KB[n], QA, None),
            mfma32(SA, KB[n] + 4, QA + 4, SA),
            mfma32(OA, VB[p], PA, OA),
            mfma32(OA, VB[p] + 4, PA + 4, OA),
            smf(LA, PA)], fill)
    a.e("s_cbranch_scc1 K2_loop")
    a.e("s_waitcnt lgkmcnt(0)")
    stamp(a, 3)
    a.e(mfma32(OB, VB[1], PB, OB))
    a.e(mfma32(OB, VB[1] + 4, PB + 4, OB))
    a.e(smf(LB, PB))
    a.e(f"""
    s_mov_b32 s50, 0x5f800000            ; 2^64
    s_mov_b32 s51, 0x1f800000            ; 2^-64
    s_add_u32 s45, s45, {WS_OF}
    s_add_u32 s46, s46, {WS_OF}
    s_nop 3
    """)
    softmax_check(a, OA, LA, "K2_fallback")
    softmax_check(a, OB, LB, "K2_fallback")
    a.label("K2_norm")
    for (O, L, P, so) in ((OA, LA, PA, 45), (OB, LB, PB, 46)):
        a.e(f"""
        v_rcp_f32 v6, v{L}
        s_nop 0
        """)
        for i in range(16):
            a.e(f"v_mul_f32 v{O+i}, v{O+i}, v6")
        for i in range(8):
            a.e(f"v_cvt_pk_bf16_f32 v{P+i}, v{O+2*i}, v{O+2*i+1}")
        a.e(f"""
        buffer_store_dwordx4 {vr(P,4)}, v3, s[32:35], s{so} offen sc1
        buffer_store_dwordx4 {vr(P+4,4)}, v3, s[32:35], s{so} offen offset:1024 sc1
        """)
    SETS = [dict(X0=32, X1=48, W=64), dict(X0=80, X1=96, W=112)]
    ACC = [128, 160]
    YA = [176, 192]
    YF_ = 208
    SELB = [236, 240]
    lane_parts(a)
    a.e(f"""
    s_lshl_b32 s50, s40, 7
    s_add_u32 s50, s50, {WS_CNT}
    v_lshl_add_u32 v20, v7, 2, v8        ; 4hf + r
    v_lshlrev_b32 v22, 1, v6             ; (g&1)*2
    v_lshrrev_b32 v23, 1, v9             ; c>>1
    s_lshl_b32 s53, s60, 2
    v_add3_u32 v22, v22, v23, s53        ; chunk
    v_lshlrev_b32 v23, 2, v8
    v_xor_b32 v22, v22, v23
    v_lshlrev_b32 v22, 4, v22
    v_lshl_add_u32 v22, v20, 8, v22
    v_and_b32 v23, 1, v9
    v_lshl_add_u32 v9, v23, 3, v22
    v_mov_b32 v4, 0
    v_mov_b32 v5, 1
    s_mov_b64 exec, 1
    s_waitcnt vmcnt(0)
    buffer_atomic_add v5, v4, s[32:35], s50 offen sc1
    s_mov_b64 exec, -1
    """)
    srd(a, 24, 14, 2048 * 1024 * 2)
    a.e(f"""
    v_and_b32 v10, 31, v1
    s_lshl_b32 s55, s40, 6
    v_add_u32 v11, s55, v10
    s_lshl_b32 s55, s41, 2
    s_add_u32 s55, s55, s60              ; ct
    s_lshl_b32 s72, s55, 6
    s_add_u32 s73, s72, 0x10000
    v_lshlrev_b32 v6, 11, v11
    v_lshl_add_u32 v6, v7, 4, v6
    v_add_u32 v16, s53, v7
    v_and_b32 v17, 15, v10
    v_xor_b32 v16, v16, v17
    v_lshlrev_b32 v16, 4, v16
    v_lshl_add_u32 v16, v10, 8, v16
    v_add_u32 v16, {L_XT}, v16
    v_xor_b32 v17, 32, v16
    v_lshlrev_b32 v19, 4, v7
    v_add_u32 v19, {F_SEL}, v19
    v_add_u32 v12, {L_ORING}, v3
    v_mov_b32 v13, v9
    s_mov_b32 s44, {L_ORING}
    s_mov_b32 s43, 0
    s_mov_b32 s49, 0
    """)
    for i in list(range(80, 144)) + list(range(160, 176)):
        a.e(f"v_mov_b32 v{i}, 0")
    a.e("s_barrier")
    stamp(a, 4)
    a.e(f"""
    ds_read_b128 v[24:27], v19
    v_sub_u32 v11, 2047, v11
    v_subrev_u32 v19, 32, v11
    s_waitcnt lgkmcnt(0)
    """)
    for i in range(4):
        a.e(f"v_and_b32 v{28+i}, 0x7ff, v{24+i}")
    for t in range(2):
        tv = [11, 19][t]
        b = 64 + 8 * t if False else None
        a.e(f"""
        v_cmp_eq_u32 s[64:65], v28, v{tv}
        v_cmp_eq_u32 s[66:67], v29, v{tv}
        v_cmp_eq_u32 s[68:69], v30, v{tv}
        v_cmp_eq_u32 vcc, v31, v{tv}
        s_or_b64 s[64:65], s[64:65], s[66:67]
        s_or_b64 s[68:69], s[68:69], vcc
        s_or_b64 s[64:65], s[64:65], s[68:69]
        s_or_b32 s{74+t}, s64, s65
        """)
    a.e("""
    s_or_b32 s76, s74, s75
    s_cmp_lg_u32 s76, 0
    s_cbranch_scc1 K2_ysetup
    """)
    a.label("K2_p3loop")
    for par in range(2):
        cur, prev = SETS[par], SETS[1 - par]
        a.e("s_barrier")
        if par == 0 and PROF:
            a.e("s_cmp_lg_u32 s49, 0\ns_cbranch_scc1 K2_nostamp")
            stamp(a, 5)
            a.label("K2_nostamp")
        mms = []
        for i in range(4):
            mms.append(mfma32(ACC[0], prev["W"] + 4 * i, prev["X0"] + 4 * i, ACC[0]))
            mms.append(mfma32(ACC[1], prev["W"] + 4 * i, prev["X1"] + 4 * i, ACC[1]))
        for i in range(4):
            a.e(mms[i])
            a.e(f"""
            ds_read_b128 {vr(cur['X0']+4*i,4)}, v12 offset:{i*1024}
            ds_read_b128 {vr(cur['X1']+4*i,4)}, v12 offset:{4096+i*1024}
            ds_read_b64_tr_b16 {vr(cur['W']+4*i,2)}, v13 offset:{i*4096}
            ds_read_b64_tr_b16 {vr(cur['W']+4*i+2,2)}, v13 offset:{i*4096+2048}
            """)
            if i == 2:
                a.e("s_waitcnt lgkmcnt(8)")
        a.e(mms[4])
        a.e(f"""
        s_add_u32 s44, s44, 0x2000
        s_cmp_eq_u32 s44, {L_ORING+32768}
        s_cselect_b32 s44, {L_ORING}, s44
        """)
        a.e(mms[5])
        a.e(f"""
        s_add_u32 s43, s43, 0x4000
        s_cmp_eq_u32 s43, {6*16384}
        s_cselect_b32 s43, 0, s43
        """)
        a.e(mms[6])
        a.e("""
        v_add_u32 v12, s44, v3
        v_add_u32 v13, s43, v9
        """)
        a.e(mms[7])
        a.e("""
        s_add_u32 s49, s49, 1
        s_waitcnt lgkmcnt(0)
        """)
    a.e("""
    s_cmp_lt_u32 s49, 16
    s_cbranch_scc1 K2_p3loop
    """)
    XR = [144 + 100, 0]
    for i in range(4):
        a.e(mfma32(ACC[0], SETS[1]["W"] + 4 * i, SETS[1]["X0"] + 4 * i, ACC[0]))
        if i == 0:
            a.e("""
            ds_read_b128 v[64:67], v16
            ds_read_b128 v[68:71], v17
            ds_read_b128 v[72:75], v16 offset:8192
            ds_read_b128 v[76:79], v17 offset:8192
            """)
        a.e(mfma32(ACC[1], SETS[1]["W"] + 4 * i, SETS[1]["X1"] + 4 * i, ACC[1]))
    a.e("s_waitcnt lgkmcnt(0)")
    B = [32, 48]
    for t in range(2):
        for i in range(8):
            a.e(f"""
            v_lshlrev_b32 v{B[t]+2*i}, 16, v{64+8*t+i}
            v_and_b32 v{B[t]+1+2*i}, 0xffff0000, v{64+8*t+i}
            """)
    a.e("""
    s_cmp_lg_u32 s76, 0
    s_cbranch_scc1 K2_y
    """)
    a.label("K2_yback")
    for t in range(2):
        g_ = [VG0, VG1][t]
        a.e(f"v_sub_f32 v8, 1.0, v{g_}")
        for i in range(4):
            a.e(f"v_permlane32_swap_b32 v{ACC[t]+i}, v{ACC[t]+4+i}")
        for i in range(4):
            a.e(f"v_permlane32_swap_b32 v{ACC[t]+8+i}, v{ACC[t]+12+i}")
        for i in range(16):
            a.e(f"v_mul_f32 v{B[t]+i}, v{B[t]+i}, v8")
        for i in range(16):
            a.e(f"v_fmac_f32 v{B[t]+i}, v{ACC[t]+i}, v{g_}")
        for i in range(8):
            a.e(f"v_cvt_pk_bf16_f32 v{64+8*t+i}, v{B[t]+2*i}, v{B[t]+1+2*i}")
        a.e(f"""
        buffer_store_dwordx4 {vr(64+8*t,4)}, v6, s[24:27], s{72+t} offen
        buffer_store_dwordx4 {vr(68+8*t,4)}, v6, s[24:27], s{72+t} offen offset:32
        """)
    a.label("K2_fin")
    if PROF:
        a.e("s_waitcnt vmcnt(0)")
    stamp_flush(a, 1)
    a.label("K2_end")
    a.e("s_endpgm")
    a.label("K2_poll")
    if PROF:
        pass
    a.e(f"""
    s_cmp_gt_u32 s49, 16
    s_cbranch_scc1 K2_ok
    ds_read_b32 v4, v{VFL}
    s_waitcnt lgkmcnt(0)
    v_readfirstlane_b32 s47, v4
    s_nop 0
    s_cmp_ge_u32 s47, s49
    s_cbranch_scc1 K2_ok
    s_branch K2_poll
    """)

    def yload():
        for k in range(7):
            a.e(f"buffer_load_dwordx4 {vr(YF_+4*k,4)}, v3, s[32:35], s{77+k//4} offen offset:{(k%4)*1024} sc1")
    a.label("K2_ysetup")
    a.e(f"""
    s_mul_i32 s77, s55, 7168
    s_add_u32 s77, s77, {WS_YF}
    s_add_u32 s78, s77, 4096
    """)
    yload()
    for i in range(4):
        a.e(f"""
        v_and_b32 v{24+i}, 0xffff0000, v{24+i}
        v_ashrrev_i32 v20, 31, v{24+i}
        v_not_b32 v20, v20
        v_or_b32 v20, 0x80000000, v20
        v_xor_b32 v{24+i}, v{24+i}, v20
        v_and_b32 v{24+i}, 0xffff0000, v{24+i}
        v_mul_f32 v{24+i}, {fbits(-LOG2E):#x}, v{24+i}
        v_exp_f32 v{24+i}, v{24+i}
        s_nop 0
        v_add_f32 v{24+i}, 1.0, v{24+i}
        v_rcp_f32 v{24+i}, v{24+i}
        """)
    for t in range(2):
        tv = [11, 19][t]
        a.e(f"""
        v_cmp_eq_u32 s[64:65], v28, v{tv}
        v_cmp_eq_u32 s[66:67], v29, v{tv}
        v_cmp_eq_u32 s[68:69], v30, v{tv}
        v_cmp_eq_u32 vcc, v31, v{tv}
        v_cndmask_b32 v20, 0, v24, s[64:65]
        v_cndmask_b32 v21, 0, v25, s[66:67]
        v_cndmask_b32 v22, 0, v26, s[68:69]
        v_cndmask_b32 v23, 0, v27, vcc
        v_cvt_pk_bf16_f32 v{SELB[t]}, v20, v21
        v_cvt_pk_bf16_f32 v{SELB[t]+1}, v22, v23
        v_cvt_pk_bf16_f32 v{SELB[t]+2}, v20, v21
        v_cvt_pk_bf16_f32 v{SELB[t]+3}, v22, v23
        """)
    a.e("s_branch K2_p3loop")
    a.label("K2_y")
    a.e("s_mov_b32 s49, 0")
    a.label("K2_ychk")
    a.e("s_waitcnt vmcnt(0)")
    a.e(f"v_max3_u32 v14, v{YF_}, v{YF_+1}, v{YF_+2}")
    for i in range(3, 27, 2):
        a.e(f"v_max3_u32 v14, v{YF_+i}, v{YF_+i+1}, v14")
    a.e(f"""
    v_max_u32 v14, v{YF_+27}, v14
    v_cmp_eq_u32 vcc, -1, v14
    s_add_u32 s49, s49, 1
    s_cmp_ge_u32 s49, 0x20000
    s_cbranch_scc1 K2_ygo
    s_cbranch_vccz K2_ygo
    """)
    yload()
    a.e("s_branch K2_ychk")
    a.label("K2_ygo")
    for k in range(7):
        for t in range(2):
            a.e(mfma32(YA[t], YF_ + 4 * k, SELB[t], None if k == 0 else YA[t]))
    a.e("s_nop 15")
    for t in range(2):
        for i in range(4):
            a.e(f"v_permlane32_swap_b32 v{YA[t]+i}, v{YA[t]+4+i}")
        for i in range(4):
            a.e(f"v_permlane32_swap_b32 v{YA[t]+8+i}, v{YA[t]+12+i}")
        a.e(f"""
        s_mov_b32 exec_lo, s{74+t}
        s_mov_b32 exec_hi, s{74+t}
        """)
        for i in range(16):
            a.e(f"v_add_f32 v{B[t]+i}, v{B[t]+i}, v{YA[t]+i}")
        a.e("s_mov_b64 exec, -1")
    a.e("s_branch K2_yback")

    gen_k2_aux(a)

    a.label("K2_fallback")
    for r in range(OA, OA + 40):
        a.e(f"v_mov_b32 v{r}, 0")
    MA, MB = VM, VFL
    a.e(f"""
    v_mov_b32 v{MA}, 0xff800000
    v_mov_b32 v{MB}, 0xff800000
    s_mov_b32 s49, 0
    s_mov_b32 s48, {WS_KVF}
    """)
    a.label("K2_fb_loop")
    a.e(f"""
    buffer_load_dwordx4 {vr(KB[0],4)}, v3, s[32:35], s48 offen
    buffer_load_dwordx4 {vr(KB[0]+4,4)}, v3, s[32:35], s48 offen offset:1024
    buffer_load_dwordx4 {vr(VB[0],4)}, v3, s[32:35], s48 offen offset:2048
    buffer_load_dwordx4 {vr(VB[0]+4,4)}, v3, s[32:35], s48 offen offset:3072
    s_add_u32 s48, s48, 0x1000
    s_waitcnt vmcnt(0)
    """)
    for (Q, O, L, M) in ((QA, OA, LA, MA), (QB, OB, LB, MB)):
        a.e(mfma32(SA, KB[0], Q, None))
        a.e(mfma32(SA, KB[0] + 4, Q + 4, SA))
        a.e("s_nop 15")
        a.e(f"v_max3_f32 v4, v{SA}, v{SA+1}, v{M}")
        for i in range(2, 16, 2):
            a.e(f"v_max3_f32 v4, v{SA+i}, v{SA+i+1}, v4")
        a.e(f"""
        v_mov_b32 v5, v4
        s_nop 1
        v_permlane32_swap_b32 v4, v5
        s_nop 1
        v_max_f32 v4, v4, v5
        v_sub_f32 v5, v{M}, v4
        v_exp_f32 v5, v5                     ; alpha
        v_mov_b32 v{M}, v4
        """)
        for i in range(16):
            a.e(f"v_sub_f32 v{SA+i}, v{SA+i}, v4")
        for i in range(16):
            a.e(f"v_exp_f32 v{SA+i}, v{SA+i}")
        for i in range(16):
            a.e(f"v_mul_f32 v{O+i}, v{O+i}, v5")
        for i in range(4):
            a.e(f"v_mul_f32 v{L+i}, v{L+i}, v5")
        for i in range(8):
            a.e(f"v_cvt_pk_bf16_f32 v{PA+i}, v{SA+2*i}, v{SA+2*i+1}")
        a.e("s_nop 1")
        a.e(mfma32(O, VB[0], PA, O))
        a.e(mfma32(O, VB[0] + 4, PA + 4, O))
        a.e(smf(L, PA))
        a.e("s_nop 15")
    a.e(f"""
    s_add_u32 s49, s49, 1
    s_cmp_lt_u32 s49, 64
    s_cbranch_scc1 K2_fb_loop
    v_add_f32 v{LA}, v{LA}, v{LA+1}
    v_add_f32 v{LB}, v{LB}, v{LB+1}
    s_branch K2_norm
    """)
    return a, K2_VGPRS, 80


def gen_k2_aux(a):
    KEY = 16
    a.label("K2_aux")
    a.e("""
    s_barrier
    s_cmp_eq_u32 s42, 2
    s_cbranch_scc1 K2_A2
    s_cmp_eq_u32 s42, 3
    s_cbranch_scc1 K2_A3
    """)
    a.e(f"s_mov_b32 s50, {WS_KEY}")
    a.e(f"s_mov_b32 s51, {WS_KEY+4096}")
    for j in range(8):
        a.e(f"buffer_load_dwordx4 {vr(KEY+4*j,4)}, v3, s[32:35], s{50+j//4} offen offset:{(j%4)*1024}")
    srd(a, 20, 4, 2048 * 1024 * 2)
    srd(a, 56, 8, 1024 * 3584 * 2)
    srd(a, 60, 10, 1024 * 3584 * 2)
    a.e(f"""
    s_and_b32 s74, s46, 3                ; kq
    v_lshrrev_b32 v4, 3, v1
    v_mul_u32_u24 v4, 7168, v4
    v_and_b32 v5, 7, v1
    v_lshl_add_u32 v4, v5, 4, v4
    s_lshr_b32 s47, s46, 2
    s_lshl_b32 s47, s47, 7
    s_mul_i32 s48, s74, {256*7168}
    s_add_u32 s47, s47, s48
    s_mov_b32 s48, 0
    s_lshl_b32 s75, s74, 9               ; kq*512
    v_mov_b32 v10, 0
    s_mov_b32 s49, 0
    s_mov_b32 s52, {L_XS}
    s_waitcnt vmcnt(0)
    """)
    stamp(a, 2)
    a.label("K2_top")
    a.e("""
    s_cmp_eq_u32 s70, 0
    s_cbranch_scc1 K2_top_nodma
    """)
    for i in range(4):
        a.e(f"""
        s_add_u32 m0, s48, {L_GATE}
        s_nop 0
        buffer_load_dwordx4 v4, s[56:59], s47 offen lds
        s_add_u32 m0, s48, {L_UP}
        s_add_u32 s48, s48, 1024
        buffer_load_dwordx4 v4, s[60:63], s47 offen lds
        s_add_u32 s47, s47, {8*7168}
        """)
    a.label("K2_top_nodma")
    a.e(f"v_max3_u32 v11, v{KEY}, v{KEY+1}, v{KEY+2}")
    a.e(f"v_max3_u32 v12, v{KEY+3}, v{KEY+4}, v{KEY+5}")
    for i in range(6, 30, 4):
        a.e(f"v_max3_u32 v11, v{KEY+i}, v{KEY+i+1}, v11")
        a.e(f"v_max3_u32 v12, v{KEY+i+2}, v{KEY+i+3}, v12")
    a.e(f"v_max3_u32 v11, v{KEY+30}, v{KEY+31}, v11")
    a.e("v_max_u32 v11, v11, v12")
    for ctl in ("row_shr:1", "row_shr:2", "row_shr:4", "row_shr:8", "row_bcast:15 row_mask:0xa", "row_bcast:31 row_mask:0xc"):
        a.e("s_nop 1")
        a.e(f"v_max_u32_dpp v11, v11, v11 {ctl}")
    a.e(f"""
    s_nop 1
    v_readlane_b32 s53, v11, 63
    s_lshl_b64 exec, 1, s49
    s_nop 0
    s_and_b32 s54, s53, 0x7ff
    v_mov_b32 v10, s53
    s_mov_b32 exec_lo, -1
    s_mov_b32 exec_hi, 0
    s_sub_u32 s54, 2047, s54             ; token
    s_lshl_b32 s55, s54, 11
    s_mov_b32 m0, s52
    s_add_u32 s55, s55, s75
    buffer_load_dwordx4 v3, s[20:23], s55 offen lds
    s_lshr_b32 s68, s54, 8
    s_add_u32 s52, s52, {XS_STRIDE}
    s_lshl_b32 s68, s68, 2
    s_and_b32 s69, s54, 3
    s_add_u32 s68, s68, s69
    s_bfe_u32 s69, s54, 0x60002
    s_lshl_b64 exec, 1, s69
    s_set_gpr_idx_on s68, 0x8
    v_mov_b32 v{KEY}, 0
    s_set_gpr_idx_off
    s_mov_b64 exec, -1
    s_add_u32 s49, s49, 1
    s_cmp_lt_u32 s49, 8
    s_cbranch_scc1 K2_top
    """)
    stamp(a, 3)
    a.e(f"""
    v_lshlrev_b32 v12, 2, v1
    v_add_u32 v12, {F_SEL}, v12
    s_mov_b64 exec, 0xff
    ds_write_b32 v12, v10
    s_mov_b64 exec, -1
    v_lshrrev_b32 v13, 4, v1
    v_and_b32 v12, 15, v1
    v_xor_b32 v12, v12, v13              ; p ^ (lane>>4)
    s_lshl_b32 s53, s40, 6
    v_add_u32 v13, s53, v13
    v_lshlrev_b32 v13, 11, v13
    s_lshl_b32 s53, s41, 8
    v_add_u32 v13, s53, v13
    v_lshl_add_u32 v16, v12, 4, v13
    v_xor_b32 v17, 64, v16
    v_xor_b32 v18, 128, v16
    v_xor_b32 v19, 192, v16
    v_add_u32 v17, 0x1c00, v17
    v_add_u32 v18, 0x3800, v18
    v_add_u32 v19, 0x5400, v19
    s_waitcnt vmcnt(0)
    """)
    stamp(a, 4)
    lds_set(a, F_A1)
    for g in range(4):
        a.e(f"s_mov_b32 m0, {L_XT + g*4096}")
        a.e(f"s_mov_b32 s47, {g*32768}")
        for q in range(4):
            a.e(f"buffer_load_dwordx4 v{16+q}, s[20:23], s47 offen offset:{q*1024} lds")
    a.e("""
    s_waitcnt vmcnt(0) lgkmcnt(0)
    s_branch K2_fin
    """)
    a.label("K2_A2")
    a.e("""
    s_cmp_eq_u32 s70, 0
    s_cbranch_scc1 K2_fin
    """)
    lane_parts(a)
    a.e(f"""
    v_lshl_add_u32 v12, v7, 3, v8
    v_lshlrev_b32 v12, 7, v12
    v_lshl_add_u32 v12, v9, 3, v12
    v_lshl_add_u32 v12, v6, 15, v12
    v_and_b32 v13, 7, v1
    v_mul_u32_u24 v13, {XS_STRIDE}, v13
    v_lshl_add_u32 v13, v7, 4, v13
    v_add_u32 v13, {L_XS}, v13
    """)
    ACC = 16
    for i in range(64):
        a.e(f"v_mov_b32 v{ACC+i}, 0")
    a.e("s_mov_b32 s49, 0")
    lds_wait(a, "K2_wA1", F_A1, 16)
    stamp(a, 2)
    a.label("K2_up")
    a.e("ds_read_b128 v[80:83], v13")
    for j in range(4):
        a.e(f"""
        ds_read_b64_tr_b16 {vr(84+4*j,2)}, v12 offset:{j*32}
        ds_read_b64_tr_b16 {vr(86+4*j,2)}, v12 offset:{j*32+512}
        """)
    a.e("""
    v_add_u32 v12, 2048, v12
    v_add_u32 v13, 32, v13
    s_add_u32 s49, s49, 1
    s_cmp_lt_u32 s49, 16
    """)
    for j in range(4):
        a.e(f"s_waitcnt lgkmcnt({6-2*j})")
        a.e(mfma32(ACC + 16 * j, 84 + 4 * j, 80, ACC + 16 * j))
    a.e("s_cbranch_scc1 K2_up")
    stamp(a, 3)
    lds_set(a, F_A2)
    a.e(f"""
    v_and_b32 v13, 7, v1
    v_lshl_add_u32 v13, v7, 3, v13
    v_lshlrev_b32 v13, 4, v13            ; ((l&7) + 8hf)*16
    s_andn2_b32 s48, s46, 3
    s_lshl_b32 s48, s48, 12
    s_and_b32 s47, s46, 3
    s_lshl_b32 s47, s47, 10
    s_add_u32 s48, s48, s47
    s_add_u32 s48, s48, {WS_PX}
    s_mov_b32 exec_lo, 0xff
    s_mov_b32 exec_hi, 0xff
    """)
    for j in range(4):
        for q in range(4):
            a.e(f"buffer_store_dwordx4 {vr(ACC+16*j+4*q,4)}, v13, s[32:35], s48 offen offset:{q*256} sc1")
        if j < 3:
            a.e("s_add_u32 s48, s48, 0x1000")
    a.e("""
    s_mov_b64 exec, -1
    s_waitcnt lgkmcnt(0)
    s_branch K2_fin
    """)
    a.label("K2_A3")
    srd(a, 24, 6, 1024 * 1024 * 2)
    a.e("""
    s_cmp_eq_u32 s70, 0
    s_cbranch_scc1 K2_wo
    """)
    srd(a, 64, 12, 1024 * 3584 * 2)
    lane_parts(a)
    a.e(f"""
    s_lshr_b32 s72, s46, 4               ; ks
    s_and_b32 s73, s46, 15               ; cgp
    s_lshl_b32 s47, s72, 19              ; ks*256*2048
    s_lshl_b32 s48, s73, 7
    s_add_u32 s47, s47, s48
    v_lshrrev_b32 v4, 3, v1
    v_lshlrev_b32 v4, 11, v4
    v_and_b32 v5, 7, v1
    v_lshl_add_u32 v4, v5, 4, v4
    v_and_b32 v13, 7, v1
    v_lshl_add_u32 v13, v7, 3, v13
    v_lshlrev_b32 v13, 4, v13            ; ((l&7) + 8hf)*16
    """)
    lds_wait(a, "K2_wA1b", F_A1, 16)
    a.e("v_lshlrev_b32 v5, 11, v1")
    for q in range(4):
        a.e(f"s_add_u32 s48, s47, {q*64*2048}")
        a.e(f"buffer_load_dword v{16+q}, v5, s[64:67], s48 offen")
    lds_wait(a, "K2_wA2", F_A2, 8)
    stamp(a, 2)
    a.e(f"""
    s_mov_b32 m0, {L_DOWN}
    s_mov_b32 s49, 0
    """)
    a.label("K2_dn_dma")
    a.e(f"""
    buffer_load_dwordx4 v4, s[64:67], s47 offen lds
    s_add_u32 m0, m0, 1024
    s_add_u32 s47, s47, 0x4000
    s_add_u32 s49, s49, 1
    s_cmp_lt_u32 s49, 32
    s_cbranch_scc1 K2_dn_dma
    s_lshl_b32 s48, s46, 12
    s_add_u32 s48, s48, {WS_PX}
    """)
    gather64(a, "K2_px", 16, 13, 48, 256)
    stamp(a, 3)
    for i in range(16):
        a.e(f"v_add_f32 v{16+i}, v{16+i}, v{32+i}")
    for i in range(16):
        a.e(f"v_add_f32 v{48+i}, v{48+i}, v{64+i}")
    for i in range(16):
        a.e(f"v_add_f32 v{16+i}, v{16+i}, v{48+i}")
    G = 16
    for i in range(8):
        a.e(f"v_mul_f32 v{64+i}, {fbits(-LOG2E):#x}, v{G+i}")
    for i in range(8):
        a.e(f"v_exp_f32 v{64+i}, v{64+i}")
    for i in range(8):
        a.e(f"v_add_f32 v{64+i}, 1.0, v{64+i}")
    for i in range(8):
        a.e(f"v_rcp_f32 v{64+i}, v{64+i}")
    for i in range(8):
        a.e(f"v_mul_f32 v{G+i}, v{G+i}, v{G+8+i}")
    for i in range(8):
        a.e(f"v_mul_f32 v{G+i}, v{G+i}, v{64+i}")
    for i in range(4):
        a.e(f"v_cvt_pk_bf16_f32 v{80+i}, v{G+2*i}, v{G+2*i+1}")
    for i in range(4):
        a.e(f"v_min_u32 v{80+i}, -2, v{80+i}")
    a.e(f"""
    s_lshl_b32 s48, s46, 8
    s_add_u32 s48, s48, {WS_HX}
    s_mov_b32 exec_lo, 0xff
    s_mov_b32 exec_hi, 0xff
    buffer_store_dwordx4 v[80:83], v13, s[32:35], s48 offen sc1
    s_mov_b64 exec, -1
    s_lshl_b32 s48, s72, 12
    s_add_u32 s48, s48, {WS_HX}
    """)
    HF = 16
    gather64(a, "K2_hx", HF, 13, 48, 256)
    a.e(f"""
    v_lshl_add_u32 v12, v7, 2, v8
    v_lshlrev_b32 v12, 7, v12
    v_lshl_add_u32 v12, v6, 5, v12
    v_lshl_add_u32 v12, v9, 3, v12       ; L_DOWN = 0
    """)
    D0, D1 = 96, 112
    for q2 in range(8):
        for qq in range(2):
            q = 2 * q2 + qq
            b = 80 + 8 * qq
            a.e(f"""
            ds_read_b64_tr_b16 {vr(b,2)}, v12 offset:{q*2048}
            ds_read_b64_tr_b16 {vr(b+2,2)}, v12 offset:{q*2048+1024}
            ds_read_b64_tr_b16 {vr(b+4,2)}, v12 offset:{q*2048+64}
            ds_read_b64_tr_b16 {vr(b+6,2)}, v12 offset:{q*2048+1024+64}
            """)
        for qq in range(2):
            q = 2 * q2 + qq
            b = 80 + 8 * qq
            a.e(f"s_waitcnt lgkmcnt({4-4*qq})")
            a.e(mfma32(D0, HF + 4 * q, b, None if q == 0 else D0))
            a.e(mfma32(D1, HF + 4 * q, b + 4, None if q == 0 else D1))
    a.e(f"""
    s_mul_i32 s47, s73, {2*7168}
    s_lshr_b32 s48, s72, 1
    s_lshl_b32 s48, s48, 10
    s_add_u32 s47, s47, s48
    s_and_b32 s48, s72, 1
    s_lshl_b32 s48, s48, 3
    s_add_u32 s47, s47, s48
    s_add_u32 s47, s47, {WS_YF}
    s_add_u32 s48, s47, 7168
    s_nop 3
    v_cvt_pk_bf16_f32 v80, v{D0}, v{D0+1}
    v_cvt_pk_bf16_f32 v81, v{D0+2}, v{D0+3}
    v_cvt_pk_bf16_f32 v82, v{D1}, v{D1+1}
    v_cvt_pk_bf16_f32 v83, v{D1+2}, v{D1+3}
    v_min_u32 v80, -2, v80
    v_min_u32 v81, -2, v81
    v_min_u32 v82, -2, v82
    v_min_u32 v83, -2, v83
    buffer_store_dwordx2 v[80:81], v3, s[32:35], s47 offen sc1
    buffer_store_dwordx2 v[82:83], v3, s[32:35], s48 offen sc1
    """)
    a.label("K2_wo")
    stamp(a, 4)
    a.e(f"""
    v_lshrrev_b32 v13, 4, v1
    v_lshlrev_b32 v14, 2, v13
    v_and_b32 v15, 15, v1
    v_xor_b32 v14, v14, v15
    v_lshlrev_b32 v8, 11, v13
    v_lshl_add_u32 v8, v14, 4, v8
    s_lshl_b32 s53, s41, 8
    v_add_u32 v8, s53, v8
    v_add_u32 v9, 0x1c00, v8
    v_add_u32 v10, 0x3800, v8
    v_add_u32 v11, 0x5400, v8
    v_and_b32 v20, 3, v1
    v_lshlrev_b32 v20, 8, v20
    v_add_u32 v20, {K2_FL}, v20
    s_mov_b32 s45, 0                     ; slot
    s_mov_b32 s47, 0
    s_mov_b32 s49, 0
    """)
    a.e("""
    v_lshrrev_b32 v5, 1, v1
    v_lshlrev_b32 v5, 11, v5
    v_and_b32 v4, 1, v1
    v_lshl_add_u32 v5, v4, 7, v5
    s_and_b32 s54, s40, 7
    s_lshl_b32 s54, s54, 18
    s_add_u32 s54, s54, s53
    """)
    for q in range(4):
        a.e(f"buffer_load_dword v{24+q}, v5, s[24:27], s54 offen")
        if q < 3:
            a.e("s_add_u32 s54, s54, 0x10000")

    def issue_w():
        for g in range(4):
            a.e(f"s_add_u32 m0, s45, {g*4096}")
            a.e("s_nop 0")
            for q in range(4):
                a.e(f"buffer_load_dwordx4 v{8+q}, s[24:27], s47 offen offset:{q*1024} lds")
            a.e("s_add_u32 s47, s47, 0x8000")
        a.e(f"""
        s_add_u32 s45, s45, 0x4000
        s_cmp_eq_u32 s45, {6*16384}
        s_cselect_b32 s45, 0, s45
        s_add_u32 s49, s49, 1
        """)
    a.label("K2_wld")
    issue_w()
    a.e("""
    s_cmp_lt_u32 s49, 4
    s_cbranch_scc1 K2_wld
    s_cmp_ge_u32 s49, 6
    s_cbranch_scc1 K2_wsync
    s_add_u32 s50, s49, 9
    """)
    a.label("K2_wpoll")
    a.e("""
    s_sleep 8
    ds_read_b32 v23, v20
    s_waitcnt lgkmcnt(0)
    v_cmp_gt_u32 vcc, s50, v23
    s_nop 1
    s_cbranch_vccnz K2_wpoll
    s_branch K2_wld
    """)
    a.label("K2_wsync")
    a.e("""
    s_cmp_lg_u32 s49, 6
    s_cbranch_scc1 K2_wsteady
    s_waitcnt vmcnt(0)
    s_barrier
    s_barrier
    """)
    a.label("K2_wsteady")
    a.e("""
    s_cmp_lt_u32 s49, 16
    s_waitcnt vmcnt(48)
    s_barrier
    s_cbranch_scc1 K2_wld
    s_waitcnt vmcnt(48)
    s_barrier
    s_waitcnt vmcnt(32)
    s_barrier
    s_waitcnt vmcnt(16)
    s_barrier
    s_waitcnt vmcnt(0)
    s_barrier
    s_branch K2_fin
    """)


def kd(name, vgprs, sgprs):
    acc = (vgprs + 3) // 4 * 4
    return f""".p2align 6
.amdhsa_kernel {name}
  .amdhsa_next_free_vgpr {vgprs}
  .amdhsa_next_free_sgpr {sgprs}
  .amdhsa_accum_offset {acc}
  .amdhsa_group_segment_fixed_size 0
  .amdhsa_kernarg_size 112
  .amdhsa_user_sgpr_count 2
  .amdhsa_user_sgpr_kernarg_segment_ptr 1
  .amdhsa_system_sgpr_workgroup_id_x 1
  .amdhsa_float_denorm_mode_32 3
.end_amdhsa_kernel
"""


def main(out):
    ref = open(f"cdna_kernels/{NAME}.s.ref").read().split("\n")
    head = [l for l in ref if l.startswith(";") and "@launch" not in l and "Override" not in l and "grid=ceil" not in l]
    ks = [("k1_proj_kernel", gen_k1, 384, K1_LDS), ("k2_attn_kernel", gen_k2, 512, K2_LDS)]
    txt = "\n".join(head) + "\n"
    for n, _, thr, lds in ks:
        txt += f"; @launch kernel={n} grid=(256,1,1) block=({thr},1,1) lds={lds}\n"
    txt += '.amdgcn_target "amdgcn-amd-amdhsa--gfx950"\n.text\n'
    kds = ""
    bad = 0
    for n, g, thr, lds in ks:
        a, vg, sg = g()
        errs = check_kernel(a.lines, n)
        for e in errs:
            print("HAZARD", e)
            bad += 1
        txt += f".globl {n}\n.p2align 8\n.type {n},@function\n" + a.text()
        kds += kd(n, 256 if PROF >= 2 else vg, 102 if PROF else sg)
    txt += '.section .rodata,"a"\n' + kds
    open(out, "w").write(txt)
    print("wrote", out, "hazards:", bad, "K2 lds", K2_LDS)


if __name__ == "__main__":
    main(sys.argv[1] if len(sys.argv) > 1 else f"cdna_kernels/{NAME}.s")
```

```python
import math
import struct
import sys
import os

sys.path.insert(0, os.path.dirname(os.path.abspath(__file__)))
from asmlib import Asm, vr, sr, check_kernel

NAME = "gated_mix__grouped_kv_mqa__moe_arch_mod__prompt"

WS_OF = 0x400000
WS_KVF = 0xA00000
WS_KEY = 0xA50000
WS_G = 0xA52000
WS_KFL = 0xA54000
WS_OFL = 0xA56000
WS_HX = 0xA58000
WS_YF = 0xA70000
WS_PX = 0xB00000
WS_BYTES = 0xC00000
DBGQ = int(os.environ.get("DBGQ", "0"))


def fbits(x):
    return struct.unpack("<I", struct.pack("<f", x))[0]


LOG2E = math.log2(math.e)
QSCALE = LOG2E / math.sqrt(32.0)


PROF = int(os.environ.get("PROF", "0"))
WS_PROF = 0xC00000
if PROF:
    WS_BYTES = 0xF00000
PS0 = 84


def stamp(a, i, real=False, wait=True):
    if PROF:
        a.e(f"{'s_memrealtime' if real else 's_memtime'} s[{PS0+2*i}:{PS0+2*i+1}]")
        if wait:
            a.e("s_waitcnt lgkmcnt(0)")


def stamp_flush(a, kidx, srd_s=32, wave_s=42):
    if PROF:
        a.e(f"""
        s_memtime s[{PS0+12}:{PS0+13}]
        s_memrealtime s[{PS0+14}:{PS0+15}]
        s_waitcnt lgkmcnt(0)
        """)
        if PROF >= 2:
            a.e(f"""
            s_mov_b64 exec, -1
            s_lshl_b32 s82, s2, 11
            s_lshl_b32 s83, s{wave_s}, 8
            s_add_u32 s82, s82, s83
            s_add_u32 s82, s82, {WS_PROF + 0x100000 + kidx*0x80000}
            v_mbcnt_lo_u32_b32 v0, -1, 0
            v_mbcnt_hi_u32_b32 v0, -1, v0
            v_lshlrev_b32 v0, 2, v0
            buffer_store_dword v{TRV}, v0, s[{srd_s}:{srd_s+3}], s82 offen
            """)
        a.e(f"""
        s_mov_b64 exec, 1
        s_lshl_b32 s82, s2, 10
        s_lshl_b32 s83, s{wave_s}, 6
        s_add_u32 s82, s82, s83
        s_add_u32 s82, s82, {WS_PROF + kidx*0x40000}
        v_mov_b32 v0, 0
        """)
        for i in range(8):
            a.e(f"""
            v_mov_b32 v1, s{PS0+2*i}
            buffer_store_dword v1, v0, s[{srd_s}:{srd_s+3}], s82 offen offset:{4*i}
            """)
        a.e("""
        s_getreg_b32 s83, hwreg(HW_REG_HW_ID)
        v_mov_b32 v1, s83
        """)
        a.e(f"buffer_store_dword v1, v0, s[{srd_s}:{srd_s+3}], s82 offen offset:32")
        a.e("""
        s_getreg_b32 s83, hwreg(HW_REG_XCC_ID)
        v_mov_b32 v1, s83
        """)
        a.e(f"buffer_store_dword v1, v0, s[{srd_s}:{srd_s+3}], s82 offen offset:36")


TRV = 250


def trace(a, idx_s, add=0):
    if PROF >= 2:
        a.e(f"""
        s_memtime s[80:81]
        s_add_u32 m0, s{idx_s}, {add}
        s_waitcnt lgkmcnt(0)
        v_writelane_b32 v{TRV}, s80, m0
        """)


def srd(a, base, ptr, nbytes):
    a.e(f"""
    s_mov_b32 s{base}, s{ptr}
    s_mov_b32 s{base+1}, s{ptr+1}
    s_mov_b32 s{base+2}, {nbytes:#x}
    s_mov_b32 s{base+3}, 0x00020000
    """)


def mfma32(d, a_, b_, c):
    cs = "0" if c is None else vr(c, 16)
    return f"v_mfma_f32_32x32x16_bf16 {vr(d,16)}, {vr(a_,4)}, {vr(b_,4)}, {cs}"


def mfma16(d, a_, b_, c):
    return f"v_mfma_f32_16x16x32_bf16 {vr(d,4)}, {vr(a_,4)}, {vr(b_,4)}, {vr(c,4)}"


P_X, P_WQ, P_WK, P_WV, P_WO = 4, 6, 8, 10, 12
P_WR, P_GATE, P_UP, P_DOWN, P_GW, P_OUT, P_DBG, P_WS = 16, 18, 20, 22, 24, 26, 28, 30
R_WS, R_A, R_B, R_C = 32, 36, 64, 68
S_TB, S_CB, S_W, S_HAS, S_UNIT = 40, 41, 42, 61, 62

P1_SLOT, P1_NS = 24576, 4
L_GATE, L_UP, L_DOWN = 0, 32768, 0
RING_R, RING_SLOT, L_RING = 4, 16384, 65536
RING_START = L_RING + 2 * RING_SLOT
L_ORING = L_RING
L_XT = 131072
L_RG = L_XT
XS_STRIDE = 528
L_XS = L_XT + 16384
L_FL = L_XS + 8 * XS_STRIDE
F_READY, F_A1, F_A2, F_SEL = L_FL + 1024, L_FL + 1028, L_FL + 1032, L_FL + 1040
LDS_BYTES = L_FL + 1024 + 64

QA, QB = 8, 16
SA, SB = 24, 40
PA, PB = 56, 64
OA, OB = 72, 88
LA, LB = 104, 108
KB, VB = [112, 120], [128, 136]
ASUM, AIDX = 144, 148
VCUR, VNEXT, VPA, VPV, VM, VFL = 149, 150, 151, 152, 153, 154
VG0, VG1, VTAG = 155, 156, 158
SPIN = 0x20000


def smf(L, P):
    return f"v_smfmac_f32_16x16x64_bf16 {vr(L,4)}, {vr(ASUM,4)}, {vr(P,8)}, v{AIDX}"


def attn_phase(a, S, P, mf, fill):
    for g in range(4):
        a.e(mf[g])
        for l in fill[g]:
            a.e(l)
        b = S + 4 * g
        for i in range(4):
            a.e(f"v_exp_f32 v{b+i}, v{b+i}")
        a.e(f"v_cvt_pk_bf16_f32 v{P+2*g}, v{b}, v{b+1}")
        if g == 3:
            a.e(mf[4])
            for l in fill[4]:
                a.e(l)
        a.e(f"v_cvt_pk_bf16_f32 v{P+2*g+1}, v{b+2}, v{b+3}")


def softmax_check(a, O, L, lab):
    a.e(f"v_add_f32 v{L}, v{L}, v{L+1}")
    a.e(f"v_maximum3_f32 v4, abs(v{O}), abs(v{O+1}), 0")
    for i in range(2, 16, 2):
        a.e(f"v_maximum3_f32 v4, abs(v{O+i}), abs(v{O+i+1}), v4")
    a.e(f"""
    v_mul_f32 v4, s51, v4
    v_maximum3_f32 v4, v4, v{L}, v{L}
    v_cmp_nle_f32 vcc, v4, s50
    v_cmp_nge_f32 s[52:53], v{L}, s51
    s_nop 0
    s_or_b64 vcc, vcc, s[52:53]
    s_cbranch_vccnz {lab}
    """)


def gather64(a, lab, base, voff, soff, stride):
    a.e("s_mov_b32 s49, 0")
    a.label(lab)
    for q in range(16):
        a.e(f"buffer_load_dwordx4 {vr(base+4*q,4)}, v{voff}, s[32:35], s{soff} offen offset:{q*stride} sc1")
    a.e("s_waitcnt vmcnt(0)")
    a.e(f"v_max3_u32 v14, v{base}, v{base+1}, v{base+2}")
    a.e(f"v_max3_u32 v15, v{base+3}, v{base+4}, v{base+5}")
    for i in range(6, 62, 4):
        a.e(f"v_max3_u32 v14, v{base+i}, v{base+i+1}, v14")
        a.e(f"v_max3_u32 v15, v{base+i+2}, v{base+i+3}, v15")
    a.e(f"""
    v_max3_u32 v14, v{base+62}, v{base+63}, v14
    v_max_u32 v14, v14, v15
    v_cmp_eq_u32 vcc, -1, v14
    s_add_u32 s49, s49, 1
    s_cmp_ge_u32 s49, {SPIN}
    s_cbranch_scc1 {lab}_done
    s_cbranch_vccz {lab}_done
    s_sleep 8
    s_branch {lab}
    """)
    a.label(f"{lab}_done")


def lds_wait(a, lab, addr, sleep):
    a.e(f"v_mov_b32 v15, {addr}")
    a.label(lab)
    a.e(f"""
    s_sleep {sleep}
    ds_read_b32 v14, v15
    s_waitcnt lgkmcnt(0)
    v_readfirstlane_b32 s57, v14
    s_nop 0
    s_cmp_eq_u32 s57, 0
    s_cbranch_scc1 {lab}
    """)


def lds_set(a, addr):
    a.e(f"""
    v_mov_b32 v14, 1
    v_mov_b32 v15, {addr}
    ds_write_b32 v15, v14
    """)


def lane_parts(a):
    a.e("""
    v_lshrrev_b32 v6, 4, v1
    v_and_b32 v6, 1, v6                  ; g&1
    v_lshrrev_b32 v7, 5, v1              ; hf
    v_bfe_u32 v8, v1, 2, 2               ; r
    v_and_b32 v9, 3, v1                  ; c
    """)


def w_voffs(a):
    a.e(f"""
    v_lshrrev_b32 v13, 4, v1
    v_lshlrev_b32 v14, 2, v13
    v_and_b32 v15, 15, v1
    v_xor_b32 v14, v14, v15
    v_lshlrev_b32 v8, 11, v13
    v_lshl_add_u32 v8, v14, 4, v8
    s_lshl_b32 s53, s{S_CB}, 8
    v_add_u32 v8, s53, v8
    v_add_u32 v9, 0x1c00, v8             ; + q*8192 - q*1024
    v_add_u32 v10, 0x3800, v8
    v_add_u32 v11, 0x5400, v8
    """)


def barriers(a, n):
    for _ in range(n):
        a.e("s_barrier")


def p1_loader(a, pfx, issue_kv, issue_q):
    n = 12
    a.e("""
    s_mov_b32 s45, 0
    s_mov_b32 s49, 0
    """)
    a.label(f"{pfx}_ld")
    a.e(f"""
    s_cmp_ge_u32 s49, 4
    s_cbranch_scc1 {pfx}_q
    """)
    issue_kv()
    a.e(f"s_branch {pfx}_nx")
    a.label(f"{pfx}_q")
    issue_q()
    a.e("""
    s_add_u32 s59, s59, 1
    s_and_b32 s59, s59, 15
    """)
    a.label(f"{pfx}_nx")
    a.e(f"""
    s_add_u32 s45, s45, {P1_SLOT}
    s_cmp_eq_u32 s45, {P1_SLOT*P1_NS}
    s_cselect_b32 s45, 0, s45
    s_add_u32 s49, s49, 1
    s_cmp_lt_u32 s49, {P1_NS-1}
    s_cbranch_scc1 {pfx}_ld
    s_cmp_lt_u32 s49, 20
    s_waitcnt vmcnt({n*(P1_NS-2)})
    s_barrier
    s_cbranch_scc1 {pfx}_ld
    """)
    for i in range(P1_NS - 3, -1, -1):
        a.e(f"""
        s_waitcnt vmcnt({n*i})
        s_barrier
        """)
    a.e("s_barrier")


def gen():
    a = Asm()
    a.label(NAME + "_kernel")
    a.e("""
    s_cmp_ge_u32 s2, 256
    s_cbranch_scc1 K_end
    """)
    stamp(a, 0, True, False)
    stamp(a, 1, False, True)
    if PROF:
        a.e(f"s_mov_b32 s{PS0+10}, s{PS0+2}")
    a.e(f"""
    s_load_dwordx8 s[4:11], s[0:1], 0
    s_load_dwordx16 s[16:31], s[0:1], 48
    s_load_dwordx2 s[12:13], s[0:1], 32
    v_lshrrev_b32 v2, 6, v0
    v_and_b32 v1, 63, v0
    s_and_b32 s53, s2, 7
    v_readfirstlane_b32 s{S_W}, v2
    v_lshlrev_b32 v3, 4, v1
    s_lshr_b32 s54, s2, 3
    s_lshr_b32 s40, s53, 1
    s_lshl_b32 s40, s40, 3
    s_and_b32 s55, s54, 7
    s_add_u32 s40, s40, s55              ; tb
    s_and_b32 s43, s53, 1
    s_lshl_b32 s41, s43, 2
    s_lshr_b32 s44, s54, 3
    s_add_u32 s41, s41, s44              ; cb
    s_lshl_b32 s59, s55, 1
    s_mul_i32 s{S_UNIT}, s53, 28
    s_add_u32 s{S_UNIT}, s{S_UNIT}, s54
    s_cmp_lt_u32 s54, 28
    s_cselect_b32 s{S_HAS}, 1, 0
    s_cmp_ge_u32 s{S_W}, 2
    s_cbranch_scc1 K_notld
    """)
    w_voffs(a)
    a.e(f"""
    s_waitcnt lgkmcnt(0)
    s_cmp_eq_u32 s43, 0
    s_cselect_b32 s{R_B}, s{P_WK}, s{P_WV}
    s_cselect_b32 s{R_B+1}, s{P_WK+1}, s{P_WV+1}
    s_mov_b32 s{R_B+2}, 0x10000
    s_mov_b32 s{R_B+3}, 0x00020000
    """)
    srd(a, R_C, P_WQ, 1024 * 1024 * 2)
    srd(a, R_WS, P_WS, WS_BYTES)
    a.e(f"""
    s_cmp_eq_u32 s{S_W}, 0
    s_cbranch_scc1 K_ldx
    """)

    def kvgroup(g):
        a.e(f"s_add_u32 m0, s45, {0x2000 + g*4096}")
        a.e(f"s_lshl_b32 s47, s49, 14")
        if g:
            a.e(f"s_add_u32 s47, s47, {g*4096}")
        for q in range(4):
            a.e(f"buffer_load_dwordx4 v3, s[{R_B}:{R_B+3}], s47 offen offset:{q*1024} lds")

    def wgroup(g, first):
        a.e(f"s_add_u32 m0, s45, {0x2000 + g*4096}")
        a.e(first)
        for q in range(4):
            a.e(f"buffer_load_dwordx4 v{8+q}, s[{R_C}:{R_C+3}], s47 offen offset:{q*1024} lds")

    def w_kv():
        for g in range(3):
            kvgroup(g)

    def w_q():
        for g in range(3):
            wgroup(g, "s_lshl_b32 s47, s59, 17" if g == 0 else "s_add_u32 s47, s47, 0x8000")
    p1_loader(a, "P1w", w_kv, w_q)
    a.e("s_branch K_A1")

    a.label("K_ldx")
    srd(a, R_A, P_X, 2048 * 1024 * 2)
    a.e(f"""
    v_lshrrev_b32 v12, 5, v1             ; hi
    s_lshl_b32 s53, s{S_TB}, 6
    s_lshl_b32 s54, s44, 4
    s_add_u32 s54, s54, s53
    v_add_u32 v14, s54, v12
    v_lshlrev_b32 v14, 11, v14
    v_and_b32 v15, 31, v1
    v_xor_b32 v15, v15, v12
    v_lshl_add_u32 v16, v15, 4, v14
    """)
    for q in range(1, 8):
        a.e(f"v_xor_b32 v{16+q}, {2*q*16}, v16")
    for q in range(1, 8):
        a.e(f"v_add_u32 v{16+q}, {q*4096 - (q%4)*1024}, v{16+q}")

    def x_kv():
        a.e("""
        s_mov_b32 m0, s45
        s_lshl_b32 s46, s49, 9
        """)
        for q in range(4):
            a.e(f"buffer_load_dwordx4 v{16+q}, s[{R_A}:{R_A+3}], s46 offen offset:{q*1024} lds")
        a.e("""
        s_add_u32 m0, s45, 0x1000
        s_nop 0
        """)
        for q in range(4):
            a.e(f"buffer_load_dwordx4 v{20+q}, s[{R_A}:{R_A+3}], s46 offen offset:{q*1024} lds")
        kvgroup(3)

    def x_q():
        a.e("""
        s_mov_b32 m0, s45
        s_lshl_b32 s46, s59, 7
        """)
        for q in range(4):
            a.e(f"buffer_load_dwordx4 v{4+q}, s[{R_A}:{R_A+3}], s46 offen offset:{q*1024} lds")
        a.e("""
        s_add_u32 m0, s45, 0x1000
        s_add_u32 s46, s46, 0x10000
        """)
        for q in range(4):
            a.e(f"buffer_load_dwordx4 v{4+q}, s[{R_A}:{R_A+3}], s46 offen offset:{q*1024} lds")
        a.e("s_lshl_b32 s47, s59, 17")
        wgroup(3, "s_add_u32 s47, s47, 0x18000")
    a.e("""
    v_lshrrev_b32 v14, 3, v1
    v_add_u32 v14, s53, v14
    v_lshlrev_b32 v14, 11, v14
    v_xor_b32 v15, v13, v1
    v_and_b32 v15, 7, v15
    v_lshl_add_u32 v4, v15, 4, v14
    v_xor_b32 v15, 4, v15                ; odd q
    v_lshl_add_u32 v5, v15, 4, v14
    v_add_u32 v5, 0x3c00, v5             ; + 16384 - 1024
    v_add_u32 v6, 0x7800, v4
    v_add_u32 v7, 0x7800, v5
    """)
    p1_loader(a, "P1x", x_kv, x_q)
    a.e("s_branch K_A0")

    a.label("K_notld")
    a.e(f"""
    s_cmp_ge_u32 s{S_W}, 4
    s_cbranch_scc1 K_comp
    """)
    gen_kv(a)
    gen_compute(a)
    gen_aux(a)
    gen_fallback(a)
    a.label("K_codeend")
    return a


def kv_issue(a):
    for g in range(4):
        a.e(f"s_add_u32 m0, s45, {g*4096}")
        a.e("s_nop 0")
        for q in range(4):
            a.e(f"buffer_load_dwordx4 v3, s[32:35], s46 offen offset:{q*1024} sc1 lds")
        a.e("s_add_u32 s46, s46, 0x1000")


def kfl_load(a):
    for q in range(4):
        a.e(f"buffer_load_dwordx4 {vr(32+4*q,4)}, v3, s[32:35], s50 offen offset:{q*1024} sc1")


def kfl_check(a):
    a.e("v_xor_b32 v32, s14, v32")
    a.e("v_xor_b32 v33, s15, v33")
    for i in range(2, 16):
        a.e(f"v_xor_b32 v{32+i}, s{14+i%2}, v{32+i}")
    a.e("v_or3_b32 v32, v32, v33, v34")
    for i in range(3, 15, 2):
        a.e(f"v_or3_b32 v32, v{32+i}, v{33+i}, v32")
    a.e("""
    v_or_b32 v32, v47, v32
    v_cmp_ne_u32 vcc, 0, v32
    """)


def gen_kv(a):
    a.e(f"""
    s_sub_u32 s60, s{S_W}, 2             ; ct
    v_mov_b32 v24, -1
    v_mov_b32 v25, -1
    v_mov_b32 v26, -1
    v_mov_b32 v27, -1
    v_mov_b32 v28, 0
    s_waitcnt lgkmcnt(0)
    """)
    srd(a, R_WS, P_WS, WS_BYTES)
    srd(a, R_A, P_DBG, 256)
    a.e(f"""
    s_cmp_eq_u32 s60, 1
    s_cbranch_scc1 KV_w3
    s_cmp_lg_u32 s2, 0
    s_cbranch_scc1 KV_notag
    s_memrealtime s[14:15]
    s_waitcnt lgkmcnt(0)
    s_or_b32 s14, s14, 1
    v_mov_b32 v30, s14
    v_mov_b32 v31, s15
    s_mov_b64 exec, 1
    buffer_store_dwordx2 v[30:31], v28, s[{R_A}:{R_A+3}], 0 offen sc1
    s_mov_b64 exec, -1
    """)
    a.label("KV_notag")
    a.e(f"""
    s_cmp_lg_u32 s43, 0
    s_cbranch_scc1 KV_norg
    s_mov_b32 m0, {L_RG}
    """)
    srd(a, R_B, P_WR, 2048)
    srd(a, R_C, P_GW, 2048)
    a.e(f"""
    buffer_load_dwordx4 v3, s[{R_B}:{R_B+3}], 0 offen lds
    buffer_load_dwordx4 v3, s[{R_B}:{R_B+3}], 0 offen offset:1024 lds
    s_mov_b32 m0, {L_RG+2048}
    s_nop 0
    buffer_load_dwordx4 v3, s[{R_C}:{R_C+3}], 0 offen lds
    buffer_load_dwordx4 v3, s[{R_C}:{R_C+3}], 0 offen offset:1024 lds
    """)
    a.label("KV_norg")
    a.e(f"""
    s_lshl_b32 s57, s2, 12
    s_add_u32 s57, s57, {WS_PX}
    """)
    for q in range(4):
        a.e(f"buffer_store_dwordx4 v[24:27], v3, s[32:35], s57 offen offset:{q*1024} sc1")
    a.e("""
    s_waitcnt vmcnt(4)
    s_branch KV_go
    """)
    a.label("KV_w3")
    a.e(f"""
    s_getpc_b64 s[50:51]
    KV_pc:
    v_lshlrev_b32 v29, 7, v1
    global_load_dword v32, v29, s[50:51]
    v_add_u32 v29, 0x2000, v29
    v_min_u32 v29, K_fallback-KV_pc, v29
    global_load_dword v33, v29, s[50:51]
    v_mov_b32 v29, 0
    v_mov_b32 v30, 0
    v_mov_b32 v31, 0
    v_add_u32 v22, {L_FL}, v3
    v_mov_b32 v21, {F_READY}
    ds_write_b128 v22, v[28:31]
    ds_write_b128 v21, v[28:31]
    s_lshl_b32 s57, s2, 10
    s_add_u32 s57, s57, {WS_YF}
    buffer_store_dwordx4 v[24:27], v3, s[32:35], s57 offen sc1
    v_lshlrev_b32 v22, 2, v1
    s_lshl_b32 s57, s2, 8
    s_add_u32 s57, s57, {WS_HX}
    buffer_store_dword v24, v22, s[32:35], s57 offen sc1
    """)
    a.label("KV_go")
    a.e(f"""
    v_and_b32 v10, 15, v1                ; row / n
    v_lshrrev_b32 v11, 4, v1             ; G
    v_xor_b32 v12, v10, v11
    v_lshlrev_b32 v12, 4, v12
    v_lshl_add_u32 v4, v10, 9, v12
    v_xor_b32 v5, 64, v4
    v_xor_b32 v6, 128, v4
    v_xor_b32 v7, 192, v4
    v_bfe_u32 v12, v1, 2, 2              ; r
    v_lshl_add_u32 v12, v11, 3, v12      ; 8G + r
    v_lshlrev_b32 v12, 6, v12
    v_and_b32 v13, 3, v1
    v_lshl_add_u32 v12, v13, 3, v12
    s_lshl_b32 s57, s60, 5
    s_add_u32 s57, s57, 0x2000
    v_add_u32 v8, s57, v12
    v_and_b32 v12, 1, v1
    v_lshlrev_b32 v12, 11, v12
    v_lshl_add_u32 v12, v11, 4, v12
    v_add_u32 v9, {L_RG}, v12
    """)
    for i in range(8):
        a.e(f"v_mov_b32 v{16+i}, 0")
    a.e("""
    s_mov_b32 s49, 0
    s_cmp_lg_u32 s43, 0
    s_cbranch_scc1 KV_vloop
    """)
    for typ in ("k", "v"):
        a.label(f"KV_{typ}loop")
        a.e("s_waitcnt lgkmcnt(0)")
        a.e("s_barrier")
        for half in range(2):
            for i in range(4):
                ks = 4 * half + i
                a.e(f"""
                ds_read_b128 {vr(48+4*i,4)}, v{4+i} offset:{half*256}
                ds_read_b64_tr_b16 {vr(64+4*i,2)}, v8 offset:{ks*2048}
                ds_read_b64_tr_b16 {vr(66+4*i,2)}, v8 offset:{ks*2048+256}
                """)
            for i in range(4):
                a.e(f"s_waitcnt lgkmcnt({9-3*i})")
                a.e(mfma16(16, 64 + 4 * i, 48 + 4 * i, 16) if typ == "k" else mfma16(16, 48 + 4 * i, 64 + 4 * i, 16))
            if typ == "k":
                for i in range(4):
                    a.e(f"ds_read_b128 {vr(80+4*i,4)}, v9 offset:{(4*half+i)*64}")
                for i in range(4):
                    a.e(f"s_waitcnt lgkmcnt({3-i})")
                    a.e(mfma16(20, 80 + 4 * i, 48 + 4 * i, 20))
        for r in (4, 5, 6, 7, 8):
            a.e(f"v_add_u32 v{r}, {P1_SLOT}, v{r}")
        a.e(f"""
        v_add_u32 v9, 512, v9
        s_add_u32 s49, s49, 1
        s_cmp_lt_u32 s49, 4
        s_cbranch_scc1 KV_{typ}loop
        """)
        if typ == "k":
            a.e("s_branch KV_store")
    a.label("KV_store")
    a.e(f"""
    buffer_load_dwordx2 v[30:31], v28, s[{R_A}:{R_A+3}], 0 offen sc1
    v_and_b32 v12, 1, v11
    v_lshl_add_u32 v12, v12, 5, v10
    v_lshlrev_b32 v12, 4, v12
    v_lshrrev_b32 v13, 1, v11
    v_lshl_add_u32 v12, v13, 3, v12
    s_and_b32 s54, s44, 1
    s_cmp_eq_u32 s43, 0
    s_cselect_b32 s55, s60, s54
    s_cselect_b32 s56, s54, s60
    s_lshl_b32 s55, s55, 10
    s_lshl_b32 s56, s56, 8
    s_add_u32 s55, s55, s56
    s_lshl_b32 s56, s43, 11
    s_add_u32 s55, s55, s56
    s_lshl_b32 s56, s{S_TB}, 1
    s_lshr_b32 s57, s44, 1
    s_add_u32 s56, s56, s57
    s_lshl_b32 s56, s56, 12
    s_add_u32 s55, s55, s56
    s_add_u32 s55, s55, {WS_KVF}
    v_cvt_pk_bf16_f32 v14, v16, v17
    v_cvt_pk_bf16_f32 v15, v18, v19
    buffer_store_dwordx2 v[14:15], v12, s[32:35], s55 offen sc1
    s_or_b32 s54, s43, s60
    s_cmp_lg_u32 s54, 0
    s_cbranch_scc1 KV_nokey
    s_mov_b64 exec, 0xffff
    s_lshl_b32 s57, s{S_TB}, 6
    s_lshl_b32 s56, s44, 4
    s_add_u32 s57, s57, s56
    v_add_u32 v12, s57, v1               ; token
    v_cvt_pk_bf16_f32 v36, v20, v20
    v_mul_f32 v21, {fbits(-LOG2E):#x}, v21
    v_and_b32 v36, 0xffff0000, v36
    v_exp_f32 v21, v21
    v_ashrrev_i32 v37, 31, v36
    v_or_b32 v37, 0x80000000, v37
    v_add_f32 v21, 1.0, v21
    v_xor_b32 v36, v36, v37
    v_rcp_f32 v21, v21
    v_and_b32 v36, 0xffff0000, v36
    v_sub_u32 v37, 2047, v12
    v_or_b32 v36, v36, v37
    v_lshlrev_b32 v12, 2, v12
    s_mov_b32 s57, {WS_KEY}
    s_mov_b32 s58, {WS_G}
    buffer_store_dword v36, v12, s[32:35], s57 offen sc1
    buffer_store_dword v21, v12, s[32:35], s58 offen sc1
    s_mov_b64 exec, -1
    """)
    a.label("KV_nokey")
    stamp(a, 2)
    barriers(a, 3)
    a.e("s_mov_b32 s49, 0")
    a.label("KV_tag")
    a.e(f"""
    s_waitcnt vmcnt(0)
    v_readfirstlane_b32 s14, v30
    v_readfirstlane_b32 s15, v31
    s_add_u32 s49, s49, 1
    s_cmp_lg_u32 s14, 0
    s_cbranch_scc1 KV_havetag
    s_cmp_ge_u32 s49, {SPIN}
    s_cbranch_scc1 KV_havetag
    buffer_load_dwordx2 v[30:31], v28, s[{R_A}:{R_A+3}], 0 offen sc1
    s_branch KV_tag
    """)
    a.label("KV_havetag")
    a.e(f"""
    s_lshl_b32 s57, s2, 4
    s_lshl_b32 s56, s60, 3
    s_add_u32 s57, s57, s56
    s_add_u32 s57, s57, {WS_KFL}
    s_mov_b64 exec, 1
    buffer_store_dwordx2 v[30:31], v28, s[32:35], s57 offen sc1
    s_mov_b64 exec, -1
    """)
    stamp(a, 3)
    a.e("""
    s_cmp_eq_u32 s60, 1
    s_cbranch_scc1 KV_ring
    """)
    barriers(a, 14)
    a.e("s_branch K_A2")
    a.label("KV_ring")
    a.e(f"""
    s_mov_b32 s50, {WS_KFL}
    s_mov_b32 s45, {RING_START}
    s_mov_b32 s46, {WS_KVF}
    v_and_b32 v20, 3, v1
    v_lshlrev_b32 v20, 8, v20
    v_add_u32 v20, {L_FL}, v20
    v_mov_b32 v21, {F_READY}
    """)
    barriers(a, 6)
    kfl_load(a)
    barriers(a, 3)
    a.e("s_waitcnt vmcnt(0)")
    kfl_check(a)
    a.e("""
    s_mov_b32 s63, 0
    s_mov_b32 s49, 0
    s_cbranch_vccnz KV_late
    """)
    a.label("KV_first2")
    kv_issue(a)
    a.e(f"""
    s_add_u32 s45, s45, {RING_SLOT}
    s_add_u32 s49, s49, 1
    s_cmp_lt_u32 s49, 2
    s_cbranch_scc1 KV_first2
    s_cmp_lg_u32 s63, 0
    s_cbranch_scc1 KV_run
    """)
    barriers(a, 4)
    a.e("""
    v_mov_b32 v22, 2
    s_waitcnt vmcnt(0)
    ds_write_b32 v21, v22
    s_barrier
    s_branch KV_run2
    """)
    a.label("KV_late")
    barriers(a, 5)
    a.label("KV_latepoll")
    kfl_load(a)
    a.e(f"""
    s_add_u32 s63, s63, 1
    s_waitcnt vmcnt(0)
    """)
    kfl_check(a)
    a.e(f"""
    s_cmp_ge_u32 s63, {SPIN}
    s_cbranch_scc1 KV_first2
    s_cbranch_vccnz KV_latepoll
    s_branch KV_first2
    """)
    a.label("KV_run")
    a.e("""
    v_mov_b32 v22, 1
    s_waitcnt vmcnt(16)
    ds_write_b32 v21, v22
    """)
    a.label("KV_run2")
    stamp(a, 4)
    a.e(f"s_mov_b32 s45, {L_RING}")
    minprog = f"""
    v_readlane_b32 s58, v23, 0
    v_readlane_b32 s57, v23, 1
    v_readlane_b32 s56, v23, 2
    v_readlane_b32 s55, v23, 3
    s_min_u32 s58, s58, s57
    s_min_u32 s56, s56, s55
    s_min_u32 s58, s58, s56
    s_add_u32 s58, s58, {RING_R}
    """
    a.label("KV_go2")
    a.e("ds_read_b32 v23, v20")
    kv_issue(a)
    a.e(f"""
    s_add_u32 s45, s45, {RING_SLOT}
    s_cmp_eq_u32 s45, {L_RING + RING_SLOT*RING_R}
    s_cselect_b32 s45, {L_RING}, s45
    v_mov_b32 v22, s49
    s_add_u32 s49, s49, 1
    s_waitcnt vmcnt(16) lgkmcnt(0)
    ds_write_b32 v21, v22
    """)
    a.e(minprog)
    a.e("""
    s_min_u32 s58, s58, 16
    s_cmp_lt_u32 s49, s58
    s_cbranch_scc1 KV_go2
    s_cmp_ge_u32 s49, 16
    s_cbranch_scc1 KV_done
    """)
    a.label("KV_poll")
    a.e("""
    s_sleep 8
    ds_read_b32 v23, v20
    s_waitcnt lgkmcnt(0)
    """)
    a.e(minprog)
    a.e("""
    s_cmp_lt_u32 s49, s58
    s_cbranch_scc1 KV_go2
    s_branch KV_poll
    """)
    a.label("KV_done")
    a.e(f"""
    v_mov_b32 v22, 16
    s_waitcnt vmcnt(0)
    ds_write_b32 v21, v22
    s_lshl_b32 s50, s{S_TB}, 8
    s_add_u32 s50, s50, {WS_OFL}
    s_lshl_b32 s46, s{S_TB}, 17
    s_add_u32 s46, s46, {WS_OF}
    s_add_u32 s47, s46, 0x10000
    v_and_b32 v4, 31, v1
    v_lshlrev_b32 v4, 3, v4
    s_mov_b32 s49, 0
    s_waitcnt lgkmcnt(0)
    s_barrier
    """)
    a.label("O_poll")
    a.e(f"""
    buffer_load_dwordx2 v[6:7], v4, s[32:35], s50 offen sc1
    s_add_u32 s49, s49, 1
    s_waitcnt vmcnt(0)
    v_xor_b32 v6, s14, v6
    v_xor_b32 v7, s15, v7
    v_or_b32 v6, v6, v7
    v_cmp_ne_u32 vcc, 0, v6
    s_cmp_ge_u32 s49, {SPIN}
    s_cbranch_scc1 O_ready
    s_cbranch_vccnz O_poll
    """)
    a.label("O_ready")
    stamp(a, 5)
    a.e(f"""
    s_mov_b32 s45, {L_ORING}
    s_mov_b32 s49, 0
    """)
    a.label("O_ld")
    a.e("""
    s_mov_b32 m0, s45
    s_add_u32 s49, s49, 1
    """)
    for q in range(4):
        a.e(f"buffer_load_dwordx4 v3, s[32:35], s46 offen offset:{q*1024} sc1 lds")
    a.e("""
    s_add_u32 m0, s45, 0x1000
    s_add_u32 s46, s46, 0x1000
    """)
    for q in range(4):
        a.e(f"buffer_load_dwordx4 v3, s[32:35], s47 offen offset:{q*1024} sc1 lds")
    a.e(f"""
    s_add_u32 s47, s47, 0x1000
    s_add_u32 s45, s45, 0x2000
    s_cmp_eq_u32 s45, {L_ORING + 32768}
    s_cselect_b32 s45, {L_ORING}, s45
    s_cmp_lt_u32 s49, 3
    s_cbranch_scc1 O_ld
    s_cmp_lt_u32 s49, 16
    s_waitcnt vmcnt(16)
    s_barrier
    s_cbranch_scc1 O_ld
    s_waitcnt vmcnt(8)
    s_barrier
    s_waitcnt vmcnt(0)
    s_barrier
    s_branch K_fin
    """)


def gen_compute(a):
    a.label("K_comp")
    SETS = [dict(X0=160, X1=176, W=192), dict(X0=208, X1=224, W=240)]
    ACC = [24, 40]
    AX = [12, 13, 14, 15]
    a.e(f"""
    s_sub_u32 s60, s{S_W}, 4             ; hh
    v_and_b32 v15, 15, v1                ; i
    v_and_b32 v12, 31, v1                ; l32
    v_lshrrev_b32 v14, 5, v1             ; hf
    v_lshlrev_b32 v18, 7, v12            ; row*128
    v_lshrrev_b32 v19, 1, v12
    v_and_b32 v19, 7, v19
    v_xor_b32 v19, v19, v14              ; hf ^ f
    v_lshl_add_u32 v8, v19, 4, v18
    v_lshrrev_b32 v18, 2, v15            ; r
    v_and_b32 v19, 3, v15                ; c
    v_lshl_add_u32 v20, v14, 3, v18      ; 8hf + r
    v_bfe_u32 v21, v1, 4, 1              ; g&1
    s_lshl_b32 s53, s60, 2
    v_lshlrev_b32 v22, 1, v21
    v_lshrrev_b32 v23, 1, v19
    v_add3_u32 v22, v22, v23, s53        ; chunk
    v_lshlrev_b32 v23, 2, v18
    v_xor_b32 v22, v22, v23
    v_lshlrev_b32 v22, 4, v22
    v_lshl_add_u32 v22, v20, 8, v22
    v_and_b32 v23, 1, v19
    v_lshl_add_u32 v22, v23, 3, v22
    v_add_u32 v9, 0x2000, v22
    v_and_b32 v4, 1, v1
    v_mov_b32 v5, 0x4444
    v_mov_b32 v6, 0xeeee
    v_cmp_eq_u32 vcc, 1, v4
    v_and_b32 v4, 6, v1
    v_mov_b32 v7, 0x3f803f80
    v_cndmask_b32 v{AIDX}, v5, v6, vcc
    v_cmp_eq_u32 vcc, 0, v4
    v_cmp_eq_u32 s[50:51], 4, v4
    s_lshl_b32 s52, s60, 8
    v_cndmask_b32 v{ASUM}, 0, v7, vcc
    v_cndmask_b32 v{ASUM+1}, 0, v7, vcc
    v_cndmask_b32 v{ASUM+2}, 0, v7, s[50:51]
    v_cndmask_b32 v{ASUM+3}, 0, v7, s[50:51]
    s_add_u32 s52, s52, {L_FL}
    v_lshl_add_u32 v{VPA}, v1, 2, s52
    v_mov_b32 v{VPV}, 1
    v_mov_b32 v{VFL}, {F_READY}
    v_add_u32 v{VCUR}, {RING_START}, v3
    v_add_u32 v{VNEXT}, {RING_START+RING_SLOT}, v3
    s_mov_b32 s48, {RING_START+RING_SLOT}
    v_mov_b32 v12, v8
    v_mov_b32 v16, v9
    v_xor_b32 v13, 32, v8
    v_xor_b32 v14, 64, v8
    v_xor_b32 v15, 0x60, v8
    s_mov_b32 s44, 0
    s_mov_b32 s49, 0
    s_waitcnt lgkmcnt(0)
    """)
    srd(a, R_WS, P_WS, WS_BYTES)
    srd(a, R_A, P_DBG, 256)
    a.e("s_barrier")
    for r in list(range(24, 56)) + list(range(OA, OA + 40)):
        a.e(f"v_mov_b32 v{r}, 0")
    a.e("s_barrier")
    for r in list(range(PB, PB + 8)) + list(range(VB[1], VB[1] + 8)) + list(range(208, 256)):
        a.e(f"v_mov_b32 v{r}, 0")
    barriers(a, 2)
    a.label("P1_loop")
    for par in range(2):
        cur, prev = SETS[par], SETS[1 - par]
        a.e("s_barrier")
        mms = []
        for i in range(4):
            mms.append(mfma32(ACC[0], prev["W"] + 4 * i, prev["X0"] + 4 * i, ACC[0]))
            mms.append(mfma32(ACC[1], prev["W"] + 4 * i, prev["X1"] + 4 * i, ACC[1]))
        for i in range(4):
            a.e(mms[i])
            a.e(f"""
            ds_read_b128 {vr(cur['X0']+4*i,4)}, v{AX[i]}
            ds_read_b128 {vr(cur['X1']+4*i,4)}, v{AX[i]} offset:4096
            ds_read_b64_tr_b16 {vr(cur['W']+4*i,2)}, v16 offset:{i*4096}
            ds_read_b64_tr_b16 {vr(cur['W']+4*i+2,2)}, v16 offset:{i*4096+1024}
            """)
            if i == 2:
                a.e("s_waitcnt lgkmcnt(8)")
        a.e(mms[4])
        a.e(f"""
        s_add_u32 s44, s44, {P1_SLOT}
        s_cmp_eq_u32 s44, {P1_SLOT*P1_NS}
        s_cselect_b32 s44, 0, s44
        """)
        a.e(mms[5])
        a.e("""
        v_add_u32 v12, s44, v8
        v_add_u32 v16, s44, v9
        """)
        a.e(mms[6])
        a.e("""
        v_xor_b32 v13, 32, v12
        v_xor_b32 v14, 64, v12
        v_xor_b32 v15, 0x60, v12
        """)
        a.e(mms[7])
        a.e("""
        s_add_u32 s49, s49, 1
        s_waitcnt lgkmcnt(0)
        """)
    a.e("""
    s_cmp_lt_u32 s49, 16
    s_cbranch_scc1 P1_loop
    s_barrier
    """)
    for t in range(2):
        for i in range(4):
            a.e(mfma32(ACC[t], SETS[1]["W"] + 4 * i, SETS[1]["X0" if t == 0 else "X1"] + 4 * i, ACC[t]))
    stamp(a, 2)
    a.e(f"""
    s_mov_b32 s57, {fbits(QSCALE):#x}
    s_lshl_b32 s45, s{S_TB}, 6
    s_lshl_b32 s46, s{S_CB}, 2
    s_add_u32 s45, s45, s46
    s_add_u32 s45, s45, s60
    s_lshl_b32 s45, s45, 11
    s_add_u32 s46, s45, 0x10000          ; tile B
    s_mov_b32 s49, 2
    """)
    a.label("K_first")
    a.e(f"""
    ds_read_b32 v4, v{VFL}
    s_waitcnt lgkmcnt(0)
    v_readfirstlane_b32 s47, v4
    s_nop 0
    s_cmp_lg_u32 s47, 0
    s_cbranch_scc0 K_first
    ds_read_b128 {vr(KB[0],4)}, v{VCUR}
    ds_read_b128 {vr(KB[0]+4,4)}, v{VCUR} offset:1024
    ds_read_b128 {vr(KB[1],4)}, v{VCUR} offset:4096
    ds_read_b128 {vr(KB[1]+4,4)}, v{VCUR} offset:5120
    ds_read_b128 {vr(VB[0],4)}, v{VCUR} offset:2048
    ds_read_b128 {vr(VB[0]+4,4)}, v{VCUR} offset:3072
    """)
    for t in range(2):
        for i in range(16):
            a.e(f"v_mul_f32 v{ACC[t]+i}, s57, v{ACC[t]+i}")
        for i in range(8):
            a.e(f"v_cvt_pk_bf16_f32 v{[QA,QB][t]+i}, v{ACC[t]+2*i}, v{ACC[t]+1+2*i}")
        if t == 0:
            a.e("s_waitcnt lgkmcnt(0)")
            a.e("s_nop 0")
            a.e(mfma32(SA, KB[0], QA, None))
            a.e(mfma32(SA, KB[0] + 4, QA + 4, SA))
    a.e(f"""
    v_and_b32 v4, 31, v1
    v_lshlrev_b32 v4, 2, v4
    v_mov_b32 v5, 0
    s_lshl_b32 s52, s{S_TB}, 8
    s_add_u32 s52, s52, {WS_G}
    buffer_load_dword v{VG0}, v4, s[32:35], s52 offen sc1
    buffer_load_dword v{VG1}, v4, s[32:35], s52 offen offset:128 sc1
    buffer_load_dwordx2 {vr(VTAG,2)}, v5, s[{R_A}:{R_A+3}], 0 offen sc1
    """)
    if DBGQ:
        a.e(f"""
        buffer_store_dwordx4 {vr(QA,4)}, v3, s[32:35], s45 offen
        buffer_store_dwordx4 {vr(QA+4,4)}, v3, s[32:35], s45 offen offset:1024
        buffer_store_dwordx4 {vr(QB,4)}, v3, s[32:35], s46 offen
        buffer_store_dwordx4 {vr(QB+4,4)}, v3, s[32:35], s46 offen offset:1024
        """)
    stamp(a, 3)
    a.e(".p2align 6")
    a.label("K_loop")
    for j in range(4):
        p, n = j % 2, (j + 1) % 2
        ka = (VCUR, (j + 2) * 4096) if j < 2 else (VNEXT, (j - 2) * 4096)
        va = (VCUR, (j + 1) * 4096 + 2048) if j < 3 else (VNEXT, 2048)
        attn_phase(a, SA, PA, [
            mfma32(SB, KB[p], QB, None),
            mfma32(SB, KB[p] + 4, QB + 4, SB),
            mfma32(OB, VB[n], PB, OB),
            mfma32(OB, VB[n] + 4, PB + 4, OB),
            smf(LB, PB)],
            [[f"ds_read_b128 {vr(KB[p],4)}, v{ka[0]} offset:{ka[1]}"],
             [f"ds_read_b128 {vr(KB[p]+4,4)}, v{ka[0]} offset:{ka[1]+1024}"],
             [f"ds_read_b128 {vr(VB[n],4)}, v{va[0]} offset:{va[1]}"],
             [f"ds_read_b128 {vr(VB[n]+4,4)}, v{va[0]} offset:{va[1]+1024}"],
             ["s_waitcnt lgkmcnt(4)"]])
        fill = [[], [], [], [], []]
        if j == 0:
            fill[0] = [f"ds_read_b32 v4, v{VFL}"]
            fill[1] = [f"s_add_u32 s48, s48, {RING_SLOT}"]
            fill[2] = [f"s_cmp_eq_u32 s48, {L_RING + RING_R*RING_SLOT}"]
            fill[3] = [f"s_cselect_b32 s48, {L_RING}, s48"]
        if j == 1:
            fill[0] = ["v_readfirstlane_b32 s47, v4"]
            fill[2] = ["s_cmp_ge_u32 s47, s49"]
            fill[3] = ["s_cbranch_scc0 K_poll", "K_ok:"]
        if j == 2:
            fill[0] = [f"ds_write_b32 v{VPA}, v{VPV}"]
            fill[1] = ["s_add_u32 s49, s49, 1"]
        if j == 3:
            fill[0] = [f"v_mov_b32 v{VCUR}, v{VNEXT}", f"v_add_u32 v{VNEXT}, s48, v3", f"v_add_u32 v{VPV}, 1, v{VPV}"]
            fill[3] = ["s_cmp_lt_u32 s49, 18"]
        attn_phase(a, SB, PB, [
            mfma32(SA, KB[n], QA, None),
            mfma32(SA, KB[n] + 4, QA + 4, SA),
            mfma32(OA, VB[p], PA, OA),
            mfma32(OA, VB[p] + 4, PA + 4, OA),
            smf(LA, PA)], fill)
    a.e("s_cbranch_scc1 K_loop")
    a.e("s_waitcnt lgkmcnt(0)")
    stamp(a, 4)
    a.e(mfma32(OB, VB[1], PB, OB))
    a.e(mfma32(OB, VB[1] + 4, PB + 4, OB))
    a.e(smf(LB, PB))
    a.e(f"""
    s_mov_b32 s50, 0x5f800000            ; 2^64
    s_mov_b32 s51, 0x1f800000            ; 2^-64
    s_add_u32 s45, s45, {WS_OF}
    s_add_u32 s46, s46, {WS_OF}
    s_nop 3
    """)
    softmax_check(a, OA, LA, "K_fallback")
    softmax_check(a, OB, LB, "K_fallback")
    a.label("K_norm")
    for (O, L, P, so) in ((OA, LA, PA, 45), (OB, LB, PB, 46)):
        a.e(f"""
        v_rcp_f32 v6, v{L}
        s_nop 0
        """)
        for i in range(16):
            a.e(f"v_mul_f32 v{O+i}, v{O+i}, v6")
        for i in range(8):
            a.e(f"v_cvt_pk_bf16_f32 v{P+i}, v{O+2*i}, v{O+2*i+1}")
        a.e(f"""
        buffer_store_dwordx4 {vr(P,4)}, v3, s[32:35], s{so} offen sc1
        buffer_store_dwordx4 {vr(P+4,4)}, v3, s[32:35], s{so} offen offset:1024 sc1
        """)
    SETS = [dict(X0=160, X1=176, W=192), dict(X0=208, X1=224, W=240)]
    ACC = [72, 88]
    B = [104, 120]
    YA = [24, 40]
    YF_ = 160
    SELB = [56, 60]
    lane_parts(a)
    a.e(f"""
    s_lshl_b32 s50, s{S_TB}, 8
    s_lshl_b32 s55, s{S_CB}, 2
    s_add_u32 s55, s55, s60              ; ct
    s_lshl_b32 s51, s55, 3
    s_add_u32 s50, s50, s51
    s_add_u32 s50, s50, {WS_OFL}
    v_lshl_add_u32 v20, v7, 2, v8        ; 4hf + r
    v_lshlrev_b32 v22, 1, v6             ; (g&1)*2
    v_lshrrev_b32 v23, 1, v9             ; c>>1
    s_lshl_b32 s53, s60, 2
    v_add3_u32 v22, v22, v23, s53        ; chunk
    v_lshlrev_b32 v23, 2, v8
    v_xor_b32 v22, v22, v23
    v_lshlrev_b32 v22, 4, v22
    v_lshl_add_u32 v22, v20, 8, v22
    v_and_b32 v23, 1, v9
    v_lshl_add_u32 v9, v23, 3, v22
    v_mov_b32 v4, 0
    v_and_b32 v10, 31, v1
    s_lshl_b32 s56, s{S_TB}, 6
    v_add_u32 v11, s56, v10
    s_lshl_b32 s72, s55, 6
    s_add_u32 s73, s72, 0x10000
    v_lshlrev_b32 v6, 11, v11
    v_lshl_add_u32 v6, v7, 4, v6
    v_add_u32 v16, s53, v7
    v_and_b32 v17, 15, v10
    v_xor_b32 v16, v16, v17
    v_lshlrev_b32 v16, 4, v16
    v_lshl_add_u32 v16, v10, 8, v16
    v_add_u32 v16, {L_XT}, v16
    v_xor_b32 v17, 32, v16
    v_lshlrev_b32 v19, 4, v7
    v_add_u32 v19, {F_SEL}, v19
    v_add_u32 v12, {L_ORING}, v3
    v_mov_b32 v13, v9
    s_mov_b32 s44, {L_ORING}
    s_mov_b32 s43, 0
    s_mov_b32 s49, 0
    """)
    srd(a, R_A, P_OUT, 2048 * 1024 * 2)
    for i in list(range(72, 104)) + list(range(208, 256)):
        a.e(f"v_mov_b32 v{i}, 0")
    a.e(f"""
    s_mov_b64 exec, 1
    s_waitcnt vmcnt(0)
    buffer_store_dwordx2 {vr(VTAG,2)}, v4, s[32:35], s50 offen sc1
    s_mov_b64 exec, -1
    s_barrier
    ds_read_b128 v[24:27], v19
    ds_read_b128 v[136:139], v16
    ds_read_b128 v[140:143], v17
    ds_read_b128 v[144:147], v16 offset:8192
    ds_read_b128 v[148:151], v17 offset:8192
    v_sub_u32 v11, 2047, v11
    v_subrev_u32 v19, 32, v11
    v_sub_f32 v14, 1.0, v{VG0}
    v_sub_f32 v15, 1.0, v{VG1}
    s_waitcnt lgkmcnt(4)
    """)
    for i in range(4):
        a.e(f"v_and_b32 v{28+i}, 0x7ff, v{24+i}")
    for t in range(2):
        tv = [11, 19][t]
        a.e(f"""
        v_cmp_eq_u32 s[64:65], v28, v{tv}
        v_cmp_eq_u32 s[66:67], v29, v{tv}
        v_cmp_eq_u32 s[68:69], v30, v{tv}
        v_cmp_eq_u32 vcc, v31, v{tv}
        s_or_b64 s[64:65], s[64:65], s[66:67]
        s_or_b64 s[68:69], s[68:69], vcc
        s_or_b64 s[64:65], s[64:65], s[68:69]
        s_or_b32 s{74+t}, s64, s65
        """)
    a.e("s_waitcnt lgkmcnt(0)")
    for t in range(2):
        for i in range(8):
            a.e(f"""
            v_lshlrev_b32 v{B[t]+2*i}, 16, v{136+8*t+i}
            v_and_b32 v{B[t]+1+2*i}, 0xffff0000, v{136+8*t+i}
            """)
    a.e("""
    s_or_b32 s71, s74, s75
    s_cmp_lg_u32 s71, 0
    s_cbranch_scc1 K_y
    """)
    a.label("K_yback")
    for t in range(2):
        for i in range(16):
            a.e(f"v_mul_f32 v{B[t]+i}, v{B[t]+i}, v{14+t}")
    a.label("P3_loop")
    for par in range(2):
        cur, prev = SETS[par], SETS[1 - par]
        a.e("s_barrier")
        if par == 0 and PROF:
            a.e("s_cmp_lg_u32 s49, 0\ns_cbranch_scc1 K_nostamp")
            stamp(a, 5)
            a.label("K_nostamp")
        mms = []
        for i in range(4):
            mms.append(mfma32(ACC[0], prev["W"] + 4 * i, prev["X0"] + 4 * i, ACC[0]))
            mms.append(mfma32(ACC[1], prev["W"] + 4 * i, prev["X1"] + 4 * i, ACC[1]))
        for i in range(4):
            a.e(mms[i])
            a.e(f"""
            ds_read_b128 {vr(cur['X0']+4*i,4)}, v12 offset:{i*1024}
            ds_read_b128 {vr(cur['X1']+4*i,4)}, v12 offset:{4096+i*1024}
            ds_read_b64_tr_b16 {vr(cur['W']+4*i,2)}, v13 offset:{i*4096}
            ds_read_b64_tr_b16 {vr(cur['W']+4*i+2,2)}, v13 offset:{i*4096+2048}
            """)
            if i == 2:
                a.e("s_waitcnt lgkmcnt(8)")
        a.e(mms[4])
        a.e(f"""
        s_add_u32 s44, s44, 0x2000
        s_cmp_eq_u32 s44, {L_ORING+32768}
        s_cselect_b32 s44, {L_ORING}, s44
        """)
        a.e(mms[5])
        a.e(f"""
        s_add_u32 s43, s43, 0x4000
        s_cmp_eq_u32 s43, 0x10000
        s_cselect_b32 s43, 0x18000, s43
        s_cmp_eq_u32 s43, 0x20000
        s_cselect_b32 s43, 0, s43
        """)
        a.e(mms[6])
        a.e("""
        v_add_u32 v12, s44, v3
        v_add_u32 v13, s43, v9
        """)
        a.e(mms[7])
        a.e("""
        s_add_u32 s49, s49, 1
        s_waitcnt lgkmcnt(0)
        """)
    a.e("""
    s_cmp_lt_u32 s49, 16
    s_cbranch_scc1 P3_loop
    """)
    for t in range(2):
        for i in range(4):
            a.e(mfma32(ACC[t], SETS[1]["W"] + 4 * i, SETS[1]["X0" if t == 0 else "X1"] + 4 * i, ACC[t]))
    a.e("s_nop 7")
    for t in range(2):
        g_ = [VG0, VG1][t]
        for i in range(4):
            a.e(f"v_permlane32_swap_b32 v{ACC[t]+i}, v{ACC[t]+4+i}")
        for i in range(4):
            a.e(f"v_permlane32_swap_b32 v{ACC[t]+8+i}, v{ACC[t]+12+i}")
        for i in range(16):
            a.e(f"v_fmac_f32 v{B[t]+i}, v{ACC[t]+i}, v{g_}")
        for i in range(8):
            a.e(f"v_cvt_pk_bf16_f32 v{24+8*t+i}, v{B[t]+2*i}, v{B[t]+1+2*i}")
        a.e(f"""
        buffer_store_dwordx4 {vr(24+8*t,4)}, v6, s[{R_A}:{R_A+3}], s{72+t} offen
        buffer_store_dwordx4 {vr(28+8*t,4)}, v6, s[{R_A}:{R_A+3}], s{72+t} offen offset:32
        """)
    a.label("K_fin")
    if PROF:
        a.e("s_waitcnt vmcnt(0)")
    stamp_flush(a, 0)
    a.label("K_end")
    a.e("s_endpgm")
    a.label("K_poll")
    a.e(f"""
    s_cmp_gt_u32 s49, 16
    s_cbranch_scc1 K_ok
    ds_read_b32 v4, v{VFL}
    s_waitcnt lgkmcnt(0)
    v_readfirstlane_b32 s47, v4
    s_nop 0
    s_cmp_ge_u32 s47, s49
    s_cbranch_scc1 K_ok
    s_branch K_poll
    """)
    a.label("K_y")
    a.e(f"""
    s_mul_i32 s56, s55, 7168
    s_add_u32 s56, s56, {WS_YF}
    s_add_u32 s57, s56, 4096
    s_mov_b32 s58, 0
    """)
    for i in range(4):
        a.e(f"""
        v_and_b32 v{24+i}, 0xffff0000, v{24+i}
        v_ashrrev_i32 v20, 31, v{24+i}
        v_not_b32 v20, v20
        v_or_b32 v20, 0x80000000, v20
        v_xor_b32 v{24+i}, v{24+i}, v20
        v_and_b32 v{24+i}, 0xffff0000, v{24+i}
        v_mul_f32 v{24+i}, {fbits(-LOG2E):#x}, v{24+i}
        v_exp_f32 v{24+i}, v{24+i}
        s_nop 0
        v_add_f32 v{24+i}, 1.0, v{24+i}
        v_rcp_f32 v{24+i}, v{24+i}
        """)
    for t in range(2):
        tv = [11, 19][t]
        a.e(f"""
        v_cmp_eq_u32 s[64:65], v28, v{tv}
        v_cmp_eq_u32 s[66:67], v29, v{tv}
        v_cmp_eq_u32 s[68:69], v30, v{tv}
        v_cmp_eq_u32 vcc, v31, v{tv}
        v_cndmask_b32 v20, 0, v24, s[64:65]
        v_cndmask_b32 v21, 0, v25, s[66:67]
        v_cndmask_b32 v22, 0, v26, s[68:69]
        v_cndmask_b32 v23, 0, v27, vcc
        v_cvt_pk_bf16_f32 v{SELB[t]}, v20, v21
        v_cvt_pk_bf16_f32 v{SELB[t]+1}, v22, v23
        v_cvt_pk_bf16_f32 v{SELB[t]+2}, v20, v21
        v_cvt_pk_bf16_f32 v{SELB[t]+3}, v22, v23
        """)
    a.label("K_ychk")
    for k in range(7):
        a.e(f"buffer_load_dwordx4 {vr(YF_+4*k,4)}, v3, s[32:35], s{56+k//4} offen offset:{(k%4)*1024} sc1")
    a.e("s_waitcnt vmcnt(0)")
    a.e(f"v_max3_u32 v20, v{YF_}, v{YF_+1}, v{YF_+2}")
    for i in range(3, 27, 2):
        a.e(f"v_max3_u32 v20, v{YF_+i}, v{YF_+i+1}, v20")
    a.e(f"""
    v_max_u32 v20, v{YF_+27}, v20
    v_cmp_eq_u32 vcc, -1, v20
    s_add_u32 s58, s58, 1
    s_cmp_ge_u32 s58, {SPIN}
    s_cbranch_scc1 K_ygo
    s_cbranch_vccnz K_ychk
    """)
    a.label("K_ygo")
    for k in range(7):
        for t in range(2):
            a.e(mfma32(YA[t], YF_ + 4 * k, SELB[t], None if k == 0 else YA[t]))
    a.e("s_nop 15")
    for t in range(2):
        for i in range(4):
            a.e(f"v_permlane32_swap_b32 v{YA[t]+i}, v{YA[t]+4+i}")
        for i in range(4):
            a.e(f"v_permlane32_swap_b32 v{YA[t]+8+i}, v{YA[t]+12+i}")
        a.e(f"""
        s_mov_b32 exec_lo, s{74+t}
        s_mov_b32 exec_hi, s{74+t}
        """)
        for i in range(16):
            a.e(f"v_add_f32 v{B[t]+i}, v{B[t]+i}, v{YA[t]+i}")
        a.e("s_mov_b64 exec, -1")
    a.e("s_branch K_yback")


def gen_fallback(a):
    a.label("K_fallback")
    for r in range(OA, OA + 40):
        a.e(f"v_mov_b32 v{r}, 0")
    MA, MB = VM, VFL
    a.e(f"""
    v_mov_b32 v{MA}, 0xff800000
    v_mov_b32 v{MB}, 0xff800000
    s_mov_b32 s49, 0
    s_mov_b32 s48, {WS_KVF}
    """)
    a.label("K_fb_loop")
    a.e(f"""
    buffer_load_dwordx4 {vr(KB[0],4)}, v3, s[32:35], s48 offen sc1
    buffer_load_dwordx4 {vr(KB[0]+4,4)}, v3, s[32:35], s48 offen offset:1024 sc1
    buffer_load_dwordx4 {vr(VB[0],4)}, v3, s[32:35], s48 offen offset:2048 sc1
    buffer_load_dwordx4 {vr(VB[0]+4,4)}, v3, s[32:35], s48 offen offset:3072 sc1
    s_add_u32 s48, s48, 0x1000
    s_waitcnt vmcnt(0)
    """)
    for (Q, O, L, M) in ((QA, OA, LA, MA), (QB, OB, LB, MB)):
        a.e(mfma32(SA, KB[0], Q, None))
        a.e(mfma32(SA, KB[0] + 4, Q + 4, SA))
        a.e("s_nop 15")
        a.e(f"v_max3_f32 v4, v{SA}, v{SA+1}, v{M}")
        for i in range(2, 16, 2):
            a.e(f"v_max3_f32 v4, v{SA+i}, v{SA+i+1}, v4")
        a.e(f"""
        v_mov_b32 v5, v4
        s_nop 1
        v_permlane32_swap_b32 v4, v5
        s_nop 1
        v_max_f32 v4, v4, v5
        v_sub_f32 v5, v{M}, v4
        v_exp_f32 v5, v5                     ; alpha
        v_mov_b32 v{M}, v4
        """)
        for i in range(16):
            a.e(f"v_sub_f32 v{SA+i}, v{SA+i}, v4")
        for i in range(16):
            a.e(f"v_exp_f32 v{SA+i}, v{SA+i}")
        for i in range(16):
            a.e(f"v_mul_f32 v{O+i}, v{O+i}, v5")
        for i in range(4):
            a.e(f"v_mul_f32 v{L+i}, v{L+i}, v5")
        for i in range(8):
            a.e(f"v_cvt_pk_bf16_f32 v{PA+i}, v{SA+2*i}, v{SA+2*i+1}")
        a.e("s_nop 1")
        a.e(mfma32(O, VB[0], PA, O))
        a.e(mfma32(O, VB[0] + 4, PA + 4, O))
        a.e(smf(L, PA))
        a.e("s_nop 15")
    a.e(f"""
    s_add_u32 s49, s49, 1
    s_cmp_lt_u32 s49, 64
    s_cbranch_scc1 K_fb_loop
    v_add_f32 v{LA}, v{LA}, v{LA+1}
    v_add_f32 v{LB}, v{LB}, v{LB+1}
    s_branch K_norm
    """)


def gen_aux(a):
    KEY = 16
    a.label("K_A0")
    lds_wait(a, "K_wS1", F_READY, 2)
    a.e(f"s_mov_b32 s50, {WS_KEY}")
    a.e(f"s_mov_b32 s51, {WS_KEY+4096}")
    for j in range(8):
        a.e(f"buffer_load_dwordx4 {vr(KEY+4*j,4)}, v3, s[32:35], s{50+j//4} offen offset:{(j%4)*1024} sc1")
    srd(a, R_B, P_GATE, 1024 * 3584 * 2)
    srd(a, R_C, P_UP, 1024 * 3584 * 2)
    a.e(f"""
    s_and_b32 s74, s62, 3                ; kq
    v_lshrrev_b32 v4, 3, v1
    v_mul_u32_u24 v4, 7168, v4
    v_and_b32 v5, 7, v1
    v_lshl_add_u32 v4, v5, 4, v4
    s_lshr_b32 s47, s62, 2
    s_lshl_b32 s47, s47, 7
    s_mul_i32 s48, s74, {256*7168}
    s_add_u32 s47, s47, s48
    s_mov_b32 s48, 0
    s_lshl_b32 s75, s74, 9               ; kq*512
    v_mov_b32 v10, 0
    s_mov_b32 s49, 0
    s_mov_b32 s52, {L_XS}
    s_waitcnt vmcnt(0)
    """)
    stamp(a, 2)
    a.label("K2_top")
    a.e("""
    s_cmp_eq_u32 s61, 0
    s_cbranch_scc1 K2_top_nodma
    """)
    for i in range(4):
        a.e(f"""
        s_add_u32 m0, s48, {L_GATE}
        s_nop 0
        buffer_load_dwordx4 v4, s[64:67], s47 offen lds
        s_add_u32 m0, s48, {L_UP}
        s_add_u32 s48, s48, 1024
        buffer_load_dwordx4 v4, s[68:71], s47 offen lds
        s_add_u32 s47, s47, {8*7168}
        """)
    a.label("K2_top_nodma")
    a.e(f"v_max3_u32 v11, v{KEY}, v{KEY+1}, v{KEY+2}")
    a.e(f"v_max3_u32 v12, v{KEY+3}, v{KEY+4}, v{KEY+5}")
    for i in range(6, 30, 4):
        a.e(f"v_max3_u32 v11, v{KEY+i}, v{KEY+i+1}, v11")
        a.e(f"v_max3_u32 v12, v{KEY+i+2}, v{KEY+i+3}, v12")
    a.e(f"v_max3_u32 v11, v{KEY+30}, v{KEY+31}, v11")
    a.e("v_max_u32 v11, v11, v12")
    for ctl in ("row_shr:1", "row_shr:2", "row_shr:4", "row_shr:8", "row_bcast:15 row_mask:0xa", "row_bcast:31 row_mask:0xc"):
        a.e("s_nop 1")
        a.e(f"v_max_u32_dpp v11, v11, v11 {ctl}")
    a.e(f"""
    s_nop 1
    v_readlane_b32 s53, v11, 63
    s_lshl_b64 exec, 1, s49
    s_nop 0
    s_and_b32 s54, s53, 0x7ff
    v_mov_b32 v10, s53
    s_mov_b32 exec_lo, -1
    s_mov_b32 exec_hi, 0
    s_sub_u32 s54, 2047, s54             ; token
    s_lshl_b32 s55, s54, 11
    s_mov_b32 m0, s52
    s_add_u32 s55, s55, s75
    buffer_load_dwordx4 v3, s[36:39], s55 offen lds
    s_lshr_b32 s72, s54, 8
    s_add_u32 s52, s52, {XS_STRIDE}
    s_lshl_b32 s72, s72, 2
    s_and_b32 s73, s54, 3
    s_add_u32 s72, s72, s73
    s_bfe_u32 s73, s54, 0x60002
    s_lshl_b64 exec, 1, s73
    s_set_gpr_idx_on s72, 0x8
    v_mov_b32 v{KEY}, 0
    s_set_gpr_idx_off
    s_mov_b64 exec, -1
    s_add_u32 s49, s49, 1
    s_cmp_lt_u32 s49, 8
    s_cbranch_scc1 K2_top
    """)
    stamp(a, 3)
    a.e(f"""
    v_lshlrev_b32 v12, 2, v1
    v_add_u32 v12, {F_SEL}, v12
    s_mov_b64 exec, 0xff
    ds_write_b32 v12, v10
    s_mov_b64 exec, -1
    v_lshrrev_b32 v13, 4, v1
    v_and_b32 v12, 15, v1
    v_xor_b32 v12, v12, v13              ; p ^ (lane>>4)
    s_lshl_b32 s53, s40, 6
    v_add_u32 v13, s53, v13
    v_lshlrev_b32 v13, 11, v13
    s_lshl_b32 s53, s41, 8
    v_add_u32 v13, s53, v13
    v_lshl_add_u32 v16, v12, 4, v13
    v_xor_b32 v17, 64, v16
    v_xor_b32 v18, 128, v16
    v_xor_b32 v19, 192, v16
    v_add_u32 v17, 0x1c00, v17
    v_add_u32 v18, 0x3800, v18
    v_add_u32 v19, 0x5400, v19
    s_waitcnt vmcnt(0)
    """)
    stamp(a, 4)
    lds_set(a, F_A1)
    for g in range(4):
        a.e(f"s_mov_b32 m0, {L_XT + g*4096}")
        a.e(f"s_mov_b32 s47, {g*32768}")
        for q in range(4):
            a.e(f"buffer_load_dwordx4 v{16+q}, s[36:39], s47 offen offset:{q*1024} lds")
    a.e("""
    s_waitcnt vmcnt(0) lgkmcnt(0)
    s_branch K_fin
    """)
    a.label("K_A2")
    a.e("""
    s_cmp_eq_u32 s61, 0
    s_cbranch_scc1 K_fin
    """)
    lane_parts(a)
    a.e(f"""
    v_lshl_add_u32 v12, v7, 3, v8
    v_lshlrev_b32 v12, 7, v12
    v_lshl_add_u32 v12, v9, 3, v12
    v_lshl_add_u32 v12, v6, 15, v12
    v_and_b32 v13, 7, v1
    v_mul_u32_u24 v13, {XS_STRIDE}, v13
    v_lshl_add_u32 v13, v7, 4, v13
    v_add_u32 v13, {L_XS}, v13
    """)
    ACC = 16
    for i in range(64):
        a.e(f"v_mov_b32 v{ACC+i}, 0")
    a.e("s_mov_b32 s49, 0")
    lds_wait(a, "K2_wA1", F_A1, 16)
    stamp(a, 2)
    a.label("K2_up")
    a.e("ds_read_b128 v[80:83], v13")
    for j in range(4):
        a.e(f"""
        ds_read_b64_tr_b16 {vr(84+4*j,2)}, v12 offset:{j*32}
        ds_read_b64_tr_b16 {vr(86+4*j,2)}, v12 offset:{j*32+512}
        """)
    a.e("""
    v_add_u32 v12, 2048, v12
    v_add_u32 v13, 32, v13
    s_add_u32 s49, s49, 1
    s_cmp_lt_u32 s49, 16
    """)
    for j in range(4):
        a.e(f"s_waitcnt lgkmcnt({6-2*j})")
        a.e(mfma32(ACC + 16 * j, 84 + 4 * j, 80, ACC + 16 * j))
    a.e("s_cbranch_scc1 K2_up")
    stamp(a, 3)
    lds_set(a, F_A2)
    a.e(f"""
    v_and_b32 v13, 7, v1
    v_lshl_add_u32 v13, v7, 3, v13
    v_lshlrev_b32 v13, 4, v13            ; ((l&7) + 8hf)*16
    s_andn2_b32 s48, s62, 3
    s_lshl_b32 s48, s48, 12
    s_and_b32 s47, s62, 3
    s_lshl_b32 s47, s47, 10
    s_add_u32 s48, s48, s47
    s_add_u32 s48, s48, {WS_PX}
    s_mov_b32 exec_lo, 0xff
    s_mov_b32 exec_hi, 0xff
    """)
    for j in range(4):
        for q in range(4):
            a.e(f"buffer_store_dwordx4 {vr(ACC+16*j+4*q,4)}, v13, s[32:35], s48 offen offset:{q*256} sc1")
        if j < 3:
            a.e("s_add_u32 s48, s48, 0x1000")
    a.e("""
    s_mov_b64 exec, -1
    s_waitcnt lgkmcnt(0)
    s_branch K_fin
    """)
    a.label("K_A1")
    srd(a, R_A, P_WO, 1024 * 1024 * 2)
    a.e("""
    s_cmp_eq_u32 s61, 0
    s_cbranch_scc1 K2_wo
    """)
    srd(a, R_B, P_DOWN, 1024 * 3584 * 2)
    lane_parts(a)
    a.e(f"""
    s_lshr_b32 s72, s62, 4               ; ks
    s_and_b32 s73, s62, 15               ; cgp
    s_lshl_b32 s47, s72, 19              ; ks*256*2048
    s_lshl_b32 s48, s73, 7
    s_add_u32 s47, s47, s48
    v_lshrrev_b32 v4, 3, v1
    v_lshlrev_b32 v4, 11, v4
    v_and_b32 v5, 7, v1
    v_lshl_add_u32 v4, v5, 4, v4
    v_and_b32 v13, 7, v1
    v_lshl_add_u32 v13, v7, 3, v13
    v_lshlrev_b32 v13, 4, v13            ; ((l&7) + 8hf)*16
    """)
    lds_wait(a, "K2_wA1b", F_A1, 16)
    a.e("v_lshlrev_b32 v5, 11, v1")
    for q in range(4):
        a.e(f"s_add_u32 s48, s47, {q*64*2048}")
        a.e(f"buffer_load_dword v{16+q}, v5, s[64:67], s48 offen")
    lds_wait(a, "K2_wA2", F_A2, 8)
    stamp(a, 2)
    a.e(f"""
    s_mov_b32 m0, {L_DOWN}
    s_mov_b32 s49, 0
    """)
    a.label("K2_dn_dma")
    a.e(f"""
    buffer_load_dwordx4 v4, s[64:67], s47 offen lds
    s_add_u32 m0, m0, 1024
    s_add_u32 s47, s47, 0x4000
    s_add_u32 s49, s49, 1
    s_cmp_lt_u32 s49, 32
    s_cbranch_scc1 K2_dn_dma
    s_lshl_b32 s48, s62, 12
    s_add_u32 s48, s48, {WS_PX}
    """)
    gather64(a, "K2_px", 16, 13, 48, 256)
    stamp(a, 3)
    for i in range(16):
        a.e(f"v_add_f32 v{16+i}, v{16+i}, v{32+i}")
    for i in range(16):
        a.e(f"v_add_f32 v{48+i}, v{48+i}, v{64+i}")
    for i in range(16):
        a.e(f"v_add_f32 v{16+i}, v{16+i}, v{48+i}")
    G = 16
    for i in range(8):
        a.e(f"v_mul_f32 v{64+i}, {fbits(-LOG2E):#x}, v{G+i}")
    for i in range(8):
        a.e(f"v_exp_f32 v{64+i}, v{64+i}")
    for i in range(8):
        a.e(f"v_add_f32 v{64+i}, 1.0, v{64+i}")
    for i in range(8):
        a.e(f"v_rcp_f32 v{64+i}, v{64+i}")
    for i in range(8):
        a.e(f"v_mul_f32 v{G+i}, v{G+i}, v{G+8+i}")
    for i in range(8):
        a.e(f"v_mul_f32 v{G+i}, v{G+i}, v{64+i}")
    for i in range(4):
        a.e(f"v_cvt_pk_bf16_f32 v{80+i}, v{G+2*i}, v{G+2*i+1}")
    for i in range(4):
        a.e(f"v_min_u32 v{80+i}, -2, v{80+i}")
    a.e(f"""
    s_lshl_b32 s48, s62, 8
    s_add_u32 s48, s48, {WS_HX}
    s_mov_b32 exec_lo, 0xff
    s_mov_b32 exec_hi, 0xff
    buffer_store_dwordx4 v[80:83], v13, s[32:35], s48 offen sc1
    s_mov_b64 exec, -1
    s_lshl_b32 s48, s72, 12
    s_add_u32 s48, s48, {WS_HX}
    """)
    HF = 16
    gather64(a, "K2_hx", HF, 13, 48, 256)
    a.e(f"""
    v_lshl_add_u32 v12, v7, 2, v8
    v_lshlrev_b32 v12, 7, v12
    v_lshl_add_u32 v12, v6, 5, v12
    v_lshl_add_u32 v12, v9, 3, v12       ; L_DOWN = 0
    """)
    D0, D1 = 96, 112
    for q2 in range(8):
        for qq in range(2):
            q = 2 * q2 + qq
            b = 80 + 8 * qq
            a.e(f"""
            ds_read_b64_tr_b16 {vr(b,2)}, v12 offset:{q*2048}
            ds_read_b64_tr_b16 {vr(b+2,2)}, v12 offset:{q*2048+1024}
            ds_read_b64_tr_b16 {vr(b+4,2)}, v12 offset:{q*2048+64}
            ds_read_b64_tr_b16 {vr(b+6,2)}, v12 offset:{q*2048+1024+64}
            """)
        for qq in range(2):
            q = 2 * q2 + qq
            b = 80 + 8 * qq
            a.e(f"s_waitcnt lgkmcnt({4-4*qq})")
            a.e(mfma32(D0, HF + 4 * q, b, None if q == 0 else D0))
            a.e(mfma32(D1, HF + 4 * q, b + 4, None if q == 0 else D1))
    a.e(f"""
    s_mul_i32 s47, s73, {2*7168}
    s_lshr_b32 s48, s72, 1
    s_lshl_b32 s48, s48, 10
    s_add_u32 s47, s47, s48
    s_and_b32 s48, s72, 1
    s_lshl_b32 s48, s48, 3
    s_add_u32 s47, s47, s48
    s_add_u32 s47, s47, {WS_YF}
    s_add_u32 s48, s47, 7168
    s_nop 3
    v_cvt_pk_bf16_f32 v80, v{D0}, v{D0+1}
    v_cvt_pk_bf16_f32 v81, v{D0+2}, v{D0+3}
    v_cvt_pk_bf16_f32 v82, v{D1}, v{D1+1}
    v_cvt_pk_bf16_f32 v83, v{D1+2}, v{D1+3}
    v_min_u32 v80, -2, v80
    v_min_u32 v81, -2, v81
    v_min_u32 v82, -2, v82
    v_min_u32 v83, -2, v83
    buffer_store_dwordx2 v[80:81], v3, s[32:35], s47 offen sc1
    buffer_store_dwordx2 v[82:83], v3, s[32:35], s48 offen sc1
    """)
    a.label("K2_wo")
    stamp(a, 4)
    a.e(f"""
    v_lshrrev_b32 v13, 4, v1
    v_lshlrev_b32 v14, 2, v13
    v_and_b32 v15, 15, v1
    v_xor_b32 v14, v14, v15
    v_lshlrev_b32 v8, 11, v13
    v_lshl_add_u32 v8, v14, 4, v8
    s_lshl_b32 s53, s41, 8
    v_add_u32 v8, s53, v8
    v_add_u32 v9, 0x1c00, v8
    v_add_u32 v10, 0x3800, v8
    v_add_u32 v11, 0x5400, v8
    v_and_b32 v20, 3, v1
    v_lshlrev_b32 v20, 8, v20
    v_add_u32 v20, {L_FL}, v20
    s_mov_b32 s45, 0                     ; slot
    s_mov_b32 s47, 0
    s_mov_b32 s49, 0
    """)
    a.e("""
    v_lshrrev_b32 v5, 1, v1
    v_lshlrev_b32 v5, 11, v5
    v_and_b32 v4, 1, v1
    v_lshl_add_u32 v5, v4, 7, v5
    s_and_b32 s54, s40, 7
    s_lshl_b32 s54, s54, 18
    s_add_u32 s54, s54, s53
    """)
    for q in range(4):
        a.e(f"buffer_load_dword v{24+q}, v5, s[36:39], s54 offen")
        if q < 3:
            a.e("s_add_u32 s54, s54, 0x10000")

    def issue_w():
        for g in range(4):
            a.e(f"s_add_u32 m0, s45, {g*4096}")
            a.e("s_nop 0")
            for q in range(4):
                a.e(f"buffer_load_dwordx4 v{8+q}, s[36:39], s47 offen offset:{q*1024} lds")
            a.e("s_add_u32 s47, s47, 0x8000")
        a.e(f"""
        s_add_u32 s45, s45, 0x4000
        s_cmp_eq_u32 s45, 0x10000
        s_cselect_b32 s45, 0x18000, s45
        s_cmp_eq_u32 s45, 0x20000
        s_cselect_b32 s45, 0, s45
        s_add_u32 s49, s49, 1
        """)
    a.label("K2_wld")
    issue_w()
    a.e("""
    s_cmp_lt_u32 s49, 4
    s_cbranch_scc1 K2_wld
    s_cmp_ge_u32 s49, 6
    s_cbranch_scc1 K2_wsync
    s_add_u32 s50, s49, 9
    """)
    a.label("K2_wpoll")
    a.e("""
    s_sleep 8
    ds_read_b32 v23, v20
    s_waitcnt lgkmcnt(0)
    v_cmp_gt_u32 vcc, s50, v23
    s_nop 1
    s_cbranch_vccnz K2_wpoll
    s_branch K2_wld
    """)
    a.label("K2_wsync")
    a.e("""
    s_cmp_lg_u32 s49, 6
    s_cbranch_scc1 K2_wsteady
    s_waitcnt vmcnt(0)
    s_barrier
    s_barrier
    """)
    a.label("K2_wsteady")
    a.e("""
    s_cmp_lt_u32 s49, 16
    s_waitcnt vmcnt(48)
    s_barrier
    s_cbranch_scc1 K2_wld
    s_waitcnt vmcnt(48)
    s_barrier
    s_waitcnt vmcnt(32)
    s_barrier
    s_waitcnt vmcnt(16)
    s_barrier
    s_waitcnt vmcnt(0)
    s_barrier
    s_branch K_fin
    """)


def kd(name, vgprs, sgprs):
    acc = (vgprs + 3) // 4 * 4
    return f""".p2align 6
.amdhsa_kernel {name}
  .amdhsa_next_free_vgpr {vgprs}
  .amdhsa_next_free_sgpr {sgprs}
  .amdhsa_accum_offset {acc}
  .amdhsa_group_segment_fixed_size 0
  .amdhsa_kernarg_size 112
  .amdhsa_user_sgpr_count 2
  .amdhsa_user_sgpr_kernarg_segment_ptr 1
  .amdhsa_system_sgpr_workgroup_id_x 1
  .amdhsa_float_denorm_mode_32 3
.end_amdhsa_kernel
"""


def main(out):
    ref = open(f"cdna_kernels/{NAME}.s.ref").read().split("\n")
    head = [l for l in ref if l.startswith(";") and "@launch" not in l]
    n = NAME + "_kernel"
    txt = "\n".join(head) + "\n"
    txt += f"; @launch grid=(256,1,1) block=(512,1,1) lds={LDS_BYTES}\n"
    txt += '.amdgcn_target "amdgcn-amd-amdhsa--gfx950"\n.text\n'
    a = gen()
    errs = check_kernel(a.lines, n)
    for e in errs:
        print("HAZARD", e)
    txt += f".globl {n}\n.p2align 8\n.type {n},@function\n" + a.text()
    txt += '.section .rodata,"a"\n' + kd(n, 256, 102 if PROF else 80)
    open(out, "w").write(txt)
    print("wrote", out, "hazards:", len(errs), "lds", LDS_BYTES)


if __name__ == "__main__":
    main(sys.argv[1] if len(sys.argv) > 1 else f"cdna_kernels/{NAME}.s")
```

```python
import math
import struct
import sys
import os

sys.path.insert(0, os.path.dirname(os.path.abspath(__file__)))
from asmlib import Asm, vr, sr, check_kernel

NAME = "gated_mix__grouped_kv_mqa__moe_arch_mod__prompt"

WS_OF = 0x400000
WS_KVF = 0xA00000
WS_KEY = 0xA50000
WS_G = 0xA52000
WS_KFL = 0xA54000
WS_OFL = 0xA56000
WS_HX = 0xA58000
WS_YF = 0xA70000
WS_PX = 0xB00000
WS_BYTES = 0xC00000
DBGQ = int(os.environ.get("DBGQ", "0"))


def fbits(x):
    return struct.unpack("<I", struct.pack("<f", x))[0]


LOG2E = math.log2(math.e)
QSCALE = LOG2E / math.sqrt(32.0)


PROF = int(os.environ.get("PROF", "0"))
WS_PROF = 0xC00000
if PROF:
    WS_BYTES = 0xF00000
PS0 = 84


def stamp(a, i, real=False, wait=True):
    if PROF:
        a.e(f"{'s_memrealtime' if real else 's_memtime'} s[{PS0+2*i}:{PS0+2*i+1}]")
        if wait:
            a.e("s_waitcnt lgkmcnt(0)")


def stamp_flush(a, kidx, srd_s=32, wave_s=42):
    if PROF:
        a.e(f"""
        s_memtime s[{PS0+12}:{PS0+13}]
        s_memrealtime s[{PS0+14}:{PS0+15}]
        s_waitcnt lgkmcnt(0)
        """)
        if PROF >= 2:
            a.e(f"""
            s_mov_b64 exec, -1
            s_lshl_b32 s82, s2, 11
            s_lshl_b32 s83, s{wave_s}, 8
            s_add_u32 s82, s82, s83
            s_add_u32 s82, s82, {WS_PROF + 0x100000 + kidx*0x80000}
            v_mbcnt_lo_u32_b32 v0, -1, 0
            v_mbcnt_hi_u32_b32 v0, -1, v0
            v_lshlrev_b32 v0, 2, v0
            buffer_store_dword v{TRV}, v0, s[{srd_s}:{srd_s+3}], s82 offen
            """)
        a.e(f"""
        s_mov_b64 exec, 1
        s_lshl_b32 s82, s2, 10
        s_lshl_b32 s83, s{wave_s}, 6
        s_add_u32 s82, s82, s83
        s_add_u32 s82, s82, {WS_PROF + kidx*0x40000}
        v_mov_b32 v0, 0
        """)
        for i in range(8):
            a.e(f"""
            v_mov_b32 v1, s{PS0+2*i}
            buffer_store_dword v1, v0, s[{srd_s}:{srd_s+3}], s82 offen offset:{4*i}
            """)
        a.e("""
        s_getreg_b32 s83, hwreg(HW_REG_HW_ID)
        v_mov_b32 v1, s83
        """)
        a.e(f"buffer_store_dword v1, v0, s[{srd_s}:{srd_s+3}], s82 offen offset:32")
        a.e("""
        s_getreg_b32 s83, hwreg(HW_REG_XCC_ID)
        v_mov_b32 v1, s83
        """)
        a.e(f"buffer_store_dword v1, v0, s[{srd_s}:{srd_s+3}], s82 offen offset:36")


TRV = 250


def trace(a, idx_s, add=0):
    if PROF >= 2:
        a.e(f"""
        s_memtime s[80:81]
        s_add_u32 m0, s{idx_s}, {add}
        s_waitcnt lgkmcnt(0)
        v_writelane_b32 v{TRV}, s80, m0
        """)


def srd(a, base, ptr, nbytes):
    a.e(f"""
    s_mov_b32 s{base}, s{ptr}
    s_mov_b32 s{base+1}, s{ptr+1}
    s_mov_b32 s{base+2}, {nbytes:#x}
    s_mov_b32 s{base+3}, 0x00020000
    """)


def mfma32(d, a_, b_, c):
    cs = "0" if c is None else vr(c, 16)
    return f"v_mfma_f32_32x32x16_bf16 {vr(d,16)}, {vr(a_,4)}, {vr(b_,4)}, {cs}"


def mfma16(d, a_, b_, c):
    return f"v_mfma_f32_16x16x32_bf16 {vr(d,4)}, {vr(a_,4)}, {vr(b_,4)}, {vr(c,4)}"


P_X, P_WQ, P_WK, P_WV, P_WO = 4, 6, 8, 10, 12
P_WR, P_GATE, P_UP, P_DOWN, P_GW, P_OUT, P_DBG, P_WS = 16, 18, 20, 22, 24, 26, 28, 30
R_WS, R_A, R_B, R_C = 32, 36, 64, 68
S_TB, S_CB, S_W, S_HAS, S_UNIT = 40, 41, 42, 61, 62

P1_SLOT, P1_NS = 24576, 4
L_GATE, L_UP, L_DOWN = 0, 32768, 0
RING_R, RING_SLOT, L_RING = 4, 16384, 65536
RING_START = L_RING + 2 * RING_SLOT
L_ORING = L_RING
L_XT = 131072
L_RG = L_XT
XS_STRIDE = 528
L_XS = L_XT + 16384
L_FL = L_XS + 8 * XS_STRIDE
F_READY, F_A1, F_A2, F_SEL = L_FL + 1024, L_FL + 1028, L_FL + 1032, L_FL + 1040
LDS_BYTES = L_FL + 1024 + 64

QA, QB = 8, 16
SA, SB = 24, 40
PA, PB = 56, 64
OA, OB = 72, 88
LA, LB = 104, 108
KB, VB = [112, 120], [128, 136]
ASUM, AIDX = 144, 148
VCUR, VNEXT, VPA, VPV, VM, VFL = 149, 150, 151, 152, 153, 154
VG0, VG1, VTAG = 155, 156, 158
SPIN = 0x20000


def smf(L, P):
    return f"v_smfmac_f32_16x16x64_bf16 {vr(L,4)}, {vr(ASUM,4)}, {vr(P,8)}, v{AIDX}"


def attn_phase(a, S, P, mf, fill):
    for g in range(4):
        a.e(mf[g])
        for l in fill[g]:
            a.e(l)
        b = S + 4 * g
        for i in range(4):
            a.e(f"v_exp_f32 v{b+i}, v{b+i}")
        a.e(f"v_cvt_pk_bf16_f32 v{P+2*g}, v{b}, v{b+1}")
        if g == 3:
            a.e(mf[4])
            for l in fill[4]:
                a.e(l)
        a.e(f"v_cvt_pk_bf16_f32 v{P+2*g+1}, v{b+2}, v{b+3}")


def softmax_check(a, O, L, lab):
    a.e(f"v_add_f32 v{L}, v{L}, v{L+1}")
    a.e(f"v_maximum3_f32 v4, abs(v{O}), abs(v{O+1}), 0")
    for i in range(2, 16, 2):
        a.e(f"v_maximum3_f32 v4, abs(v{O+i}), abs(v{O+i+1}), v4")
    a.e(f"""
    v_mul_f32 v4, s51, v4
    v_maximum3_f32 v4, v4, v{L}, v{L}
    v_cmp_nle_f32 vcc, v4, s50
    v_cmp_nge_f32 s[52:53], v{L}, s51
    s_nop 0
    s_or_b64 vcc, vcc, s[52:53]
    s_cbranch_vccnz {lab}
    """)


def gather64(a, lab, base, voff, soff, stride):
    a.e("s_mov_b32 s49, 0")
    a.label(lab)
    for q in range(16):
        a.e(f"buffer_load_dwordx4 {vr(base+4*q,4)}, v{voff}, s[32:35], s{soff} offen offset:{q*stride} sc1")
    a.e("s_waitcnt vmcnt(0)")
    a.e(f"v_max3_u32 v14, v{base}, v{base+1}, v{base+2}")
    a.e(f"v_max3_u32 v15, v{base+3}, v{base+4}, v{base+5}")
    for i in range(6, 62, 4):
        a.e(f"v_max3_u32 v14, v{base+i}, v{base+i+1}, v14")
        a.e(f"v_max3_u32 v15, v{base+i+2}, v{base+i+3}, v15")
    a.e(f"""
    v_max3_u32 v14, v{base+62}, v{base+63}, v14
    v_max_u32 v14, v14, v15
    v_cmp_eq_u32 vcc, -1, v14
    s_add_u32 s49, s49, 1
    s_cmp_ge_u32 s49, {SPIN}
    s_cbranch_scc1 {lab}_done
    s_cbranch_vccz {lab}_done
    s_sleep 8
    s_branch {lab}
    """)
    a.label(f"{lab}_done")


def lds_wait(a, lab, addr, sleep):
    a.e(f"v_mov_b32 v15, {addr}")
    a.label(lab)
    a.e(f"""
    s_sleep {sleep}
    ds_read_b32 v14, v15
    s_waitcnt lgkmcnt(0)
    v_readfirstlane_b32 s57, v14
    s_nop 0
    s_cmp_eq_u32 s57, 0
    s_cbranch_scc1 {lab}
    """)


def lds_set(a, addr):
    a.e(f"""
    v_mov_b32 v14, 1
    v_mov_b32 v15, {addr}
    ds_write_b32 v15, v14
    """)


def lane_parts(a):
    a.e("""
    v_lshrrev_b32 v6, 4, v1
    v_and_b32 v6, 1, v6                  ; g&1
    v_lshrrev_b32 v7, 5, v1              ; hf
    v_bfe_u32 v8, v1, 2, 2               ; r
    v_and_b32 v9, 3, v1                  ; c
    """)


def w_voffs(a):
    a.e(f"""
    v_lshrrev_b32 v13, 4, v1
    v_lshlrev_b32 v14, 2, v13
    v_and_b32 v15, 15, v1
    v_xor_b32 v14, v14, v15
    v_lshlrev_b32 v8, 11, v13
    v_lshl_add_u32 v8, v14, 4, v8
    s_lshl_b32 s53, s{S_CB}, 8
    v_add_u32 v8, s53, v8
    v_add_u32 v9, 0x1c00, v8             ; + q*8192 - q*1024
    v_add_u32 v10, 0x3800, v8
    v_add_u32 v11, 0x5400, v8
    """)


def barriers(a, n):
    for _ in range(n):
        a.e("s_barrier")


def p1_loader(a, pfx, issue_kv, issue_q):
    n = 12
    a.e("""
    s_mov_b32 s45, 0
    s_mov_b32 s49, 0
    """)
    a.label(f"{pfx}_ld")
    a.e(f"""
    s_cmp_ge_u32 s49, 4
    s_cbranch_scc1 {pfx}_q
    """)
    issue_kv()
    a.e(f"s_branch {pfx}_nx")
    a.label(f"{pfx}_q")
    issue_q()
    a.e("""
    s_add_u32 s59, s59, 1
    s_and_b32 s59, s59, 15
    """)
    a.label(f"{pfx}_nx")
    a.e(f"""
    s_add_u32 s45, s45, {P1_SLOT}
    s_cmp_eq_u32 s45, {P1_SLOT*P1_NS}
    s_cselect_b32 s45, 0, s45
    s_add_u32 s49, s49, 1
    s_cmp_lt_u32 s49, {P1_NS-1}
    s_cbranch_scc1 {pfx}_ld
    s_cmp_lt_u32 s49, 20
    s_waitcnt vmcnt({n*(P1_NS-2)})
    s_barrier
    s_cbranch_scc1 {pfx}_ld
    """)
    for i in range(P1_NS - 3, -1, -1):
        a.e(f"""
        s_waitcnt vmcnt({n*i})
        s_barrier
        """)
    a.e("s_barrier")


def gen():
    a = Asm()
    a.label(NAME + "_kernel")
    a.e("""
    s_cmp_ge_u32 s2, 256
    s_cbranch_scc1 K_end
    """)
    stamp(a, 0, True, False)
    stamp(a, 1, False, True)
    if PROF:
        a.e(f"s_mov_b32 s{PS0+10}, s{PS0+2}")
    a.e(f"""
    s_load_dwordx8 s[4:11], s[0:1], 0
    s_load_dwordx16 s[16:31], s[0:1], 48
    s_load_dwordx2 s[12:13], s[0:1], 32
    v_lshrrev_b32 v2, 6, v0
    v_and_b32 v1, 63, v0
    s_and_b32 s53, s2, 7
    v_readfirstlane_b32 s{S_W}, v2
    v_lshlrev_b32 v3, 4, v1
    s_lshr_b32 s54, s2, 3
    s_lshr_b32 s40, s53, 1
    s_lshl_b32 s40, s40, 3
    s_and_b32 s55, s54, 7
    s_add_u32 s40, s40, s55              ; tb
    s_and_b32 s43, s53, 1
    s_lshl_b32 s41, s43, 2
    s_lshr_b32 s44, s54, 3
    s_add_u32 s41, s41, s44              ; cb
    s_lshl_b32 s59, s55, 1
    s_mul_i32 s{S_UNIT}, s53, 28
    s_add_u32 s{S_UNIT}, s{S_UNIT}, s54
    s_cmp_lt_u32 s54, 28
    s_cselect_b32 s{S_HAS}, 1, 0
    s_cmp_ge_u32 s{S_W}, 2
    s_cbranch_scc1 K_notld
    """)
    w_voffs(a)
    a.e(f"""
    s_waitcnt lgkmcnt(0)
    s_cmp_eq_u32 s43, 0
    s_cselect_b32 s{R_B}, s{P_WK}, s{P_WV}
    s_cselect_b32 s{R_B+1}, s{P_WK+1}, s{P_WV+1}
    s_mov_b32 s{R_B+2}, 0x10000
    s_mov_b32 s{R_B+3}, 0x00020000
    """)
    srd(a, R_C, P_WQ, 1024 * 1024 * 2)
    srd(a, R_WS, P_WS, WS_BYTES)
    a.e(f"""
    s_cmp_eq_u32 s{S_W}, 0
    s_cbranch_scc1 K_ldx
    """)

    def kvgroup(g):
        a.e(f"s_add_u32 m0, s45, {0x2000 + g*4096}")
        a.e(f"s_lshl_b32 s47, s49, 14")
        if g:
            a.e(f"s_add_u32 s47, s47, {g*4096}")
        for q in range(4):
            a.e(f"buffer_load_dwordx4 v3, s[{R_B}:{R_B+3}], s47 offen offset:{q*1024} lds")

    def wgroup(g, first):
        a.e(f"s_add_u32 m0, s45, {0x2000 + g*4096}")
        a.e(first)
        for q in range(4):
            a.e(f"buffer_load_dwordx4 v{8+q}, s[{R_C}:{R_C+3}], s47 offen offset:{q*1024} lds")

    def w_kv():
        for g in range(3):
            kvgroup(g)

    def w_q():
        for g in range(3):
            wgroup(g, "s_lshl_b32 s47, s59, 17" if g == 0 else "s_add_u32 s47, s47, 0x8000")
    p1_loader(a, "P1w", w_kv, w_q)
    a.e("s_branch K_A1")

    a.label("K_ldx")
    srd(a, R_A, P_X, 2048 * 1024 * 2)
    a.e(f"""
    v_lshrrev_b32 v12, 5, v1             ; hi
    s_lshl_b32 s53, s{S_TB}, 6
    s_lshl_b32 s54, s44, 4
    s_add_u32 s54, s54, s53
    v_add_u32 v14, s54, v12
    v_lshlrev_b32 v14, 11, v14
    v_and_b32 v15, 31, v1
    v_xor_b32 v15, v15, v12
    v_lshl_add_u32 v16, v15, 4, v14
    """)
    for q in range(1, 8):
        a.e(f"v_xor_b32 v{16+q}, {2*q*16}, v16")
    for q in range(1, 8):
        a.e(f"v_add_u32 v{16+q}, {q*4096 - (q%4)*1024}, v{16+q}")

    def x_kv():
        a.e("""
        s_mov_b32 m0, s45
        s_lshl_b32 s46, s49, 9
        """)
        for q in range(4):
            a.e(f"buffer_load_dwordx4 v{16+q}, s[{R_A}:{R_A+3}], s46 offen offset:{q*1024} lds")
        a.e("""
        s_add_u32 m0, s45, 0x1000
        s_nop 0
        """)
        for q in range(4):
            a.e(f"buffer_load_dwordx4 v{20+q}, s[{R_A}:{R_A+3}], s46 offen offset:{q*1024} lds")
        kvgroup(3)

    def x_q():
        a.e("""
        s_mov_b32 m0, s45
        s_lshl_b32 s46, s59, 7
        """)
        for q in range(4):
            a.e(f"buffer_load_dwordx4 v{4+q}, s[{R_A}:{R_A+3}], s46 offen offset:{q*1024} lds")
        a.e("""
        s_add_u32 m0, s45, 0x1000
        s_add_u32 s46, s46, 0x10000
        """)
        for q in range(4):
            a.e(f"buffer_load_dwordx4 v{4+q}, s[{R_A}:{R_A+3}], s46 offen offset:{q*1024} lds")
        a.e("s_lshl_b32 s47, s59, 17")
        wgroup(3, "s_add_u32 s47, s47, 0x18000")
    a.e("""
    v_lshrrev_b32 v14, 3, v1
    v_add_u32 v14, s53, v14
    v_lshlrev_b32 v14, 11, v14
    v_xor_b32 v15, v13, v1
    v_and_b32 v15, 7, v15
    v_lshl_add_u32 v4, v15, 4, v14
    v_xor_b32 v15, 4, v15                ; odd q
    v_lshl_add_u32 v5, v15, 4, v14
    v_add_u32 v5, 0x3c00, v5             ; + 16384 - 1024
    v_add_u32 v6, 0x7800, v4
    v_add_u32 v7, 0x7800, v5
    """)
    p1_loader(a, "P1x", x_kv, x_q)
    a.e("s_branch K_A0")

    a.label("K_notld")
    a.e(f"""
    s_cmp_ge_u32 s{S_W}, 4
    s_cbranch_scc1 K_comp
    """)
    gen_kv(a)
    gen_compute(a)
    gen_aux(a)
    gen_fallback(a)
    a.label("K_codeend")
    return a


def kv_issue(a):
    for g in range(4):
        a.e(f"s_add_u32 m0, s45, {g*4096}")
        a.e("s_nop 0")
        for q in range(4):
            a.e(f"buffer_load_dwordx4 v3, s[32:35], s46 offen offset:{q*1024} sc1 lds")
        a.e("s_add_u32 s46, s46, 0x1000")


def kfl_load(a):
    for q in range(4):
        a.e(f"buffer_load_dwordx4 {vr(32+4*q,4)}, v3, s[32:35], s50 offen offset:{q*1024} sc1")


def kfl_check(a):
    a.e("v_xor_b32 v32, s14, v32")
    a.e("v_xor_b32 v33, s15, v33")
    for i in range(2, 16):
        a.e(f"v_xor_b32 v{32+i}, s{14+i%2}, v{32+i}")
    a.e("v_or3_b32 v32, v32, v33, v34")
    for i in range(3, 15, 2):
        a.e(f"v_or3_b32 v32, v{32+i}, v{33+i}, v32")
    a.e("""
    v_or_b32 v32, v47, v32
    v_cmp_ne_u32 vcc, 0, v32
    """)


def gen_kv(a):
    a.e(f"""
    s_sub_u32 s60, s{S_W}, 2             ; ct
    v_mov_b32 v24, -1
    v_mov_b32 v25, -1
    v_mov_b32 v26, -1
    v_mov_b32 v27, -1
    v_mov_b32 v28, 0
    s_waitcnt lgkmcnt(0)
    """)
    srd(a, R_WS, P_WS, WS_BYTES)
    srd(a, R_A, P_DBG, 256)
    a.e(f"""
    s_cmp_eq_u32 s60, 1
    s_cbranch_scc1 KV_w3
    s_cmp_lg_u32 s2, 0
    s_cbranch_scc1 KV_notag
    s_memrealtime s[14:15]
    s_waitcnt lgkmcnt(0)
    s_or_b32 s14, s14, 1
    v_mov_b32 v30, s14
    v_mov_b32 v31, s15
    s_mov_b64 exec, 1
    buffer_store_dwordx2 v[30:31], v28, s[{R_A}:{R_A+3}], 0 offen sc1
    s_mov_b64 exec, -1
    """)
    a.label("KV_notag")
    a.e(f"""
    s_cmp_lg_u32 s43, 0
    s_cbranch_scc1 KV_norg
    s_mov_b32 m0, {L_RG}
    """)
    srd(a, R_B, P_WR, 2048)
    srd(a, R_C, P_GW, 2048)
    a.e(f"""
    buffer_load_dwordx4 v3, s[{R_B}:{R_B+3}], 0 offen lds
    buffer_load_dwordx4 v3, s[{R_B}:{R_B+3}], 0 offen offset:1024 lds
    s_mov_b32 m0, {L_RG+2048}
    s_nop 0
    buffer_load_dwordx4 v3, s[{R_C}:{R_C+3}], 0 offen lds
    buffer_load_dwordx4 v3, s[{R_C}:{R_C+3}], 0 offen offset:1024 lds
    """)
    a.label("KV_norg")
    a.e(f"""
    s_lshl_b32 s57, s2, 12
    s_add_u32 s57, s57, {WS_PX}
    """)
    for q in range(4):
        a.e(f"buffer_store_dwordx4 v[24:27], v3, s[32:35], s57 offen offset:{q*1024} sc1")
    a.e("""
    s_waitcnt vmcnt(4)
    s_branch KV_go
    """)
    a.label("KV_w3")
    a.e(f"""
    s_getpc_b64 s[50:51]
    KV_pc:
    v_lshlrev_b32 v29, 7, v1
    global_load_dword v32, v29, s[50:51]
    v_add_u32 v29, 0x2000, v29
    v_min_u32 v29, K_fallback-KV_pc, v29
    global_load_dword v33, v29, s[50:51]
    v_mov_b32 v29, 0
    v_mov_b32 v30, 0
    v_mov_b32 v31, 0
    v_add_u32 v22, {L_FL}, v3
    v_mov_b32 v21, {F_READY}
    ds_write_b128 v22, v[28:31]
    ds_write_b128 v21, v[28:31]
    s_lshl_b32 s57, s2, 10
    s_add_u32 s57, s57, {WS_YF}
    buffer_store_dwordx4 v[24:27], v3, s[32:35], s57 offen sc1
    v_lshlrev_b32 v22, 2, v1
    s_lshl_b32 s57, s2, 8
    s_add_u32 s57, s57, {WS_HX}
    buffer_store_dword v24, v22, s[32:35], s57 offen sc1
    """)
    a.label("KV_go")
    a.e(f"""
    v_and_b32 v10, 15, v1                ; row / n
    v_lshrrev_b32 v11, 4, v1             ; G
    v_xor_b32 v12, v10, v11
    v_lshlrev_b32 v12, 4, v12
    v_lshl_add_u32 v4, v10, 9, v12
    v_xor_b32 v5, 64, v4
    v_xor_b32 v6, 128, v4
    v_xor_b32 v7, 192, v4
    v_bfe_u32 v12, v1, 2, 2              ; r
    v_lshl_add_u32 v12, v11, 3, v12      ; 8G + r
    v_lshlrev_b32 v12, 6, v12
    v_and_b32 v13, 3, v1
    v_lshl_add_u32 v12, v13, 3, v12
    s_lshl_b32 s57, s60, 5
    s_add_u32 s57, s57, 0x2000
    v_add_u32 v8, s57, v12
    v_and_b32 v12, 1, v1
    v_lshlrev_b32 v12, 11, v12
    v_lshl_add_u32 v12, v11, 4, v12
    v_add_u32 v9, {L_RG}, v12
    """)
    for i in range(8):
        a.e(f"v_mov_b32 v{16+i}, 0")
    a.e("""
    s_mov_b32 s49, 0
    s_cmp_lg_u32 s43, 0
    s_cbranch_scc1 KV_vloop
    """)
    for typ in ("k", "v"):
        a.label(f"KV_{typ}loop")
        a.e("s_waitcnt lgkmcnt(0)")
        a.e("s_barrier")
        for half in range(2):
            for i in range(4):
                ks = 4 * half + i
                a.e(f"""
                ds_read_b128 {vr(48+4*i,4)}, v{4+i} offset:{half*256}
                ds_read_b64_tr_b16 {vr(64+4*i,2)}, v8 offset:{ks*2048}
                ds_read_b64_tr_b16 {vr(66+4*i,2)}, v8 offset:{ks*2048+256}
                """)
            for i in range(4):
                a.e(f"s_waitcnt lgkmcnt({9-3*i})")
                a.e(mfma16(16, 64 + 4 * i, 48 + 4 * i, 16) if typ == "k" else mfma16(16, 48 + 4 * i, 64 + 4 * i, 16))
            if typ == "k":
                for i in range(4):
                    a.e(f"ds_read_b128 {vr(80+4*i,4)}, v9 offset:{(4*half+i)*64}")
                for i in range(4):
                    a.e(f"s_waitcnt lgkmcnt({3-i})")
                    a.e(mfma16(20, 80 + 4 * i, 48 + 4 * i, 20))
        for r in (4, 5, 6, 7, 8):
            a.e(f"v_add_u32 v{r}, {P1_SLOT}, v{r}")
        a.e(f"""
        v_add_u32 v9, 512, v9
        s_add_u32 s49, s49, 1
        s_cmp_lt_u32 s49, 4
        s_cbranch_scc1 KV_{typ}loop
        """)
        if typ == "k":
            a.e("s_branch KV_store")
    a.label("KV_store")
    a.e(f"""
    buffer_load_dwordx2 v[30:31], v28, s[{R_A}:{R_A+3}], 0 offen sc1
    v_and_b32 v12, 1, v11
    v_lshl_add_u32 v12, v12, 5, v10
    v_lshlrev_b32 v12, 4, v12
    v_lshrrev_b32 v13, 1, v11
    v_lshl_add_u32 v12, v13, 3, v12
    s_and_b32 s54, s44, 1
    s_cmp_eq_u32 s43, 0
    s_cselect_b32 s55, s60, s54
    s_cselect_b32 s56, s54, s60
    s_lshl_b32 s55, s55, 10
    s_lshl_b32 s56, s56, 8
    s_add_u32 s55, s55, s56
    s_lshl_b32 s56, s43, 11
    s_add_u32 s55, s55, s56
    s_lshl_b32 s56, s{S_TB}, 1
    s_lshr_b32 s57, s44, 1
    s_add_u32 s56, s56, s57
    s_lshl_b32 s56, s56, 12
    s_add_u32 s55, s55, s56
    s_add_u32 s55, s55, {WS_KVF}
    v_cvt_pk_bf16_f32 v14, v16, v17
    v_cvt_pk_bf16_f32 v15, v18, v19
    buffer_store_dwordx2 v[14:15], v12, s[32:35], s55 offen sc1
    s_or_b32 s54, s43, s60
    s_cmp_lg_u32 s54, 0
    s_cbranch_scc1 KV_nokey
    s_mov_b64 exec, 0xffff
    s_lshl_b32 s57, s{S_TB}, 6
    s_lshl_b32 s56, s44, 4
    s_add_u32 s57, s57, s56
    v_add_u32 v12, s57, v1               ; token
    v_cvt_pk_bf16_f32 v36, v20, v20
    v_mul_f32 v21, {fbits(-LOG2E):#x}, v21
    v_and_b32 v36, 0xffff0000, v36
    v_exp_f32 v21, v21
    v_ashrrev_i32 v37, 31, v36
    v_or_b32 v37, 0x80000000, v37
    v_add_f32 v21, 1.0, v21
    v_xor_b32 v36, v36, v37
    v_rcp_f32 v21, v21
    v_and_b32 v36, 0xffff0000, v36
    v_sub_u32 v37, 2047, v12
    v_or_b32 v36, v36, v37
    v_lshlrev_b32 v12, 2, v12
    s_mov_b32 s57, {WS_KEY}
    s_mov_b32 s58, {WS_G}
    buffer_store_dword v36, v12, s[32:35], s57 offen sc1
    buffer_store_dword v21, v12, s[32:35], s58 offen sc1
    s_mov_b64 exec, -1
    """)
    a.label("KV_nokey")
    stamp(a, 2)
    barriers(a, 3)
    a.e("s_mov_b32 s49, 0")
    a.label("KV_tag")
    a.e(f"""
    s_waitcnt vmcnt(0)
    v_readfirstlane_b32 s14, v30
    v_readfirstlane_b32 s15, v31
    s_add_u32 s49, s49, 1
    s_cmp_lg_u32 s14, 0
    s_cbranch_scc1 KV_havetag
    s_cmp_ge_u32 s49, {SPIN}
    s_cbranch_scc1 KV_havetag
    buffer_load_dwordx2 v[30:31], v28, s[{R_A}:{R_A+3}], 0 offen sc1
    s_branch KV_tag
    """)
    a.label("KV_havetag")
    a.e(f"""
    s_lshl_b32 s57, s2, 4
    s_lshl_b32 s56, s60, 3
    s_add_u32 s57, s57, s56
    s_add_u32 s57, s57, {WS_KFL}
    s_mov_b64 exec, 1
    buffer_store_dwordx2 v[30:31], v28, s[32:35], s57 offen sc1
    s_mov_b64 exec, -1
    """)
    stamp(a, 3)
    a.e("""
    s_cmp_eq_u32 s60, 1
    s_cbranch_scc1 KV_ring
    """)
    barriers(a, 14)
    a.e("s_branch K_A2")
    a.label("KV_ring")
    a.e(f"""
    s_mov_b32 s50, {WS_KFL}
    s_mov_b32 s45, {RING_START}
    s_mov_b32 s46, {WS_KVF}
    v_and_b32 v20, 3, v1
    v_lshlrev_b32 v20, 8, v20
    v_add_u32 v20, {L_FL}, v20
    v_mov_b32 v21, {F_READY}
    """)
    barriers(a, 6)
    kfl_load(a)
    barriers(a, 3)
    a.e("s_waitcnt vmcnt(0)")
    kfl_check(a)
    a.e("""
    s_mov_b32 s63, 0
    s_mov_b32 s49, 0
    s_cbranch_vccnz KV_late
    """)
    a.label("KV_first2")
    kv_issue(a)
    a.e(f"""
    s_add_u32 s45, s45, {RING_SLOT}
    s_add_u32 s49, s49, 1
    s_cmp_lt_u32 s49, 2
    s_cbranch_scc1 KV_first2
    s_cmp_lg_u32 s63, 0
    s_cbranch_scc1 KV_run
    """)
    barriers(a, 4)
    a.e("""
    v_mov_b32 v22, 2
    s_waitcnt vmcnt(0)
    ds_write_b32 v21, v22
    s_barrier
    s_branch KV_run2
    """)
    a.label("KV_late")
    barriers(a, 5)
    a.label("KV_latepoll")
    kfl_load(a)
    a.e(f"""
    s_add_u32 s63, s63, 1
    s_waitcnt vmcnt(0)
    """)
    kfl_check(a)
    a.e(f"""
    s_cmp_ge_u32 s63, {SPIN}
    s_cbranch_scc1 KV_first2
    s_cbranch_vccnz KV_latepoll
    s_branch KV_first2
    """)
    a.label("KV_run")
    a.e("""
    v_mov_b32 v22, 1
    s_waitcnt vmcnt(16)
    ds_write_b32 v21, v22
    """)
    a.label("KV_run2")
    stamp(a, 4)
    a.e(f"s_mov_b32 s45, {L_RING}")
    minprog = f"""
    v_readlane_b32 s58, v23, 0
    v_readlane_b32 s57, v23, 1
    v_readlane_b32 s56, v23, 2
    v_readlane_b32 s55, v23, 3
    s_min_u32 s58, s58, s57
    s_min_u32 s56, s56, s55
    s_min_u32 s58, s58, s56
    s_add_u32 s58, s58, {RING_R}
    """
    a.label("KV_go2")
    a.e("ds_read_b32 v23, v20")
    kv_issue(a)
    a.e(f"""
    s_add_u32 s45, s45, {RING_SLOT}
    s_cmp_eq_u32 s45, {L_RING + RING_SLOT*RING_R}
    s_cselect_b32 s45, {L_RING}, s45
    v_mov_b32 v22, s49
    s_add_u32 s49, s49, 1
    s_waitcnt vmcnt(16) lgkmcnt(0)
    ds_write_b32 v21, v22
    """)
    a.e(minprog)
    a.e("""
    s_min_u32 s58, s58, 16
    s_cmp_lt_u32 s49, s58
    s_cbranch_scc1 KV_go2
    s_cmp_ge_u32 s49, 16
    s_cbranch_scc1 KV_done
    """)
    a.label("KV_poll")
    a.e("""
    s_sleep 8
    ds_read_b32 v23, v20
    s_waitcnt lgkmcnt(0)
    """)
    a.e(minprog)
    a.e("""
    s_cmp_lt_u32 s49, s58
    s_cbranch_scc1 KV_go2
    s_branch KV_poll
    """)
    a.label("KV_done")
    a.e(f"""
    v_mov_b32 v22, 16
    s_waitcnt vmcnt(0)
    ds_write_b32 v21, v22
    s_lshl_b32 s50, s{S_TB}, 8
    s_add_u32 s50, s50, {WS_OFL}
    s_lshl_b32 s46, s{S_TB}, 17
    s_add_u32 s46, s46, {WS_OF}
    s_add_u32 s47, s46, 0x10000
    v_and_b32 v4, 31, v1
    v_lshlrev_b32 v4, 3, v4
    s_mov_b32 s49, 0
    s_waitcnt lgkmcnt(0)
    s_barrier
    """)
    a.label("O_poll")
    a.e(f"""
    buffer_load_dwordx2 v[6:7], v4, s[32:35], s50 offen sc1
    s_add_u32 s49, s49, 1
    s_waitcnt vmcnt(0)
    v_xor_b32 v6, s14, v6
    v_xor_b32 v7, s15, v7
    v_or_b32 v6, v6, v7
    v_cmp_ne_u32 vcc, 0, v6
    s_cmp_ge_u32 s49, {SPIN}
    s_cbranch_scc1 O_ready
    s_cbranch_vccnz O_poll
    """)
    a.label("O_ready")
    stamp(a, 5)
    a.e(f"""
    s_mov_b32 s45, {L_ORING}
    s_mov_b32 s49, 0
    """)
    a.label("O_ld")
    a.e("""
    s_mov_b32 m0, s45
    s_add_u32 s49, s49, 1
    """)
    for q in range(4):
        a.e(f"buffer_load_dwordx4 v3, s[32:35], s46 offen offset:{q*1024} sc1 lds")
    a.e("""
    s_add_u32 m0, s45, 0x1000
    s_add_u32 s46, s46, 0x1000
    """)
    for q in range(4):
        a.e(f"buffer_load_dwordx4 v3, s[32:35], s47 offen offset:{q*1024} sc1 lds")
    a.e(f"""
    s_add_u32 s47, s47, 0x1000
    s_add_u32 s45, s45, 0x2000
    s_cmp_eq_u32 s45, {L_ORING + 32768}
    s_cselect_b32 s45, {L_ORING}, s45
    s_cmp_lt_u32 s49, 3
    s_cbranch_scc1 O_ld
    s_cmp_lt_u32 s49, 16
    s_waitcnt vmcnt(16)
    s_barrier
    s_cbranch_scc1 O_ld
    s_waitcnt vmcnt(8)
    s_barrier
    s_waitcnt vmcnt(0)
    s_barrier
    s_branch K_fin
    """)


def gen_compute(a):
    a.label("K_comp")
    SETS = [dict(X0=160, X1=176, W=192), dict(X0=208, X1=224, W=240)]
    ACC = [24, 40]
    AX = [12, 13, 14, 15]
    a.e(f"""
    s_sub_u32 s60, s{S_W}, 4             ; hh
    v_and_b32 v15, 15, v1                ; i
    v_and_b32 v12, 31, v1                ; l32
    v_lshrrev_b32 v14, 5, v1             ; hf
    v_lshlrev_b32 v18, 7, v12            ; row*128
    v_lshrrev_b32 v19, 1, v12
    v_and_b32 v19, 7, v19
    v_xor_b32 v19, v19, v14              ; hf ^ f
    v_lshl_add_u32 v8, v19, 4, v18
    v_lshrrev_b32 v18, 2, v15            ; r
    v_and_b32 v19, 3, v15                ; c
    v_lshl_add_u32 v20, v14, 3, v18      ; 8hf + r
    v_bfe_u32 v21, v1, 4, 1              ; g&1
    s_lshl_b32 s53, s60, 2
    v_lshlrev_b32 v22, 1, v21
    v_lshrrev_b32 v23, 1, v19
    v_add3_u32 v22, v22, v23, s53        ; chunk
    v_lshlrev_b32 v23, 2, v18
    v_xor_b32 v22, v22, v23
    v_lshlrev_b32 v22, 4, v22
    v_lshl_add_u32 v22, v20, 8, v22
    v_and_b32 v23, 1, v19
    v_lshl_add_u32 v22, v23, 3, v22
    v_add_u32 v9, 0x2000, v22
    v_and_b32 v4, 1, v1
    v_mov_b32 v5, 0x4444
    v_mov_b32 v6, 0xeeee
    v_cmp_eq_u32 vcc, 1, v4
    v_and_b32 v4, 6, v1
    v_mov_b32 v7, 0x3f803f80
    v_cndmask_b32 v{AIDX}, v5, v6, vcc
    v_cmp_eq_u32 vcc, 0, v4
    v_cmp_eq_u32 s[50:51], 4, v4
    s_lshl_b32 s52, s60, 8
    v_cndmask_b32 v{ASUM}, 0, v7, vcc
    v_cndmask_b32 v{ASUM+1}, 0, v7, vcc
    v_cndmask_b32 v{ASUM+2}, 0, v7, s[50:51]
    v_cndmask_b32 v{ASUM+3}, 0, v7, s[50:51]
    s_add_u32 s52, s52, {L_FL}
    v_lshl_add_u32 v{VPA}, v1, 2, s52
    v_mov_b32 v{VPV}, 1
    v_mov_b32 v{VFL}, {F_READY}
    v_add_u32 v{VCUR}, {RING_START}, v3
    v_add_u32 v{VNEXT}, {RING_START+RING_SLOT}, v3
    s_mov_b32 s48, {RING_START+RING_SLOT}
    v_mov_b32 v12, v8
    v_mov_b32 v16, v9
    v_xor_b32 v13, 32, v8
    v_xor_b32 v14, 64, v8
    v_xor_b32 v15, 0x60, v8
    s_mov_b32 s44, 0
    s_mov_b32 s49, 0
    s_waitcnt lgkmcnt(0)
    """)
    srd(a, R_WS, P_WS, WS_BYTES)
    srd(a, R_A, P_DBG, 256)
    a.e("s_barrier")
    for r in list(range(24, 56)) + list(range(OA, OA + 40)):
        a.e(f"v_mov_b32 v{r}, 0")
    a.e("s_barrier")
    for r in list(range(PB, PB + 8)) + list(range(VB[1], VB[1] + 8)) + list(range(208, 256)):
        a.e(f"v_mov_b32 v{r}, 0")
    barriers(a, 2)
    a.label("P1_loop")
    for par in range(2):
        cur, prev = SETS[par], SETS[1 - par]
        a.e("s_barrier")
        mms = []
        for i in range(4):
            mms.append(mfma32(ACC[0], prev["W"] + 4 * i, prev["X0"] + 4 * i, ACC[0]))
            mms.append(mfma32(ACC[1], prev["W"] + 4 * i, prev["X1"] + 4 * i, ACC[1]))
        for i in range(4):
            a.e(mms[i])
            a.e(f"""
            ds_read_b128 {vr(cur['X0']+4*i,4)}, v{AX[i]}
            ds_read_b128 {vr(cur['X1']+4*i,4)}, v{AX[i]} offset:4096
            ds_read_b64_tr_b16 {vr(cur['W']+4*i,2)}, v16 offset:{i*4096}
            ds_read_b64_tr_b16 {vr(cur['W']+4*i+2,2)}, v16 offset:{i*4096+1024}
            """)
            if i == 2:
                a.e("s_waitcnt lgkmcnt(8)")
        a.e(mms[4])
        a.e(f"""
        s_add_u32 s44, s44, {P1_SLOT}
        s_cmp_eq_u32 s44, {P1_SLOT*P1_NS}
        s_cselect_b32 s44, 0, s44
        """)
        a.e(mms[5])
        a.e("""
        v_add_u32 v12, s44, v8
        v_add_u32 v16, s44, v9
        """)
        a.e(mms[6])
        a.e("""
        v_xor_b32 v13, 32, v12
        v_xor_b32 v14, 64, v12
        v_xor_b32 v15, 0x60, v12
        """)
        a.e(mms[7])
        a.e("""
        s_add_u32 s49, s49, 1
        s_waitcnt lgkmcnt(0)
        """)
    a.e("""
    s_cmp_lt_u32 s49, 16
    s_cbranch_scc1 P1_loop
    s_barrier
    """)
    for t in range(2):
        for i in range(4):
            a.e(mfma32(ACC[t], SETS[1]["W"] + 4 * i, SETS[1]["X0" if t == 0 else "X1"] + 4 * i, ACC[t]))
    stamp(a, 2)
    a.e(f"""
    s_mov_b32 s57, {fbits(QSCALE):#x}
    s_lshl_b32 s45, s{S_TB}, 6
    s_lshl_b32 s46, s{S_CB}, 2
    s_add_u32 s45, s45, s46
    s_add_u32 s45, s45, s60
    s_lshl_b32 s45, s45, 11
    s_add_u32 s46, s45, 0x10000          ; tile B
    s_mov_b32 s49, 2
    """)
    a.label("K_first")
    a.e(f"""
    ds_read_b32 v4, v{VFL}
    s_waitcnt lgkmcnt(0)
    v_readfirstlane_b32 s47, v4
    s_nop 0
    s_cmp_lg_u32 s47, 0
    s_cbranch_scc0 K_first
    ds_read_b128 {vr(KB[0],4)}, v{VCUR}
    ds_read_b128 {vr(KB[0]+4,4)}, v{VCUR} offset:1024
    ds_read_b128 {vr(KB[1],4)}, v{VCUR} offset:4096
    ds_read_b128 {vr(KB[1]+4,4)}, v{VCUR} offset:5120
    ds_read_b128 {vr(VB[0],4)}, v{VCUR} offset:2048
    ds_read_b128 {vr(VB[0]+4,4)}, v{VCUR} offset:3072
    """)
    for t in range(2):
        for i in range(16):
            a.e(f"v_mul_f32 v{ACC[t]+i}, s57, v{ACC[t]+i}")
        for i in range(8):
            a.e(f"v_cvt_pk_bf16_f32 v{[QA,QB][t]+i}, v{ACC[t]+2*i}, v{ACC[t]+1+2*i}")
        if t == 0:
            a.e("s_waitcnt lgkmcnt(0)")
            a.e("s_nop 0")
            a.e(mfma32(SA, KB[0], QA, None))
            a.e(mfma32(SA, KB[0] + 4, QA + 4, SA))
    a.e(f"""
    v_and_b32 v4, 31, v1
    v_lshlrev_b32 v4, 2, v4
    v_mov_b32 v5, 0
    s_lshl_b32 s52, s{S_TB}, 8
    s_add_u32 s52, s52, {WS_G}
    buffer_load_dword v{VG0}, v4, s[32:35], s52 offen sc1
    buffer_load_dword v{VG1}, v4, s[32:35], s52 offen offset:128 sc1
    buffer_load_dwordx2 {vr(VTAG,2)}, v5, s[{R_A}:{R_A+3}], 0 offen sc1
    """)
    if DBGQ:
        a.e(f"""
        buffer_store_dwordx4 {vr(QA,4)}, v3, s[32:35], s45 offen
        buffer_store_dwordx4 {vr(QA+4,4)}, v3, s[32:35], s45 offen offset:1024
        buffer_store_dwordx4 {vr(QB,4)}, v3, s[32:35], s46 offen
        buffer_store_dwordx4 {vr(QB+4,4)}, v3, s[32:35], s46 offen offset:1024
        """)
    stamp(a, 3)
    a.e(".p2align 6")
    a.label("K_loop")
    for j in range(4):
        p, n = j % 2, (j + 1) % 2
        ka = (VCUR, (j + 2) * 4096) if j < 2 else (VNEXT, (j - 2) * 4096)
        va = (VCUR, (j + 1) * 4096 + 2048) if j < 3 else (VNEXT, 2048)
        attn_phase(a, SA, PA, [
            mfma32(SB, KB[p], QB, None),
            mfma32(SB, KB[p] + 4, QB + 4, SB),
            mfma32(OB, VB[n], PB, OB),
            mfma32(OB, VB[n] + 4, PB + 4, OB),
            smf(LB, PB)],
            [[f"ds_read_b128 {vr(KB[p],4)}, v{ka[0]} offset:{ka[1]}"],
             [f"ds_read_b128 {vr(KB[p]+4,4)}, v{ka[0]} offset:{ka[1]+1024}"],
             [f"ds_read_b128 {vr(VB[n],4)}, v{va[0]} offset:{va[1]}"],
             [f"ds_read_b128 {vr(VB[n]+4,4)}, v{va[0]} offset:{va[1]+1024}"],
             ["s_waitcnt lgkmcnt(4)"]])
        fill = [[], [], [], [], []]
        if j == 0:
            fill[0] = [f"ds_read_b32 v4, v{VFL}"]
            fill[1] = [f"s_add_u32 s48, s48, {RING_SLOT}"]
            fill[2] = [f"s_cmp_eq_u32 s48, {L_RING + RING_R*RING_SLOT}"]
            fill[3] = [f"s_cselect_b32 s48, {L_RING}, s48"]
        if j == 1:
            fill[0] = ["v_readfirstlane_b32 s47, v4"]
            fill[2] = ["s_cmp_ge_u32 s47, s49"]
            fill[3] = ["s_cbranch_scc0 K_poll", "K_ok:"]
        if j == 2:
            fill[0] = [f"ds_write_b32 v{VPA}, v{VPV}"]
            fill[1] = ["s_add_u32 s49, s49, 1"]
        if j == 3:
            fill[0] = [f"v_mov_b32 v{VCUR}, v{VNEXT}", f"v_add_u32 v{VNEXT}, s48, v3", f"v_add_u32 v{VPV}, 1, v{VPV}"]
            fill[3] = ["s_cmp_lt_u32 s49, 18"]
        attn_phase(a, SB, PB, [
            mfma32(SA, KB[n], QA, None),
            mfma32(SA, KB[n] + 4, QA + 4, SA),
            mfma32(OA, VB[p], PA, OA),
            mfma32(OA, VB[p] + 4, PA + 4, OA),
            smf(LA, PA)], fill)
    a.e("s_cbranch_scc1 K_loop")
    a.e("s_waitcnt lgkmcnt(0)")
    stamp(a, 4)
    a.e(mfma32(OB, VB[1], PB, OB))
    a.e(mfma32(OB, VB[1] + 4, PB + 4, OB))
    a.e(smf(LB, PB))
    a.e(f"""
    s_mov_b32 s50, 0x5f800000            ; 2^64
    s_mov_b32 s51, 0x1f800000            ; 2^-64
    s_add_u32 s45, s45, {WS_OF}
    s_add_u32 s46, s46, {WS_OF}
    s_nop 3
    """)
    softmax_check(a, OA, LA, "K_fallback")
    softmax_check(a, OB, LB, "K_fallback")
    a.label("K_norm")
    for (O, L, P, so) in ((OA, LA, PA, 45), (OB, LB, PB, 46)):
        a.e(f"""
        v_rcp_f32 v6, v{L}
        s_nop 0
        """)
        for i in range(16):
            a.e(f"v_mul_f32 v{O+i}, v{O+i}, v6")
        for i in range(8):
            a.e(f"v_cvt_pk_bf16_f32 v{P+i}, v{O+2*i}, v{O+2*i+1}")
        a.e(f"""
        buffer_store_dwordx4 {vr(P,4)}, v3, s[32:35], s{so} offen sc1
        buffer_store_dwordx4 {vr(P+4,4)}, v3, s[32:35], s{so} offen offset:1024 sc1
        """)
    SETS = [dict(X0=160, X1=176, W=192), dict(X0=208, X1=224, W=240)]
    ACC = [72, 88]
    B = [104, 120]
    YA = [24, 40]
    YF_ = 160
    SELB = [56, 60]
    lane_parts(a)
    a.e(f"""
    s_lshl_b32 s50, s{S_TB}, 8
    s_lshl_b32 s55, s{S_CB}, 2
    s_add_u32 s55, s55, s60              ; ct
    s_lshl_b32 s51, s55, 3
    s_add_u32 s50, s50, s51
    s_add_u32 s50, s50, {WS_OFL}
    v_lshl_add_u32 v20, v7, 2, v8        ; 4hf + r
    v_lshlrev_b32 v22, 1, v6             ; (g&1)*2
    v_lshrrev_b32 v23, 1, v9             ; c>>1
    s_lshl_b32 s53, s60, 2
    v_add3_u32 v22, v22, v23, s53        ; chunk
    v_lshlrev_b32 v23, 2, v8
    v_xor_b32 v22, v22, v23
    v_lshlrev_b32 v22, 4, v22
    v_lshl_add_u32 v22, v20, 8, v22
    v_and_b32 v23, 1, v9
    v_lshl_add_u32 v9, v23, 3, v22
    v_mov_b32 v4, 0
    v_and_b32 v10, 31, v1
    s_lshl_b32 s56, s{S_TB}, 6
    v_add_u32 v11, s56, v10
    s_lshl_b32 s72, s55, 6
    s_add_u32 s73, s72, 0x10000
    v_lshlrev_b32 v6, 11, v11
    v_lshl_add_u32 v6, v7, 4, v6
    v_add_u32 v16, s53, v7
    v_and_b32 v17, 15, v10
    v_xor_b32 v16, v16, v17
    v_lshlrev_b32 v16, 4, v16
    v_lshl_add_u32 v16, v10, 8, v16
    v_add_u32 v16, {L_XT}, v16
    v_xor_b32 v17, 32, v16
    v_lshlrev_b32 v19, 4, v7
    v_add_u32 v19, {F_SEL}, v19
    v_add_u32 v12, {L_ORING}, v3
    v_mov_b32 v13, v9
    s_mov_b32 s44, {L_ORING}
    s_mov_b32 s43, 0
    s_mov_b32 s49, 0
    """)
    srd(a, R_A, P_OUT, 2048 * 1024 * 2)
    for i in list(range(72, 104)) + list(range(208, 256)):
        a.e(f"v_mov_b32 v{i}, 0")
    a.e(f"""
    s_mov_b64 exec, 1
    s_waitcnt vmcnt(0)
    buffer_store_dwordx2 {vr(VTAG,2)}, v4, s[32:35], s50 offen sc1
    s_mov_b64 exec, -1
    s_barrier
    ds_read_b128 v[24:27], v19
    ds_read_b128 v[136:139], v16
    ds_read_b128 v[140:143], v17
    ds_read_b128 v[144:147], v16 offset:8192
    ds_read_b128 v[148:151], v17 offset:8192
    v_sub_u32 v11, 2047, v11
    v_subrev_u32 v19, 32, v11
    v_sub_f32 v14, 1.0, v{VG0}
    v_sub_f32 v15, 1.0, v{VG1}
    s_waitcnt lgkmcnt(4)
    """)
    for i in range(4):
        a.e(f"v_and_b32 v{28+i}, 0x7ff, v{24+i}")
    for t in range(2):
        tv = [11, 19][t]
        a.e(f"""
        v_cmp_eq_u32 s[64:65], v28, v{tv}
        v_cmp_eq_u32 s[66:67], v29, v{tv}
        v_cmp_eq_u32 s[68:69], v30, v{tv}
        v_cmp_eq_u32 vcc, v31, v{tv}
        s_or_b64 s[64:65], s[64:65], s[66:67]
        s_or_b64 s[68:69], s[68:69], vcc
        s_or_b64 s[64:65], s[64:65], s[68:69]
        s_or_b32 s{74+t}, s64, s65
        """)
    a.e("s_waitcnt lgkmcnt(0)")
    for t in range(2):
        for i in range(8):
            a.e(f"""
            v_lshlrev_b32 v{B[t]+2*i}, 16, v{136+8*t+i}
            v_and_b32 v{B[t]+1+2*i}, 0xffff0000, v{136+8*t+i}
            """)
    a.e("""
    s_or_b32 s71, s74, s75
    s_cmp_lg_u32 s71, 0
    s_cbranch_scc1 K_y
    """)
    a.label("K_yback")
    for t in range(2):
        for i in range(16):
            a.e(f"v_mul_f32 v{B[t]+i}, v{B[t]+i}, v{14+t}")
    a.label("P3_loop")
    for par in range(2):
        cur, prev = SETS[par], SETS[1 - par]
        a.e("s_barrier")
        if par == 0 and PROF:
            a.e("s_cmp_lg_u32 s49, 0\ns_cbranch_scc1 K_nostamp")
            stamp(a, 5)
            a.label("K_nostamp")
        mms = []
        for i in range(4):
            mms.append(mfma32(ACC[0], prev["W"] + 4 * i, prev["X0"] + 4 * i, ACC[0]))
            mms.append(mfma32(ACC[1], prev["W"] + 4 * i, prev["X1"] + 4 * i, ACC[1]))
        for i in range(4):
            a.e(mms[i])
            a.e(f"""
            ds_read_b128 {vr(cur['X0']+4*i,4)}, v12 offset:{i*1024}
            ds_read_b128 {vr(cur['X1']+4*i,4)}, v12 offset:{4096+i*1024}
            ds_read_b64_tr_b16 {vr(cur['W']+4*i,2)}, v13 offset:{i*4096}
            ds_read_b64_tr_b16 {vr(cur['W']+4*i+2,2)}, v13 offset:{i*4096+2048}
            """)
            if i == 2:
                a.e("s_waitcnt lgkmcnt(8)")
        a.e(mms[4])
        a.e(f"""
        s_add_u32 s44, s44, 0x2000
        s_cmp_eq_u32 s44, {L_ORING+32768}
        s_cselect_b32 s44, {L_ORING}, s44
        """)
        a.e(mms[5])
        a.e(f"""
        s_add_u32 s43, s43, 0x4000
        s_cmp_eq_u32 s43, 0x10000
        s_cselect_b32 s43, 0x18000, s43
        s_cmp_eq_u32 s43, 0x20000
        s_cselect_b32 s43, 0, s43
        """)
        a.e(mms[6])
        a.e("""
        v_add_u32 v12, s44, v3
        v_add_u32 v13, s43, v9
        """)
        a.e(mms[7])
        a.e("""
        s_add_u32 s49, s49, 1
        s_waitcnt lgkmcnt(0)
        """)
    a.e("""
    s_cmp_lt_u32 s49, 16
    s_cbranch_scc1 P3_loop
    """)
    for t in range(2):
        for i in range(4):
            a.e(mfma32(ACC[t], SETS[1]["W"] + 4 * i, SETS[1]["X0" if t == 0 else "X1"] + 4 * i, ACC[t]))
    a.e("s_nop 7")
    for t in range(2):
        g_ = [VG0, VG1][t]
        for i in range(4):
            a.e(f"v_permlane32_swap_b32 v{ACC[t]+i}, v{ACC[t]+4+i}")
        for i in range(4):
            a.e(f"v_permlane32_swap_b32 v{ACC[t]+8+i}, v{ACC[t]+12+i}")
        for i in range(16):
            a.e(f"v_fmac_f32 v{B[t]+i}, v{ACC[t]+i}, v{g_}")
        for i in range(8):
            a.e(f"v_cvt_pk_bf16_f32 v{24+8*t+i}, v{B[t]+2*i}, v{B[t]+1+2*i}")
        a.e(f"""
        buffer_store_dwordx4 {vr(24+8*t,4)}, v6, s[{R_A}:{R_A+3}], s{72+t} offen
        buffer_store_dwordx4 {vr(28+8*t,4)}, v6, s[{R_A}:{R_A+3}], s{72+t} offen offset:32
        """)
    a.label("K_fin")
    if os.environ.get("DBGT"):
        srd(a, R_A, P_DBG, 256)
        a.e(f"""
        s_cmp_lg_u32 s42, 5
        s_cbranch_scc1 K_end
        s_waitcnt vmcnt(0)
        s_memrealtime s[50:51]
        s_waitcnt lgkmcnt(0)
        s_mov_b64 exec, 1
        v_mov_b32 v4, s50
        v_mov_b32 v5, 8
        buffer_atomic_umax v4, v5, s[{R_A}:{R_A+3}], 0 offen sc1
        """)
    if PROF:
        a.e("s_waitcnt vmcnt(0)")
    stamp_flush(a, 0)
    a.label("K_end")
    a.e("s_endpgm")
    a.label("K_poll")
    a.e(f"""
    s_cmp_gt_u32 s49, 16
    s_cbranch_scc1 K_ok
    ds_read_b32 v4, v{VFL}
    s_waitcnt lgkmcnt(0)
    v_readfirstlane_b32 s47, v4
    s_nop 0
    s_cmp_ge_u32 s47, s49
    s_cbranch_scc1 K_ok
    s_branch K_poll
    """)
    a.label("K_y")
    a.e(f"""
    s_mul_i32 s56, s55, 7168
    s_add_u32 s56, s56, {WS_YF}
    s_add_u32 s57, s56, 4096
    s_mov_b32 s58, 0
    """)
    for i in range(4):
        a.e(f"""
        v_and_b32 v{24+i}, 0xffff0000, v{24+i}
        v_ashrrev_i32 v20, 31, v{24+i}
        v_not_b32 v20, v20
        v_or_b32 v20, 0x80000000, v20
        v_xor_b32 v{24+i}, v{24+i}, v20
        v_and_b32 v{24+i}, 0xffff0000, v{24+i}
        v_mul_f32 v{24+i}, {fbits(-LOG2E):#x}, v{24+i}
        v_exp_f32 v{24+i}, v{24+i}
        s_nop 0
        v_add_f32 v{24+i}, 1.0, v{24+i}
        v_rcp_f32 v{24+i}, v{24+i}
        """)
    for t in range(2):
        tv = [11, 19][t]
        a.e(f"""
        v_cmp_eq_u32 s[64:65], v28, v{tv}
        v_cmp_eq_u32 s[66:67], v29, v{tv}
        v_cmp_eq_u32 s[68:69], v30, v{tv}
        v_cmp_eq_u32 vcc, v31, v{tv}
        v_cndmask_b32 v20, 0, v24, s[64:65]
        v_cndmask_b32 v21, 0, v25, s[66:67]
        v_cndmask_b32 v22, 0, v26, s[68:69]
        v_cndmask_b32 v23, 0, v27, vcc
        v_cvt_pk_bf16_f32 v{SELB[t]}, v20, v21
        v_cvt_pk_bf16_f32 v{SELB[t]+1}, v22, v23
        v_cvt_pk_bf16_f32 v{SELB[t]+2}, v20, v21
        v_cvt_pk_bf16_f32 v{SELB[t]+3}, v22, v23
        """)
    a.label("K_ychk")
    for k in range(7):
        a.e(f"buffer_load_dwordx4 {vr(YF_+4*k,4)}, v3, s[32:35], s{56+k//4} offen offset:{(k%4)*1024} sc1")
    a.e("s_waitcnt vmcnt(0)")
    a.e(f"v_max3_u32 v20, v{YF_}, v{YF_+1}, v{YF_+2}")
    for i in range(3, 27, 2):
        a.e(f"v_max3_u32 v20, v{YF_+i}, v{YF_+i+1}, v20")
    a.e(f"""
    v_max_u32 v20, v{YF_+27}, v20
    v_cmp_eq_u32 vcc, -1, v20
    s_add_u32 s58, s58, 1
    s_cmp_ge_u32 s58, {SPIN}
    s_cbranch_scc1 K_ygo
    s_cbranch_vccnz K_ychk
    """)
    a.label("K_ygo")
    for k in range(7):
        for t in range(2):
            a.e(mfma32(YA[t], YF_ + 4 * k, SELB[t], None if k == 0 else YA[t]))
    a.e("s_nop 15")
    for t in range(2):
        for i in range(4):
            a.e(f"v_permlane32_swap_b32 v{YA[t]+i}, v{YA[t]+4+i}")
        for i in range(4):
            a.e(f"v_permlane32_swap_b32 v{YA[t]+8+i}, v{YA[t]+12+i}")
        a.e(f"""
        s_mov_b32 exec_lo, s{74+t}
        s_mov_b32 exec_hi, s{74+t}
        """)
        for i in range(16):
            a.e(f"v_add_f32 v{B[t]+i}, v{B[t]+i}, v{YA[t]+i}")
        a.e("s_mov_b64 exec, -1")
    a.e("s_branch K_yback")


def gen_fallback(a):
    a.label("K_fallback")
    for r in range(OA, OA + 40):
        a.e(f"v_mov_b32 v{r}, 0")
    MA, MB = VM, VFL
    a.e(f"""
    v_mov_b32 v{MA}, 0xff800000
    v_mov_b32 v{MB}, 0xff800000
    s_mov_b32 s49, 0
    s_mov_b32 s48, {WS_KVF}
    """)
    a.label("K_fb_loop")
    a.e(f"""
    buffer_load_dwordx4 {vr(KB[0],4)}, v3, s[32:35], s48 offen sc1
    buffer_load_dwordx4 {vr(KB[0]+4,4)}, v3, s[32:35], s48 offen offset:1024 sc1
    buffer_load_dwordx4 {vr(VB[0],4)}, v3, s[32:35], s48 offen offset:2048 sc1
    buffer_load_dwordx4 {vr(VB[0]+4,4)}, v3, s[32:35], s48 offen offset:3072 sc1
    s_add_u32 s48, s48, 0x1000
    s_waitcnt vmcnt(0)
    """)
    for (Q, O, L, M) in ((QA, OA, LA, MA), (QB, OB, LB, MB)):
        a.e(mfma32(SA, KB[0], Q, None))
        a.e(mfma32(SA, KB[0] + 4, Q + 4, SA))
        a.e("s_nop 15")
        a.e(f"v_max3_f32 v4, v{SA}, v{SA+1}, v{M}")
        for i in range(2, 16, 2):
            a.e(f"v_max3_f32 v4, v{SA+i}, v{SA+i+1}, v4")
        a.e(f"""
        v_mov_b32 v5, v4
        s_nop 1
        v_permlane32_swap_b32 v4, v5
        s_nop 1
        v_max_f32 v4, v4, v5
        v_sub_f32 v5, v{M}, v4
        v_exp_f32 v5, v5                     ; alpha
        v_mov_b32 v{M}, v4
        """)
        for i in range(16):
            a.e(f"v_sub_f32 v{SA+i}, v{SA+i}, v4")
        for i in range(16):
            a.e(f"v_exp_f32 v{SA+i}, v{SA+i}")
        for i in range(16):
            a.e(f"v_mul_f32 v{O+i}, v{O+i}, v5")
        for i in range(4):
            a.e(f"v_mul_f32 v{L+i}, v{L+i}, v5")
        for i in range(8):
            a.e(f"v_cvt_pk_bf16_f32 v{PA+i}, v{SA+2*i}, v{SA+2*i+1}")
        a.e("s_nop 1")
        a.e(mfma32(O, VB[0], PA, O))
        a.e(mfma32(O, VB[0] + 4, PA + 4, O))
        a.e(smf(L, PA))
        a.e("s_nop 15")
    a.e(f"""
    s_add_u32 s49, s49, 1
    s_cmp_lt_u32 s49, 64
    s_cbranch_scc1 K_fb_loop
    v_add_f32 v{LA}, v{LA}, v{LA+1}
    v_add_f32 v{LB}, v{LB}, v{LB+1}
    s_branch K_norm
    """)


def gen_aux(a):
    KEY = 16
    a.label("K_A0")
    lds_wait(a, "K_wS1", F_READY, 2)
    a.e(f"s_mov_b32 s50, {WS_KEY}")
    a.e(f"s_mov_b32 s51, {WS_KEY+4096}")
    for j in range(8):
        a.e(f"buffer_load_dwordx4 {vr(KEY+4*j,4)}, v3, s[32:35], s{50+j//4} offen offset:{(j%4)*1024} sc1")
    srd(a, R_B, P_GATE, 1024 * 3584 * 2)
    srd(a, R_C, P_UP, 1024 * 3584 * 2)
    a.e(f"""
    s_and_b32 s74, s62, 3                ; kq
    v_lshrrev_b32 v4, 3, v1
    v_mul_u32_u24 v4, 7168, v4
    v_and_b32 v5, 7, v1
    v_lshl_add_u32 v4, v5, 4, v4
    s_lshr_b32 s47, s62, 2
    s_lshl_b32 s47, s47, 7
    s_mul_i32 s48, s74, {256*7168}
    s_add_u32 s47, s47, s48
    s_mov_b32 s48, 0
    s_lshl_b32 s75, s74, 9               ; kq*512
    v_mov_b32 v10, 0
    s_mov_b32 s49, 0
    s_mov_b32 s52, {L_XS}
    s_waitcnt vmcnt(0)
    """)
    stamp(a, 2)
    a.label("K2_top")
    a.e("""
    s_cmp_eq_u32 s61, 0
    s_cbranch_scc1 K2_top_nodma
    """)
    for i in range(4):
        a.e(f"""
        s_add_u32 m0, s48, {L_GATE}
        s_nop 0
        buffer_load_dwordx4 v4, s[64:67], s47 offen lds
        s_add_u32 m0, s48, {L_UP}
        s_add_u32 s48, s48, 1024
        buffer_load_dwordx4 v4, s[68:71], s47 offen lds
        s_add_u32 s47, s47, {8*7168}
        """)
    a.label("K2_top_nodma")
    a.e(f"v_max3_u32 v11, v{KEY}, v{KEY+1}, v{KEY+2}")
    a.e(f"v_max3_u32 v12, v{KEY+3}, v{KEY+4}, v{KEY+5}")
    for i in range(6, 30, 4):
        a.e(f"v_max3_u32 v11, v{KEY+i}, v{KEY+i+1}, v11")
        a.e(f"v_max3_u32 v12, v{KEY+i+2}, v{KEY+i+3}, v12")
    a.e(f"v_max3_u32 v11, v{KEY+30}, v{KEY+31}, v11")
    a.e("v_max_u32 v11, v11, v12")
    for ctl in ("row_shr:1", "row_shr:2", "row_shr:4", "row_shr:8", "row_bcast:15 row_mask:0xa", "row_bcast:31 row_mask:0xc"):
        a.e("s_nop 1")
        a.e(f"v_max_u32_dpp v11, v11, v11 {ctl}")
    a.e(f"""
    s_nop 1
    v_readlane_b32 s53, v11, 63
    s_lshl_b64 exec, 1, s49
    s_nop 0
    s_and_b32 s54, s53, 0x7ff
    v_mov_b32 v10, s53
    s_mov_b32 exec_lo, -1
    s_mov_b32 exec_hi, 0
    s_sub_u32 s54, 2047, s54             ; token
    s_lshl_b32 s55, s54, 11
    s_mov_b32 m0, s52
    s_add_u32 s55, s55, s75
    buffer_load_dwordx4 v3, s[36:39], s55 offen lds
    s_lshr_b32 s72, s54, 8
    s_add_u32 s52, s52, {XS_STRIDE}
    s_lshl_b32 s72, s72, 2
    s_and_b32 s73, s54, 3
    s_add_u32 s72, s72, s73
    s_bfe_u32 s73, s54, 0x60002
    s_lshl_b64 exec, 1, s73
    s_set_gpr_idx_on s72, 0x8
    v_mov_b32 v{KEY}, 0
    s_set_gpr_idx_off
    s_mov_b64 exec, -1
    s_add_u32 s49, s49, 1
    s_cmp_lt_u32 s49, 8
    s_cbranch_scc1 K2_top
    """)
    stamp(a, 3)
    a.e(f"""
    v_lshlrev_b32 v12, 2, v1
    v_add_u32 v12, {F_SEL}, v12
    s_mov_b64 exec, 0xff
    ds_write_b32 v12, v10
    s_mov_b64 exec, -1
    v_lshrrev_b32 v13, 4, v1
    v_and_b32 v12, 15, v1
    v_xor_b32 v12, v12, v13              ; p ^ (lane>>4)
    s_lshl_b32 s53, s40, 6
    v_add_u32 v13, s53, v13
    v_lshlrev_b32 v13, 11, v13
    s_lshl_b32 s53, s41, 8
    v_add_u32 v13, s53, v13
    v_lshl_add_u32 v16, v12, 4, v13
    v_xor_b32 v17, 64, v16
    v_xor_b32 v18, 128, v16
    v_xor_b32 v19, 192, v16
    v_add_u32 v17, 0x1c00, v17
    v_add_u32 v18, 0x3800, v18
    v_add_u32 v19, 0x5400, v19
    s_waitcnt vmcnt(0)
    """)
    stamp(a, 4)
    lds_set(a, F_A1)
    for g in range(4):
        a.e(f"s_mov_b32 m0, {L_XT + g*4096}")
        a.e(f"s_mov_b32 s47, {g*32768}")
        for q in range(4):
            a.e(f"buffer_load_dwordx4 v{16+q}, s[36:39], s47 offen offset:{q*1024} lds")
    a.e("""
    s_waitcnt vmcnt(0) lgkmcnt(0)
    s_branch K_fin
    """)
    a.label("K_A2")
    a.e("""
    s_cmp_eq_u32 s61, 0
    s_cbranch_scc1 K_fin
    """)
    lane_parts(a)
    a.e(f"""
    v_lshl_add_u32 v12, v7, 3, v8
    v_lshlrev_b32 v12, 7, v12
    v_lshl_add_u32 v12, v9, 3, v12
    v_lshl_add_u32 v12, v6, 15, v12
    v_and_b32 v13, 7, v1
    v_mul_u32_u24 v13, {XS_STRIDE}, v13
    v_lshl_add_u32 v13, v7, 4, v13
    v_add_u32 v13, {L_XS}, v13
    """)
    ACC = 16
    for i in range(64):
        a.e(f"v_mov_b32 v{ACC+i}, 0")
    a.e("s_mov_b32 s49, 0")
    lds_wait(a, "K2_wA1", F_A1, 16)
    stamp(a, 2)
    a.label("K2_up")
    a.e("ds_read_b128 v[80:83], v13")
    for j in range(4):
        a.e(f"""
        ds_read_b64_tr_b16 {vr(84+4*j,2)}, v12 offset:{j*32}
        ds_read_b64_tr_b16 {vr(86+4*j,2)}, v12 offset:{j*32+512}
        """)
    a.e("""
    v_add_u32 v12, 2048, v12
    v_add_u32 v13, 32, v13
    s_add_u32 s49, s49, 1
    s_cmp_lt_u32 s49, 16
    """)
    for j in range(4):
        a.e(f"s_waitcnt lgkmcnt({6-2*j})")
        a.e(mfma32(ACC + 16 * j, 84 + 4 * j, 80, ACC + 16 * j))
    a.e("s_cbranch_scc1 K2_up")
    stamp(a, 3)
    lds_set(a, F_A2)
    a.e(f"""
    v_and_b32 v13, 7, v1
    v_lshl_add_u32 v13, v7, 3, v13
    v_lshlrev_b32 v13, 4, v13            ; ((l&7) + 8hf)*16
    s_andn2_b32 s48, s62, 3
    s_lshl_b32 s48, s48, 12
    s_and_b32 s47, s62, 3
    s_lshl_b32 s47, s47, 10
    s_add_u32 s48, s48, s47
    s_add_u32 s48, s48, {WS_PX}
    s_mov_b32 exec_lo, 0xff
    s_mov_b32 exec_hi, 0xff
    """)
    for j in range(4):
        for q in range(4):
            a.e(f"buffer_store_dwordx4 {vr(ACC+16*j+4*q,4)}, v13, s[32:35], s48 offen offset:{q*256} sc1")
        if j < 3:
            a.e("s_add_u32 s48, s48, 0x1000")
    a.e("""
    s_mov_b64 exec, -1
    s_waitcnt lgkmcnt(0)
    s_branch K_fin
    """)
    a.label("K_A1")
    srd(a, R_A, P_WO, 1024 * 1024 * 2)
    a.e("""
    s_cmp_eq_u32 s61, 0
    s_cbranch_scc1 K2_wo
    """)
    srd(a, R_B, P_DOWN, 1024 * 3584 * 2)
    lane_parts(a)
    a.e(f"""
    s_lshr_b32 s72, s62, 4               ; ks
    s_and_b32 s73, s62, 15               ; cgp
    s_lshl_b32 s47, s72, 19              ; ks*256*2048
    s_lshl_b32 s48, s73, 7
    s_add_u32 s47, s47, s48
    v_lshrrev_b32 v4, 3, v1
    v_lshlrev_b32 v4, 11, v4
    v_and_b32 v5, 7, v1
    v_lshl_add_u32 v4, v5, 4, v4
    v_and_b32 v13, 7, v1
    v_lshl_add_u32 v13, v7, 3, v13
    v_lshlrev_b32 v13, 4, v13            ; ((l&7) + 8hf)*16
    """)
    lds_wait(a, "K2_wA1b", F_A1, 16)
    a.e("v_lshlrev_b32 v5, 11, v1")
    for q in range(4):
        a.e(f"s_add_u32 s48, s47, {q*64*2048}")
        a.e(f"buffer_load_dword v{16+q}, v5, s[64:67], s48 offen")
    lds_wait(a, "K2_wA2", F_A2, 8)
    stamp(a, 2)
    a.e(f"""
    s_mov_b32 m0, {L_DOWN}
    s_mov_b32 s49, 0
    """)
    a.label("K2_dn_dma")
    a.e(f"""
    buffer_load_dwordx4 v4, s[64:67], s47 offen lds
    s_add_u32 m0, m0, 1024
    s_add_u32 s47, s47, 0x4000
    s_add_u32 s49, s49, 1
    s_cmp_lt_u32 s49, 32
    s_cbranch_scc1 K2_dn_dma
    s_lshl_b32 s48, s62, 12
    s_add_u32 s48, s48, {WS_PX}
    """)
    gather64(a, "K2_px", 16, 13, 48, 256)
    stamp(a, 3)
    for i in range(16):
        a.e(f"v_add_f32 v{16+i}, v{16+i}, v{32+i}")
    for i in range(16):
        a.e(f"v_add_f32 v{48+i}, v{48+i}, v{64+i}")
    for i in range(16):
        a.e(f"v_add_f32 v{16+i}, v{16+i}, v{48+i}")
    G = 16
    for i in range(8):
        a.e(f"v_mul_f32 v{64+i}, {fbits(-LOG2E):#x}, v{G+i}")
    for i in range(8):
        a.e(f"v_exp_f32 v{64+i}, v{64+i}")
    for i in range(8):
        a.e(f"v_add_f32 v{64+i}, 1.0, v{64+i}")
    for i in range(8):
        a.e(f"v_rcp_f32 v{64+i}, v{64+i}")
    for i in range(8):
        a.e(f"v_mul_f32 v{G+i}, v{G+i}, v{G+8+i}")
    for i in range(8):
        a.e(f"v_mul_f32 v{G+i}, v{G+i}, v{64+i}")
    for i in range(4):
        a.e(f"v_cvt_pk_bf16_f32 v{80+i}, v{G+2*i}, v{G+2*i+1}")
    for i in range(4):
        a.e(f"v_min_u32 v{80+i}, -2, v{80+i}")
    a.e(f"""
    s_lshl_b32 s48, s62, 8
    s_add_u32 s48, s48, {WS_HX}
    s_mov_b32 exec_lo, 0xff
    s_mov_b32 exec_hi, 0xff
    buffer_store_dwordx4 v[80:83], v13, s[32:35], s48 offen sc1
    s_mov_b64 exec, -1
    s_lshl_b32 s48, s72, 12
    s_add_u32 s48, s48, {WS_HX}
    """)
    HF = 16
    gather64(a, "K2_hx", HF, 13, 48, 256)
    a.e(f"""
    v_lshl_add_u32 v12, v7, 2, v8
    v_lshlrev_b32 v12, 7, v12
    v_lshl_add_u32 v12, v6, 5, v12
    v_lshl_add_u32 v12, v9, 3, v12       ; L_DOWN = 0
    """)
    D0, D1 = 96, 112
    for q2 in range(8):
        for qq in range(2):
            q = 2 * q2 + qq
            b = 80 + 8 * qq
            a.e(f"""
            ds_read_b64_tr_b16 {vr(b,2)}, v12 offset:{q*2048}
            ds_read_b64_tr_b16 {vr(b+2,2)}, v12 offset:{q*2048+1024}
            ds_read_b64_tr_b16 {vr(b+4,2)}, v12 offset:{q*2048+64}
            ds_read_b64_tr_b16 {vr(b+6,2)}, v12 offset:{q*2048+1024+64}
            """)
        for qq in range(2):
            q = 2 * q2 + qq
            b = 80 + 8 * qq
            a.e(f"s_waitcnt lgkmcnt({4-4*qq})")
            a.e(mfma32(D0, HF + 4 * q, b, None if q == 0 else D0))
            a.e(mfma32(D1, HF + 4 * q, b + 4, None if q == 0 else D1))
    a.e(f"""
    s_mul_i32 s47, s73, {2*7168}
    s_lshr_b32 s48, s72, 1
    s_lshl_b32 s48, s48, 10
    s_add_u32 s47, s47, s48
    s_and_b32 s48, s72, 1
    s_lshl_b32 s48, s48, 3
    s_add_u32 s47, s47, s48
    s_add_u32 s47, s47, {WS_YF}
    s_add_u32 s48, s47, 7168
    s_nop 3
    v_cvt_pk_bf16_f32 v80, v{D0}, v{D0+1}
    v_cvt_pk_bf16_f32 v81, v{D0+2}, v{D0+3}
    v_cvt_pk_bf16_f32 v82, v{D1}, v{D1+1}
    v_cvt_pk_bf16_f32 v83, v{D1+2}, v{D1+3}
    v_min_u32 v80, -2, v80
    v_min_u32 v81, -2, v81
    v_min_u32 v82, -2, v82
    v_min_u32 v83, -2, v83
    buffer_store_dwordx2 v[80:81], v3, s[32:35], s47 offen sc1
    buffer_store_dwordx2 v[82:83], v3, s[32:35], s48 offen sc1
    """)
    a.label("K2_wo")
    stamp(a, 4)
    a.e(f"""
    v_lshrrev_b32 v13, 4, v1
    v_lshlrev_b32 v14, 2, v13
    v_and_b32 v15, 15, v1
    v_xor_b32 v14, v14, v15
    v_lshlrev_b32 v8, 11, v13
    v_lshl_add_u32 v8, v14, 4, v8
    s_lshl_b32 s53, s41, 8
    v_add_u32 v8, s53, v8
    v_add_u32 v9, 0x1c00, v8
    v_add_u32 v10, 0x3800, v8
    v_add_u32 v11, 0x5400, v8
    v_and_b32 v20, 3, v1
    v_lshlrev_b32 v20, 8, v20
    v_add_u32 v20, {L_FL}, v20
    s_mov_b32 s45, 0                     ; slot
    s_mov_b32 s47, 0
    s_mov_b32 s49, 0
    """)
    a.e("""
    v_lshrrev_b32 v5, 1, v1
    v_lshlrev_b32 v5, 11, v5
    v_and_b32 v4, 1, v1
    v_lshl_add_u32 v5, v4, 7, v5
    s_and_b32 s54, s40, 7
    s_lshl_b32 s54, s54, 18
    s_add_u32 s54, s54, s53
    """)
    for q in range(4):
        a.e(f"buffer_load_dword v{24+q}, v5, s[36:39], s54 offen")
        if q < 3:
            a.e("s_add_u32 s54, s54, 0x10000")

    def issue_w():
        for g in range(4):
            a.e(f"s_add_u32 m0, s45, {g*4096}")
            a.e("s_nop 0")
            for q in range(4):
                a.e(f"buffer_load_dwordx4 v{8+q}, s[36:39], s47 offen offset:{q*1024} lds")
            a.e("s_add_u32 s47, s47, 0x8000")
        a.e(f"""
        s_add_u32 s45, s45, 0x4000
        s_cmp_eq_u32 s45, 0x10000
        s_cselect_b32 s45, 0x18000, s45
        s_cmp_eq_u32 s45, 0x20000
        s_cselect_b32 s45, 0, s45
        s_add_u32 s49, s49, 1
        """)
    a.label("K2_wld")
    issue_w()
    a.e("""
    s_cmp_lt_u32 s49, 4
    s_cbranch_scc1 K2_wld
    s_cmp_ge_u32 s49, 6
    s_cbranch_scc1 K2_wsync
    s_add_u32 s50, s49, 9
    """)
    a.label("K2_wpoll")
    a.e("""
    s_sleep 8
    ds_read_b32 v23, v20
    s_waitcnt lgkmcnt(0)
    v_cmp_gt_u32 vcc, s50, v23
    s_nop 1
    s_cbranch_vccnz K2_wpoll
    s_branch K2_wld
    """)
    a.label("K2_wsync")
    a.e("""
    s_cmp_lg_u32 s49, 6
    s_cbranch_scc1 K2_wsteady
    s_waitcnt vmcnt(0)
    s_barrier
    s_barrier
    """)
    a.label("K2_wsteady")
    a.e("""
    s_cmp_lt_u32 s49, 16
    s_waitcnt vmcnt(48)
    s_barrier
    s_cbranch_scc1 K2_wld
    s_waitcnt vmcnt(48)
    s_barrier
    s_waitcnt vmcnt(32)
    s_barrier
    s_waitcnt vmcnt(16)
    s_barrier
    s_waitcnt vmcnt(0)
    s_barrier
    s_branch K_fin
    """)


def kd(name, vgprs, sgprs):
    acc = (vgprs + 3) // 4 * 4
    return f""".p2align 6
.amdhsa_kernel {name}
  .amdhsa_next_free_vgpr {vgprs}
  .amdhsa_next_free_sgpr {sgprs}
  .amdhsa_accum_offset {acc}
  .amdhsa_group_segment_fixed_size 0
  .amdhsa_kernarg_size 112
  .amdhsa_user_sgpr_count 2
  .amdhsa_user_sgpr_kernarg_segment_ptr 1
  .amdhsa_system_sgpr_workgroup_id_x 1
  .amdhsa_float_denorm_mode_32 3
.end_amdhsa_kernel
"""


def main(out):
    ref = open(f"cdna_kernels/{NAME}.s.ref").read().split("\n")
    head = [l for l in ref if l.startswith(";") and "@launch" not in l]
    n = NAME + "_kernel"
    txt = "\n".join(head) + "\n"
    txt += f"; @launch grid=(256,1,1) block=(512,1,1) lds={LDS_BYTES}\n"
    txt += '.amdgcn_target "amdgcn-amd-amdhsa--gfx950"\n.text\n'
    a = gen()
    errs = check_kernel(a.lines, n)
    for e in errs:
        print("HAZARD", e)
    txt += f".globl {n}\n.p2align 8\n.type {n},@function\n" + a.text()
    txt += '.section .rodata,"a"\n' + kd(n, 256, 102 if PROF else 80)
    open(out, "w").write(txt)
    print("wrote", out, "hazards:", len(errs), "lds", LDS_BYTES)


if __name__ == "__main__":
    main(sys.argv[1] if len(sys.argv) > 1 else f"cdna_kernels/{NAME}.s")
```

```python
import math
import struct
import sys
import os

sys.path.insert(0, os.path.dirname(os.path.abspath(__file__)))
from asmlib import Asm, vr, sr, check_kernel

NAME = "gated_mix__grouped_kv_mqa__moe_arch_mod__prompt"

WS_OF = 0x400000
WS_KVF = 0xA00000
WS_KEY = 0xA50000
WS_G = 0xA52000
WS_KFL = 0xA54000
WS_OFL = 0xA56000
WS_HX = 0xA58000
WS_YF = 0xA70000
WS_PX = 0xB00000
WS_BYTES = 0xC00000
DBGQ = int(os.environ.get("DBGQ", "0"))


def fbits(x):
    return struct.unpack("<I", struct.pack("<f", x))[0]


LOG2E = math.log2(math.e)
QSCALE = LOG2E / math.sqrt(32.0)


PROF = int(os.environ.get("PROF", "0"))
WS_PROF = 0xC00000
if PROF:
    WS_BYTES = 0xF00000
PS0 = 84


def stamp(a, i, real=False, wait=True):
    if PROF:
        a.e(f"{'s_memrealtime' if real else 's_memtime'} s[{PS0+2*i}:{PS0+2*i+1}]")
        if wait:
            a.e("s_waitcnt lgkmcnt(0)")


def stamp_flush(a, kidx, srd_s=32, wave_s=42):
    if PROF:
        a.e(f"""
        s_memtime s[{PS0+12}:{PS0+13}]
        s_memrealtime s[{PS0+14}:{PS0+15}]
        s_waitcnt lgkmcnt(0)
        """)
        if PROF >= 2:
            a.e(f"""
            s_mov_b64 exec, -1
            s_lshl_b32 s82, s2, 11
            s_lshl_b32 s83, s{wave_s}, 8
            s_add_u32 s82, s82, s83
            s_add_u32 s82, s82, {WS_PROF + 0x100000 + kidx*0x80000}
            v_mbcnt_lo_u32_b32 v0, -1, 0
            v_mbcnt_hi_u32_b32 v0, -1, v0
            v_lshlrev_b32 v0, 2, v0
            buffer_store_dword v{TRV}, v0, s[{srd_s}:{srd_s+3}], s82 offen
            """)
        a.e(f"""
        s_mov_b64 exec, 1
        s_lshl_b32 s82, s2, 10
        s_lshl_b32 s83, s{wave_s}, 6
        s_add_u32 s82, s82, s83
        s_add_u32 s82, s82, {WS_PROF + kidx*0x40000}
        v_mov_b32 v0, 0
        """)
        for i in range(8):
            a.e(f"""
            v_mov_b32 v1, s{PS0+2*i}
            buffer_store_dword v1, v0, s[{srd_s}:{srd_s+3}], s82 offen offset:{4*i}
            """)
        a.e("""
        s_getreg_b32 s83, hwreg(HW_REG_HW_ID)
        v_mov_b32 v1, s83
        """)
        a.e(f"buffer_store_dword v1, v0, s[{srd_s}:{srd_s+3}], s82 offen offset:32")
        a.e("""
        s_getreg_b32 s83, hwreg(HW_REG_XCC_ID)
        v_mov_b32 v1, s83
        """)
        a.e(f"buffer_store_dword v1, v0, s[{srd_s}:{srd_s+3}], s82 offen offset:36")


TRV = 157


def trace(a, idx_s, add=0):
    if PROF >= 2:
        a.e(f"""
        s_memtime s[80:81]
        s_add_u32 m0, s{idx_s}, {add}
        s_waitcnt lgkmcnt(0)
        v_writelane_b32 v{TRV}, s80, m0
        """)


def srd(a, base, ptr, nbytes):
    a.e(f"""
    s_mov_b32 s{base}, s{ptr}
    s_mov_b32 s{base+1}, s{ptr+1}
    s_mov_b32 s{base+2}, {nbytes:#x}
    s_mov_b32 s{base+3}, 0x00020000
    """)


def mfma32(d, a_, b_, c):
    cs = "0" if c is None else vr(c, 16)
    return f"v_mfma_f32_32x32x16_bf16 {vr(d,16)}, {vr(a_,4)}, {vr(b_,4)}, {cs}"


def tr_take(a):
    if PROF >= 2:
        a.e("s_memtime s[80:81]")


def tr_put(a, lane, wait=False):
    if PROF >= 2:
        if wait:
            a.e("s_waitcnt lgkmcnt(0)")
        if isinstance(lane, int):
            a.e(f"v_writelane_b32 v{TRV}, s80, {lane}")
        else:
            a.e(f"s_add_u32 m0, s{lane[1]}, {lane[2]}")
            a.e(f"v_writelane_b32 v{TRV}, s80, m0")


def mfma16(d, a_, b_, c):
    cs = "0" if c is None else vr(c, 4)
    return f"v_mfma_f32_16x16x32_bf16 {vr(d,4)}, {vr(a_,4)}, {vr(b_,4)}, {cs}"


P_X, P_WQ, P_WK, P_WV, P_WO = 4, 6, 8, 10, 12
P_WR, P_GATE, P_UP, P_DOWN, P_GW, P_OUT, P_DBG, P_WS = 16, 18, 20, 22, 24, 26, 28, 30
R_WS, R_A, R_B, R_C = 32, 36, 64, 68
S_TB, S_CB, S_W, S_HAS, S_UNIT = 40, 41, 42, 61, 62

P1_SLOT, P1_NS = 24576, 4
L_GATE, L_UP, L_DOWN = 0, 32768, 0
RING_R, RING_SLOT, L_RING = 4, 16384, 65536
RING_START = L_RING + 2 * RING_SLOT
L_ORING = L_RING
L_XT = 131072
L_RG = L_XT
XS_STRIDE = 528
L_XS = L_XT + 16384
L_FL = L_XS + 8 * XS_STRIDE
F_READY, F_A1, F_A2, F_SEL = L_FL + 1024, L_FL + 1028, L_FL + 1032, L_FL + 1040
LDS_BYTES = L_FL + 1024 + 64

QA, QB = 8, 16
SA, SB = 24, 40
PA, PB = 56, 64
OA, OB = 72, 88
LA, LB = 104, 108
KB, VB = [112, 120], [128, 136]
ASUM, AIDX = 144, 148
VCUR, VNEXT, VPA, VPV, VM, VFL = 149, 150, 151, 152, 153, 154
VG0, VG1, VTAG = 155, 156, 158
SPIN = 0x20000
OSLEEP = int(os.environ.get("OSLEEP", "1"))
GUTH = int(os.environ.get("GUTH", "10"))
CPRIO = int(os.environ.get("CPRIO", "3"))
TOUCH = int(os.environ.get("TOUCH", "0"))


def smf(L, P):
    return f"v_smfmac_f32_16x16x64_bf16 {vr(L,4)}, {vr(ASUM,4)}, {vr(P,8)}, v{AIDX}"


def attn_phase(a, S, P, mf, fill):
    for g in range(4):
        a.e(mf[g])
        for l in fill[g]:
            a.e(l)
        b = S + 4 * g
        for i in range(4):
            a.e(f"v_exp_f32 v{b+i}, v{b+i}")
        a.e(f"v_cvt_pk_bf16_f32 v{P+2*g}, v{b}, v{b+1}")
        if g == 3:
            a.e(mf[4])
            for l in fill[4]:
                a.e(l)
        a.e(f"v_cvt_pk_bf16_f32 v{P+2*g+1}, v{b+2}, v{b+3}")


def softmax_check(a, O, L, lab):
    a.e(f"v_add_f32 v{L}, v{L}, v{L+1}")
    a.e(f"v_maximum3_f32 v4, abs(v{O}), abs(v{O+1}), 0")
    for i in range(2, 16, 2):
        a.e(f"v_maximum3_f32 v4, abs(v{O+i}), abs(v{O+i+1}), v4")
    a.e(f"""
    v_mul_f32 v4, s51, v4
    v_maximum3_f32 v4, v4, v{L}, v{L}
    v_cmp_nle_f32 vcc, v4, s50
    v_cmp_nge_f32 s[52:53], v{L}, s51
    s_nop 0
    s_or_b64 vcc, vcc, s[52:53]
    s_cbranch_vccnz {lab}
    """)


def gather32(a, lab, base, voff, soff):
    a.e("s_mov_b32 s49, 0")
    a.label(lab)
    for q in range(8):
        a.e(f"buffer_load_dwordx4 {vr(base+4*q,4)}, v{voff}, s[32:35], s{soff} offen offset:{q*512} sc1")
    a.e("s_waitcnt vmcnt(0)")
    a.e(f"v_max3_u32 v14, v{base}, v{base+1}, v{base+2}")
    for i in range(3, 31, 2):
        a.e(f"v_max3_u32 v14, v{base+i}, v{base+i+1}, v14")
    a.e(f"""
    v_max_u32 v14, v{base+31}, v14
    v_cmp_eq_u32 vcc, -1, v14
    s_add_u32 s49, s49, 1
    s_cmp_ge_u32 s49, {SPIN}
    s_cbranch_scc1 {lab}_done
    s_cbranch_vccz {lab}_done
    s_sleep 10
    s_branch {lab}
    """)
    a.label(f"{lab}_done")


def lds_wait(a, lab, addr, sleep):
    a.e(f"v_mov_b32 v15, {addr}")
    a.label(lab)
    a.e(f"""
    s_sleep {sleep}
    ds_read_b32 v14, v15
    s_waitcnt lgkmcnt(0)
    v_readfirstlane_b32 s57, v14
    s_nop 0
    s_cmp_eq_u32 s57, 0
    s_cbranch_scc1 {lab}
    """)


def lds_set(a, addr):
    a.e(f"""
    v_mov_b32 v14, 1
    v_mov_b32 v15, {addr}
    ds_write_b32 v15, v14
    """)


def lane_parts(a):
    a.e("""
    v_lshrrev_b32 v6, 4, v1
    v_and_b32 v6, 1, v6                  ; g&1
    v_lshrrev_b32 v7, 5, v1              ; hf
    v_bfe_u32 v8, v1, 2, 2               ; r
    v_and_b32 v9, 3, v1                  ; c
    """)


def w_voffs(a):
    a.e(f"""
    v_lshrrev_b32 v13, 4, v1
    v_lshlrev_b32 v14, 2, v13
    v_and_b32 v15, 15, v1
    v_xor_b32 v14, v14, v15
    v_lshlrev_b32 v8, 11, v13
    v_lshl_add_u32 v8, v14, 4, v8
    s_lshl_b32 s53, s{S_CB}, 8
    v_add_u32 v8, s53, v8
    v_add_u32 v9, 0x1c00, v8             ; + q*8192 - q*1024
    v_add_u32 v10, 0x3800, v8
    v_add_u32 v11, 0x5400, v8
    """)


def barriers(a, n):
    for _ in range(n):
        a.e("s_barrier")


def p1_loader(a, pfx, issue_kv, issue_q):
    n = 12
    a.e("""
    s_mov_b32 s45, 0
    s_mov_b32 s49, 0
    """)
    a.label(f"{pfx}_ld")
    a.e(f"""
    s_cmp_ge_u32 s49, 4
    s_cbranch_scc1 {pfx}_q
    """)
    issue_kv()
    a.e(f"s_branch {pfx}_nx")
    a.label(f"{pfx}_q")
    issue_q()
    a.e("""
    s_add_u32 s59, s59, 1
    s_and_b32 s59, s59, 15
    """)
    a.label(f"{pfx}_nx")
    a.e(f"""
    s_add_u32 s45, s45, {P1_SLOT}
    s_cmp_eq_u32 s45, {P1_SLOT*P1_NS}
    s_cselect_b32 s45, 0, s45
    s_add_u32 s49, s49, 1
    s_cmp_lt_u32 s49, {P1_NS-1}
    s_cbranch_scc1 {pfx}_ld
    s_cmp_lt_u32 s49, 20
    s_waitcnt vmcnt({n*(P1_NS-2)})
    s_barrier
    s_cbranch_scc1 {pfx}_ld
    """)
    for i in range(P1_NS - 3, -1, -1):
        a.e(f"""
        s_waitcnt vmcnt({n*i})
        s_barrier
        """)
    a.e("s_barrier")


def gen():
    a = Asm()
    a.label(NAME + "_kernel")
    a.e("""
    s_cmp_ge_u32 s2, 256
    s_cbranch_scc1 K_end
    """)
    stamp(a, 0, True, False)
    stamp(a, 1, False, True)
    if PROF:
        a.e(f"s_mov_b32 s{PS0+10}, s{PS0+2}")
    a.e(f"""
    s_load_dwordx8 s[4:11], s[0:1], 0
    s_load_dwordx16 s[16:31], s[0:1], 48
    s_load_dwordx2 s[12:13], s[0:1], 32
    v_lshrrev_b32 v2, 6, v0
    v_and_b32 v1, 63, v0
    s_and_b32 s53, s2, 7
    v_readfirstlane_b32 s{S_W}, v2
    v_lshlrev_b32 v3, 4, v1
    s_lshr_b32 s54, s2, 3
    s_lshr_b32 s40, s53, 1
    s_lshl_b32 s40, s40, 3
    s_and_b32 s55, s54, 7
    s_add_u32 s40, s40, s55              ; tb
    s_and_b32 s43, s53, 1
    s_lshl_b32 s41, s43, 2
    s_lshr_b32 s44, s54, 3
    s_add_u32 s41, s41, s44              ; cb
    s_lshl_b32 s59, s55, 1
    s_mul_i32 s{S_UNIT}, s53, 28
    s_add_u32 s{S_UNIT}, s{S_UNIT}, s54
    s_cmp_lt_u32 s54, 28
    s_cselect_b32 s{S_HAS}, 1, 0
    s_cmp_ge_u32 s{S_W}, 2
    s_cbranch_scc1 K_notld
    """)
    w_voffs(a)
    a.e(f"""
    s_waitcnt lgkmcnt(0)
    s_cmp_eq_u32 s43, 0
    s_cselect_b32 s{R_B}, s{P_WK}, s{P_WV}
    s_cselect_b32 s{R_B+1}, s{P_WK+1}, s{P_WV+1}
    s_mov_b32 s{R_B+2}, 0x10000
    s_mov_b32 s{R_B+3}, 0x00020000
    """)
    srd(a, R_C, P_WQ, 1024 * 1024 * 2)
    srd(a, R_WS, P_WS, WS_BYTES)
    a.e(f"""
    s_cmp_eq_u32 s{S_W}, 0
    s_cbranch_scc1 K_ldx
    """)

    def kvgroup(g):
        a.e(f"s_add_u32 m0, s45, {0x2000 + g*4096}")
        a.e(f"s_lshl_b32 s47, s49, 14")
        if g:
            a.e(f"s_add_u32 s47, s47, {g*4096}")
        for q in range(4):
            a.e(f"buffer_load_dwordx4 v3, s[{R_B}:{R_B+3}], s47 offen offset:{q*1024} lds")

    def wgroup(g, first):
        a.e(f"s_add_u32 m0, s45, {0x2000 + g*4096}")
        a.e(first)
        for q in range(4):
            a.e(f"buffer_load_dwordx4 v{8+q}, s[{R_C}:{R_C+3}], s47 offen offset:{q*1024} lds")

    def w_kv():
        for g in range(3):
            kvgroup(g)

    def w_q():
        for g in range(3):
            wgroup(g, "s_lshl_b32 s47, s59, 17" if g == 0 else "s_add_u32 s47, s47, 0x8000")
    p1_loader(a, "P1w", w_kv, w_q)
    a.e("s_branch K_A1")

    a.label("K_ldx")
    srd(a, R_A, P_X, 2048 * 1024 * 2)
    a.e(f"""
    v_lshrrev_b32 v12, 5, v1             ; hi
    s_lshl_b32 s53, s{S_TB}, 6
    s_lshl_b32 s54, s44, 4
    s_add_u32 s54, s54, s53
    v_add_u32 v14, s54, v12
    v_lshlrev_b32 v14, 11, v14
    v_and_b32 v15, 31, v1
    v_xor_b32 v15, v15, v12
    v_lshl_add_u32 v16, v15, 4, v14
    """)
    for q in range(1, 8):
        a.e(f"v_xor_b32 v{16+q}, {2*q*16}, v16")
    for q in range(1, 8):
        a.e(f"v_add_u32 v{16+q}, {q*4096 - (q%4)*1024}, v{16+q}")

    def x_kv():
        a.e("""
        s_mov_b32 m0, s45
        s_lshl_b32 s46, s49, 9
        """)
        for q in range(4):
            a.e(f"buffer_load_dwordx4 v{16+q}, s[{R_A}:{R_A+3}], s46 offen offset:{q*1024} lds")
        a.e("""
        s_add_u32 m0, s45, 0x1000
        s_nop 0
        """)
        for q in range(4):
            a.e(f"buffer_load_dwordx4 v{20+q}, s[{R_A}:{R_A+3}], s46 offen offset:{q*1024} lds")
        kvgroup(3)

    def x_q():
        a.e("""
        s_mov_b32 m0, s45
        s_lshl_b32 s46, s59, 7
        """)
        for q in range(4):
            a.e(f"buffer_load_dwordx4 v{4+q}, s[{R_A}:{R_A+3}], s46 offen offset:{q*1024} lds")
        a.e("""
        s_add_u32 m0, s45, 0x1000
        s_add_u32 s46, s46, 0x10000
        """)
        for q in range(4):
            a.e(f"buffer_load_dwordx4 v{4+q}, s[{R_A}:{R_A+3}], s46 offen offset:{q*1024} lds")
        a.e("s_lshl_b32 s47, s59, 17")
        wgroup(3, "s_add_u32 s47, s47, 0x18000")
    a.e("""
    v_lshrrev_b32 v14, 3, v1
    v_add_u32 v14, s53, v14
    v_lshlrev_b32 v14, 11, v14
    v_xor_b32 v15, v13, v1
    v_and_b32 v15, 7, v15
    v_lshl_add_u32 v4, v15, 4, v14
    v_xor_b32 v15, 4, v15                ; odd q
    v_lshl_add_u32 v5, v15, 4, v14
    v_add_u32 v5, 0x3c00, v5             ; + 16384 - 1024
    v_add_u32 v6, 0x7800, v4
    v_add_u32 v7, 0x7800, v5
    """)
    p1_loader(a, "P1x", x_kv, x_q)
    a.e("s_branch K_A0")

    a.label("K_notld")
    a.e(f"""
    s_cmp_ge_u32 s{S_W}, 4
    s_cbranch_scc1 K_comp
    """)
    gen_kv(a)
    gen_compute(a)
    gen_aux(a)
    gen_fallback(a)
    a.label("K_codeend")
    if PROF >= 2:
        i0 = a.lines.index("K_p3ld:")
        i1 = a.lines.index("K_fallback:")
        out = a.lines[:i0 + 1] + ["s_mov_b32 s79, 32"]
        for l in a.lines[i0 + 1:i1]:
            if l == "s_barrier":
                out += ["s_waitcnt lgkmcnt(0)", "s_mov_b32 m0, s79", f"v_writelane_b32 v{TRV}, s80, m0", "s_addk_i32 s79, 0" if False else "s_mov_b32 s78, scc" if False else "s_cselect_b32 s78, 1, 0",
                        "s_add_u32 s79, s79, 1", "s_cmp_lg_u32 s78, 0", "s_barrier", "s_memtime s[80:81]"]
            elif l == "s_branch K_fin":
                out += ["s_waitcnt lgkmcnt(0)", "s_mov_b32 m0, s79", f"v_writelane_b32 v{TRV}, s80, m0", l]
            else:
                out.append(l)
        a.lines = out + a.lines[i1:]
    return a


def kv_issue(a):
    for g in range(4):
        a.e(f"s_add_u32 m0, s45, {g*4096}")
        a.e("s_nop 0")
        for q in range(4):
            a.e(f"buffer_load_dwordx4 v3, s[32:35], s46 offen offset:{q*1024} sc1 lds")
        a.e("s_add_u32 s46, s46, 0x1000")


def kfl_load(a):
    for q in range(4):
        a.e(f"buffer_load_dwordx4 {vr(32+4*q,4)}, v3, s[32:35], s50 offen offset:{q*1024} sc1")


def kfl_check(a):
    a.e("v_xor_b32 v32, s14, v32")
    a.e("v_xor_b32 v33, s15, v33")
    for i in range(2, 16):
        a.e(f"v_xor_b32 v{32+i}, s{14+i%2}, v{32+i}")
    a.e("v_or3_b32 v32, v32, v33, v34")
    for i in range(3, 15, 2):
        a.e(f"v_or3_b32 v32, v{32+i}, v{33+i}, v32")
    a.e("""
    v_or_b32 v32, v47, v32
    v_cmp_ne_u32 vcc, 0, v32
    """)


def gen_kv(a):
    a.e(f"""
    s_sub_u32 s60, s{S_W}, 2             ; ct
    v_mov_b32 v24, -1
    v_mov_b32 v25, -1
    v_mov_b32 v26, -1
    v_mov_b32 v27, -1
    v_mov_b32 v28, 0
    s_waitcnt lgkmcnt(0)
    """)
    srd(a, R_WS, P_WS, WS_BYTES)
    srd(a, R_A, P_DBG, 256)
    a.e(f"""
    s_cmp_eq_u32 s60, 1
    s_cbranch_scc1 KV_w3
    s_cmp_lg_u32 s2, 0
    s_cbranch_scc1 KV_notag
    s_memrealtime s[14:15]
    s_waitcnt lgkmcnt(0)
    s_or_b32 s14, s14, 1
    v_mov_b32 v30, s14
    v_mov_b32 v31, s15
    s_mov_b64 exec, 1
    buffer_store_dwordx2 v[30:31], v28, s[{R_A}:{R_A+3}], 0 offen sc1
    s_mov_b64 exec, -1
    """)
    a.label("KV_notag")
    a.e(f"""
    s_cmp_lg_u32 s43, 0
    s_cbranch_scc1 KV_norg
    s_mov_b32 m0, {L_RG}
    """)
    srd(a, R_B, P_WR, 2048)
    srd(a, R_C, P_GW, 2048)
    a.e(f"""
    buffer_load_dwordx4 v3, s[{R_B}:{R_B+3}], 0 offen lds
    buffer_load_dwordx4 v3, s[{R_B}:{R_B+3}], 0 offen offset:1024 lds
    s_mov_b32 m0, {L_RG+2048}
    s_nop 0
    buffer_load_dwordx4 v3, s[{R_C}:{R_C+3}], 0 offen lds
    buffer_load_dwordx4 v3, s[{R_C}:{R_C+3}], 0 offen offset:1024 lds
    """)
    a.label("KV_norg")
    a.e(f"""
    s_lshl_b32 s57, s2, 12
    s_add_u32 s57, s57, {WS_PX}
    """)
    for q in range(4):
        a.e(f"buffer_store_dwordx4 v[24:27], v3, s[32:35], s57 offen offset:{q*1024} sc1")
    a.e("""
    s_waitcnt vmcnt(4)
    s_branch KV_go
    """)
    a.label("KV_w3")
    a.e(f"""
    s_getpc_b64 s[50:51]
    KV_pc:
    v_lshlrev_b32 v29, 6, v1
    global_load_dword v32, v29, s[50:51]
    v_add_u32 v29, 0x1000, v29
    global_load_dword v33, v29, s[50:51]
    v_add_u32 v29, 0x1000, v29
    global_load_dword v34, v29, s[50:51]
    v_add_u32 v29, 0x1000, v29
    v_min_u32 v29, K_fallback-KV_pc, v29
    global_load_dword v35, v29, s[50:51]
    v_add_u32 v29, 0x1000, v29
    v_min_u32 v29, K_fallback-KV_pc, v29
    global_load_dword v38, v29, s[50:51]
    v_mov_b32 v29, 0
    v_mov_b32 v30, 0
    v_mov_b32 v31, 0
    v_add_u32 v22, {L_FL}, v3
    v_mov_b32 v21, {F_READY}
    ds_write_b128 v22, v[28:31]
    ds_write_b128 v21, v[28:31]
    s_lshl_b32 s57, s2, 10
    s_add_u32 s57, s57, {WS_YF}
    buffer_store_dwordx4 v[24:27], v3, s[32:35], s57 offen sc1
    v_lshlrev_b32 v22, 2, v1
    s_lshl_b32 s57, s2, 8
    s_add_u32 s57, s57, {WS_HX}
    buffer_store_dword v24, v22, s[32:35], s57 offen sc1
    """)
    a.label("KV_go")
    a.e(f"""
    v_and_b32 v10, 15, v1                ; row / n
    v_lshrrev_b32 v11, 4, v1             ; G
    v_xor_b32 v12, v10, v11
    v_lshlrev_b32 v12, 4, v12
    v_lshl_add_u32 v4, v10, 9, v12
    v_xor_b32 v5, 64, v4
    v_xor_b32 v6, 128, v4
    v_xor_b32 v7, 192, v4
    v_bfe_u32 v12, v1, 2, 2              ; r
    v_lshl_add_u32 v12, v11, 3, v12      ; 8G + r
    v_lshlrev_b32 v12, 6, v12
    v_and_b32 v13, 3, v1
    v_lshl_add_u32 v12, v13, 3, v12
    s_lshl_b32 s57, s60, 5
    s_add_u32 s57, s57, 0x2000
    v_add_u32 v8, s57, v12
    v_and_b32 v12, 1, v1
    v_lshlrev_b32 v12, 11, v12
    v_lshl_add_u32 v12, v11, 4, v12
    v_add_u32 v9, {L_RG}, v12
    """)
    for i in range(8):
        a.e(f"v_mov_b32 v{16+i}, 0")
    a.e("""
    s_mov_b32 s49, 0
    s_cmp_lg_u32 s43, 0
    s_cbranch_scc1 KV_vloop
    s_cmp_lg_u32 s60, 0
    s_cbranch_scc1 KV_kloop
    """)
    for typ in ("r", "k", "v"):
        a.label(f"KV_{typ}loop")
        a.e("s_waitcnt lgkmcnt(0)")
        a.e("s_barrier")
        per = 4 if typ == "r" else 3
        LAG = 3

        def rd(ks):
            a.e(f"""
            ds_read_b128 {vr(48+4*ks,4)}, v{4+ks%4} offset:{(ks//4)*256}
            ds_read_b64_tr_b16 {vr(80+4*ks,2)}, v8 offset:{ks*2048}
            ds_read_b64_tr_b16 {vr(82+4*ks,2)}, v8 offset:{ks*2048+256}
            """)
            if typ == "r":
                a.e(f"ds_read_b128 {vr(112+4*ks,4)}, v9 offset:{ks*64}")

        def mm(ks, outstanding):
            a.e(f"s_waitcnt lgkmcnt({outstanding})")
            a.e(mfma16(16, 48 + 4 * ks, 80 + 4 * ks, 16) if typ == "v" else mfma16(16, 80 + 4 * ks, 48 + 4 * ks, 16))
            if typ == "r":
                a.e(mfma16(20, 112 + 4 * ks, 48 + 4 * ks, 20))
        for ks in range(8):
            if ks >= LAG:
                mm(ks - LAG, per * (LAG - 1))
            rd(ks)
        for r in (4, 5, 6, 7, 8):
            a.e(f"v_add_u32 v{r}, {P1_SLOT}, v{r}")
        a.e(f"""
        v_add_u32 v9, 512, v9
        s_add_u32 s49, s49, 1
        s_cmp_lt_u32 s49, 4
        """)
        for ks in range(8 - LAG, 8):
            mm(ks, per * (7 - ks))
        a.e(f"s_cbranch_scc1 KV_{typ}loop")
        if typ != "v":
            a.e("s_branch KV_store")
    a.label("KV_store")
    a.e(f"""
    buffer_load_dwordx2 v[30:31], v28, s[{R_A}:{R_A+3}], 0 offen sc1
    v_and_b32 v12, 1, v11
    v_lshl_add_u32 v12, v12, 5, v10
    v_lshlrev_b32 v12, 4, v12
    v_lshrrev_b32 v13, 1, v11
    v_lshl_add_u32 v12, v13, 3, v12
    s_and_b32 s54, s44, 1
    s_cmp_eq_u32 s43, 0
    s_cselect_b32 s55, s60, s54
    s_cselect_b32 s56, s54, s60
    s_lshl_b32 s55, s55, 10
    s_lshl_b32 s56, s56, 8
    s_add_u32 s55, s55, s56
    s_lshl_b32 s56, s43, 11
    s_add_u32 s55, s55, s56
    s_lshl_b32 s56, s{S_TB}, 1
    s_lshr_b32 s57, s44, 1
    s_add_u32 s56, s56, s57
    s_lshl_b32 s56, s56, 12
    s_add_u32 s55, s55, s56
    s_add_u32 s55, s55, {WS_KVF}
    s_cmp_eq_u32 s43, 0
    s_cselect_b32 s56, {fbits(QSCALE):#x}, 1.0
    v_mul_f32 v16, s56, v16
    v_mul_f32 v17, s56, v17
    v_mul_f32 v18, s56, v18
    v_mul_f32 v19, s56, v19
    v_cvt_pk_bf16_f32 v14, v16, v17
    v_cvt_pk_bf16_f32 v15, v18, v19
    buffer_store_dwordx2 v[14:15], v12, s[32:35], s55 offen sc1
    s_or_b32 s54, s43, s60
    s_cmp_lg_u32 s54, 0
    s_cbranch_scc1 KV_nokey
    s_mov_b64 exec, 0xffff
    s_lshl_b32 s57, s{S_TB}, 6
    s_lshl_b32 s56, s44, 4
    s_add_u32 s57, s57, s56
    v_add_u32 v12, s57, v1               ; token
    v_cvt_pk_bf16_f32 v36, v20, v20
    v_mul_f32 v21, {fbits(-LOG2E):#x}, v21
    v_and_b32 v36, 0xffff0000, v36
    v_exp_f32 v21, v21
    v_ashrrev_i32 v37, 31, v36
    v_or_b32 v37, 0x80000000, v37
    v_add_f32 v21, 1.0, v21
    v_xor_b32 v36, v36, v37
    v_rcp_f32 v21, v21
    v_and_b32 v36, 0xffff0000, v36
    v_sub_u32 v37, 2047, v12
    v_or_b32 v36, v36, v37
    v_lshlrev_b32 v12, 2, v12
    s_mov_b32 s57, {WS_KEY}
    s_mov_b32 s58, {WS_G}
    buffer_store_dword v36, v12, s[32:35], s57 offen sc1
    buffer_store_dword v21, v12, s[32:35], s58 offen sc1
    s_mov_b64 exec, -1
    """)
    a.label("KV_nokey")
    stamp(a, 2)
    barriers(a, 3)
    a.e("s_mov_b32 s49, 0")
    a.label("KV_tag")
    a.e(f"""
    s_waitcnt vmcnt(0)
    v_readfirstlane_b32 s14, v30
    v_readfirstlane_b32 s15, v31
    s_add_u32 s49, s49, 1
    s_cmp_lg_u32 s14, 0
    s_cbranch_scc1 KV_havetag
    s_cmp_ge_u32 s49, {SPIN}
    s_cbranch_scc1 KV_havetag
    buffer_load_dwordx2 v[30:31], v28, s[{R_A}:{R_A+3}], 0 offen sc1
    s_branch KV_tag
    """)
    a.label("KV_havetag")
    a.e(f"""
    s_lshl_b32 s57, s2, 4
    s_lshl_b32 s56, s60, 3
    s_add_u32 s57, s57, s56
    s_add_u32 s57, s57, {WS_KFL}
    s_mov_b64 exec, 1
    buffer_store_dwordx2 v[30:31], v28, s[32:35], s57 offen sc1
    s_mov_b64 exec, -1
    """)
    stamp(a, 3)
    a.e("""
    s_cmp_eq_u32 s60, 1
    s_cbranch_scc1 KV_ring
    """)
    a.e(f"""
    v_bfe_u32 v8, v1, 2, 2               ; r
    v_lshl_add_u32 v12, v11, 3, v8       ; 8G + r
    v_lshlrev_b32 v12, 7, v12
    v_and_b32 v9, 3, v1
    v_lshl_add_u32 v12, v9, 3, v12
    v_and_b32 v10, 7, v1
    v_mul_u32_u24 v13, {XS_STRIDE}, v10
    v_lshl_add_u32 v13, v11, 4, v13
    v_add_u32 v13, {L_XS}, v13
    v_lshl_add_u32 v11, v11, 3, v10
    v_lshlrev_b32 v11, 4, v11            ; ((l&7) + 8G)*16
    """)
    for i in range(32):
        a.e(f"v_mov_b32 v{16+i}, 0")
    barriers(a, 14)
    a.e("s_branch K_A2")
    a.label("KV_ring")
    a.e(f"""
    s_mov_b32 s50, {WS_KFL}
    s_mov_b32 s45, {RING_START}
    s_mov_b32 s46, {WS_KVF}
    v_and_b32 v20, 3, v1
    v_lshlrev_b32 v20, 8, v20
    v_add_u32 v20, {L_FL}, v20
    v_mov_b32 v21, {F_READY}
    """)
    barriers(a, 7)
    kfl_load(a)
    barriers(a, 3)
    a.e("s_waitcnt vmcnt(0)")
    kfl_check(a)
    a.e("""
    s_mov_b32 s63, 0
    s_mov_b32 s49, 0
    s_cbranch_vccnz KV_late
    s_barrier
    """)
    a.label("KV_first2")
    kv_issue(a)
    a.e(f"""
    s_add_u32 s45, s45, {RING_SLOT}
    s_add_u32 s49, s49, 1
    s_cmp_lg_u32 s63, 0
    s_cbranch_scc1 KV_nobar
    s_barrier
    """)
    a.label("KV_nobar")
    a.e(f"""
    s_cmp_lt_u32 s49, 2
    s_cbranch_scc1 KV_first2
    s_cmp_lg_u32 s63, 0
    s_cbranch_scc1 KV_run
    s_barrier
    s_branch KV_run
    """)
    a.label("KV_late")
    barriers(a, 4)
    a.label("KV_latepoll")
    kfl_load(a)
    a.e(f"""
    s_add_u32 s63, s63, 1
    s_waitcnt vmcnt(0)
    """)
    kfl_check(a)
    a.e(f"""
    s_cmp_ge_u32 s63, {SPIN}
    s_cbranch_scc1 KV_first2
    s_cbranch_vccnz KV_latepoll
    s_branch KV_first2
    """)
    a.label("KV_run")
    a.e("""
    v_mov_b32 v22, 1
    s_waitcnt vmcnt(16)
    ds_write_b32 v21, v22
    """)
    a.label("KV_run2")
    stamp(a, 4)
    a.e(f"s_mov_b32 s45, {L_RING}")
    minprog = f"""
    v_readlane_b32 s58, v23, 0
    v_readlane_b32 s57, v23, 1
    v_readlane_b32 s56, v23, 2
    v_readlane_b32 s55, v23, 3
    s_min_u32 s58, s58, s57
    s_min_u32 s56, s56, s55
    s_min_u32 s58, s58, s56
    s_add_u32 s58, s58, {RING_R}
    """
    a.label("KV_go2")
    a.e("ds_read_b32 v23, v20")
    kv_issue(a)
    a.e(f"""
    s_add_u32 s45, s45, {RING_SLOT}
    s_cmp_eq_u32 s45, {L_RING + RING_SLOT*RING_R}
    s_cselect_b32 s45, {L_RING}, s45
    v_mov_b32 v22, s49
    s_add_u32 s49, s49, 1
    s_waitcnt vmcnt(16) lgkmcnt(0)
    ds_write_b32 v21, v22
    """)
    a.e(minprog)
    a.e("""
    s_min_u32 s58, s58, 16
    s_cmp_lt_u32 s49, s58
    s_cbranch_scc1 KV_go2
    s_cmp_ge_u32 s49, 16
    s_cbranch_scc1 KV_done
    """)
    a.label("KV_poll")
    a.e("""
    s_sleep 8
    ds_read_b32 v23, v20
    s_waitcnt lgkmcnt(0)
    """)
    a.e(minprog)
    a.e("""
    s_cmp_lt_u32 s49, s58
    s_cbranch_scc1 KV_go2
    s_branch KV_poll
    """)
    a.label("KV_done")
    a.e("""
    v_mov_b32 v22, 16
    s_waitcnt vmcnt(0)
    ds_write_b32 v21, v22
    s_waitcnt lgkmcnt(0)
    s_branch K_p3ld
    """)


def gemm_stage2(a, mms, rds, tails):
    cuts = [0, 3, 5, 8, 11, 13, 16]
    waits = {0: 8, 2: 5, 5: 8}
    for g in range(8):
        if g in waits:
            a.e(f"s_waitcnt lgkmcnt({waits[g]})")
        a.e(mms[g])
        if g < 6:
            for l in rds[cuts[g]:cuts[g + 1]]:
                a.e(l)
        if g == 6:
            for t in tails:
                a.e(t)


def gemm_stage(a, mms, rds, tails):
    cuts = [0, 3, 5, 8, 11, 13, 16]
    for l in rds[0:3]:
        a.e(l)
    for g in range(8):
        a.e(mms[g])
        if g < 5:
            for l in rds[cuts[g + 1]:cuts[g + 2]]:
                a.e(l)
            if g == 3:
                a.e("s_waitcnt lgkmcnt(8)")
        elif g >= 8 - len(tails):
            a.e(tails[g - 8 + len(tails)])


def gen_compute(a):
    a.label("K_comp")
    a.e(f"s_setprio {CPRIO}")
    SETS = [dict(X0=160, X1=176, W=192), dict(X0=208, X1=224, W=240)]
    ACC = [24, 40]
    AX = [12, 13, 14, 15]
    if TOUCH:
        a.e(f"""
        s_sub_u32 s60, s{S_W}, 4             ; hh
        v_lshrrev_b32 v5, 1, v1
        v_lshlrev_b32 v5, 11, v5
        v_and_b32 v4, 1, v1
        v_lshl_add_u32 v5, v4, 7, v5
        s_lshl_b32 s54, s59, 17
        s_lshl_b32 s55, s60, 16
        s_add_u32 s54, s54, s55
        s_lshl_b32 s55, s{S_CB}, 8
        s_add_u32 s54, s54, s55
        v_lshlrev_b32 v6, 7, v1
        s_lshl_b32 s55, s{S_TB}, 17
        s_lshl_b32 s56, s44, 15
        s_add_u32 s55, s55, s56
        s_lshl_b32 s56, s60, 13
        s_add_u32 s55, s55, s56
        s_waitcnt lgkmcnt(0)
        """)
        srd(a, R_B, P_X, 2048 * 1024 * 2)
        srd(a, R_C, P_WQ, 1024 * 1024 * 2)
        a.e(f"""
        buffer_load_dword v10, v6, s[{R_B}:{R_B+3}], s55 offen
        buffer_load_dword v11, v5, s[{R_C}:{R_C+3}], s54 offen
        """)
    a.e(f"""
    s_sub_u32 s60, s{S_W}, 4             ; hh
    v_and_b32 v15, 15, v1                ; i
    v_and_b32 v12, 31, v1                ; l32
    v_lshrrev_b32 v14, 5, v1             ; hf
    v_lshlrev_b32 v18, 7, v12            ; row*128
    v_lshrrev_b32 v19, 1, v12
    v_and_b32 v19, 7, v19
    v_xor_b32 v19, v19, v14              ; hf ^ f
    v_lshl_add_u32 v8, v19, 4, v18
    v_lshrrev_b32 v18, 2, v15            ; r
    v_and_b32 v19, 3, v15                ; c
    v_lshl_add_u32 v20, v14, 3, v18      ; 8hf + r
    v_bfe_u32 v21, v1, 4, 1              ; g&1
    s_lshl_b32 s53, s60, 2
    v_lshlrev_b32 v22, 1, v21
    v_lshrrev_b32 v23, 1, v19
    v_add3_u32 v22, v22, v23, s53        ; chunk
    v_lshlrev_b32 v23, 2, v18
    v_xor_b32 v22, v22, v23
    v_lshlrev_b32 v22, 4, v22
    v_lshl_add_u32 v22, v20, 8, v22
    v_and_b32 v23, 1, v19
    v_lshl_add_u32 v22, v23, 3, v22
    v_add_u32 v9, 0x2000, v22
    v_and_b32 v4, 1, v1
    v_mov_b32 v5, 0x4444
    v_mov_b32 v6, 0xeeee
    v_cmp_eq_u32 vcc, 1, v4
    v_and_b32 v4, 6, v1
    v_mov_b32 v7, 0x3f803f80
    v_cndmask_b32 v{AIDX}, v5, v6, vcc
    v_cmp_eq_u32 vcc, 0, v4
    v_cmp_eq_u32 s[50:51], 4, v4
    s_lshl_b32 s52, s60, 8
    v_cndmask_b32 v{ASUM}, 0, v7, vcc
    v_cndmask_b32 v{ASUM+1}, 0, v7, vcc
    v_cndmask_b32 v{ASUM+2}, 0, v7, s[50:51]
    v_cndmask_b32 v{ASUM+3}, 0, v7, s[50:51]
    s_add_u32 s52, s52, {L_FL}
    v_lshl_add_u32 v{VPA}, v1, 2, s52
    v_mov_b32 v{VPV}, 1
    v_mov_b32 v{VFL}, {F_READY}
    v_add_u32 v{VCUR}, {RING_START}, v3
    v_add_u32 v{VNEXT}, {RING_START+RING_SLOT}, v3
    s_mov_b32 s48, {RING_START+RING_SLOT}
    v_mov_b32 v12, v8
    v_mov_b32 v16, v9
    v_xor_b32 v13, 32, v8
    v_xor_b32 v14, 64, v8
    v_xor_b32 v15, 0x60, v8
    s_mov_b32 s44, 0
    s_mov_b32 s49, 0
    s_waitcnt lgkmcnt(0)
    """)
    srd(a, R_WS, P_WS, WS_BYTES)
    srd(a, R_A, P_DBG, 256)
    a.e("s_barrier")
    tr_take(a)
    for r in list(range(24, 56)) + list(range(OA, OA + 40)):
        a.e(f"v_mov_b32 v{r}, 0")
    tr_put(a, 0, True)
    a.e("s_barrier")
    tr_take(a)
    for r in list(range(PB, PB + 8)) + list(range(VB[1], VB[1] + 8)) + list(range(208, 256)):
        a.e(f"v_mov_b32 v{r}, 0")
    tr_put(a, 1, True)
    for i in (2, 3):
        a.e("s_barrier")
        tr_take(a)
        tr_put(a, i, True)
    a.label("P1_loop")
    for par in range(2):
        cur, prev = SETS[par], SETS[1 - par]
        a.e("s_barrier")
        tr_take(a)
        mms = []
        for i in range(4):
            mms.append(mfma32(ACC[0], prev["W"] + 4 * i, prev["X0"] + 4 * i, ACC[0]))
            mms.append(mfma32(ACC[1], prev["W"] + 4 * i, prev["X1"] + 4 * i, ACC[1]))
        rds = []
        for i in range(4):
            rds += [f"ds_read_b128 {vr(cur['X0']+4*i,4)}, v{AX[i]}",
                    f"ds_read_b64_tr_b16 {vr(cur['W']+4*i,2)}, v16 offset:{i*4096}",
                    f"ds_read_b64_tr_b16 {vr(cur['W']+4*i+2,2)}, v16 offset:{i*4096+1024}",
                    f"ds_read_b128 {vr(cur['X1']+4*i,4)}, v{AX[i]} offset:4096"]
        gemm_stage(a, mms, rds, [f"""
        s_add_u32 s44, s44, {P1_SLOT}
        s_cmp_eq_u32 s44, {P1_SLOT*P1_NS}
        s_cselect_b32 s44, 0, s44
        v_add_u32 v12, s44, v8
        v_add_u32 v16, s44, v9
        """, """
        v_xor_b32 v13, 32, v12
        v_xor_b32 v14, 64, v12
        v_xor_b32 v15, 0x60, v12
        s_add_u32 s49, s49, 1
        s_waitcnt lgkmcnt(0)
        """])
        tr_put(a, ("s", 49, 3))
    a.e("""
    s_cmp_lt_u32 s49, 16
    s_cbranch_scc1 P1_loop
    s_barrier
    """)
    for t in range(2):
        for i in range(4):
            a.e(mfma32(ACC[t], SETS[1]["W"] + 4 * i, SETS[1]["X0" if t == 0 else "X1"] + 4 * i, ACC[t]))
    stamp(a, 2)
    a.e(f"""
    s_lshl_b32 s45, s{S_TB}, 6
    s_lshl_b32 s46, s{S_CB}, 2
    s_add_u32 s45, s45, s46
    s_add_u32 s45, s45, s60
    s_lshl_b32 s45, s45, 11
    s_add_u32 s46, s45, 0x10000          ; tile B
    s_mov_b32 s49, 2
    """)
    a.label("K_first")
    a.e(f"""
    ds_read_b32 v4, v{VFL}
    s_waitcnt vmcnt(0) lgkmcnt(0)
    v_readfirstlane_b32 s47, v4
    s_nop 0
    s_cmp_lg_u32 s47, 0
    s_cbranch_scc0 K_first
    ds_read_b128 {vr(KB[0],4)}, v{VCUR}
    ds_read_b128 {vr(KB[0]+4,4)}, v{VCUR} offset:1024
    ds_read_b128 {vr(KB[1],4)}, v{VCUR} offset:4096
    ds_read_b128 {vr(KB[1]+4,4)}, v{VCUR} offset:5120
    ds_read_b128 {vr(VB[0],4)}, v{VCUR} offset:2048
    ds_read_b128 {vr(VB[0]+4,4)}, v{VCUR} offset:3072
    """)
    for t in range(2):
        for i in range(8):
            a.e(f"v_cvt_pk_bf16_f32 v{[QA,QB][t]+i}, v{ACC[t]+2*i}, v{ACC[t]+1+2*i}")
        if t == 0:
            a.e("s_waitcnt lgkmcnt(0)")
            a.e("s_nop 0")
            a.e(mfma32(SA, KB[0], QA, None))
            a.e(mfma32(SA, KB[0] + 4, QA + 4, SA))
    a.e(f"""
    v_and_b32 v4, 31, v1
    v_lshlrev_b32 v4, 2, v4
    v_mov_b32 v5, 0
    s_lshl_b32 s52, s{S_TB}, 8
    s_add_u32 s52, s52, {WS_G}
    buffer_load_dword v{VG0}, v4, s[32:35], s52 offen sc1
    buffer_load_dword v{VG1}, v4, s[32:35], s52 offen offset:128 sc1
    """)
    if DBGQ:
        a.e(f"""
        buffer_store_dwordx4 {vr(QA,4)}, v3, s[32:35], s45 offen
        buffer_store_dwordx4 {vr(QA+4,4)}, v3, s[32:35], s45 offen offset:1024
        buffer_store_dwordx4 {vr(QB,4)}, v3, s[32:35], s46 offen
        buffer_store_dwordx4 {vr(QB+4,4)}, v3, s[32:35], s46 offen offset:1024
        """)
    stamp(a, 3)
    a.e("s_setprio 0")
    a.e(".p2align 6")
    a.label("K_loop")
    for j in range(4):
        p, n = j % 2, (j + 1) % 2
        ka = (VCUR, (j + 2) * 4096) if j < 2 else (VNEXT, (j - 2) * 4096)
        va = (VCUR, (j + 1) * 4096 + 2048) if j < 3 else (VNEXT, 2048)
        attn_phase(a, SA, PA, [
            mfma32(SB, KB[p], QB, None),
            mfma32(SB, KB[p] + 4, QB + 4, SB),
            mfma32(OB, VB[n], PB, OB),
            mfma32(OB, VB[n] + 4, PB + 4, OB),
            smf(LB, PB)],
            [[f"ds_read_b128 {vr(KB[p],4)}, v{ka[0]} offset:{ka[1]}"],
             [f"ds_read_b128 {vr(KB[p]+4,4)}, v{ka[0]} offset:{ka[1]+1024}"],
             [f"ds_read_b128 {vr(VB[n],4)}, v{va[0]} offset:{va[1]}"],
             [f"ds_read_b128 {vr(VB[n]+4,4)}, v{va[0]} offset:{va[1]+1024}"],
             ["s_waitcnt lgkmcnt(4)"]])
        fill = [[], [], [], [], []]
        if j == 0:
            fill[0] = [f"ds_read_b32 v4, v{VFL}"]
            fill[1] = [f"s_add_u32 s48, s48, {RING_SLOT}"]
            fill[2] = [f"s_cmp_eq_u32 s48, {L_RING + RING_R*RING_SLOT}"]
            fill[3] = [f"s_cselect_b32 s48, {L_RING}, s48"]
        if j == 1:
            fill[0] = ["v_readfirstlane_b32 s47, v4"]
            fill[2] = ["s_cmp_ge_u32 s47, s49"]
            fill[3] = ["s_cbranch_scc0 K_poll", "K_ok:"]
        if j == 2:
            fill[0] = [f"ds_write_b32 v{VPA}, v{VPV}"]
            fill[1] = ["s_add_u32 s49, s49, 1"]
        if j == 3:
            fill[0] = [f"v_mov_b32 v{VCUR}, v{VNEXT}", f"v_add_u32 v{VNEXT}, s48, v3", f"v_add_u32 v{VPV}, 1, v{VPV}"]
            fill[3] = ["s_cmp_lt_u32 s49, 18"]
        attn_phase(a, SB, PB, [
            mfma32(SA, KB[n], QA, None),
            mfma32(SA, KB[n] + 4, QA + 4, SA),
            mfma32(OA, VB[p], PA, OA),
            mfma32(OA, VB[p] + 4, PA + 4, OA),
            smf(LA, PA)], fill)
    a.e("s_cbranch_scc1 K_loop")
    a.e(f"s_setprio {CPRIO}")
    a.e("s_waitcnt lgkmcnt(0)")
    stamp(a, 4)
    a.e(mfma32(OB, VB[1], PB, OB))
    a.e(mfma32(OB, VB[1] + 4, PB + 4, OB))
    a.e(smf(LB, PB))
    a.e(f"""
    s_mov_b32 s50, 0x5f800000            ; 2^64
    s_mov_b32 s51, 0x1f800000            ; 2^-64
    s_add_u32 s45, s45, {WS_OF}
    s_add_u32 s46, s46, {WS_OF}
    s_nop 3
    """)
    def norm_store(O, L, P, so):
        a.e(f"""
        v_rcp_f32 v6, v{L}
        s_nop 0
        """)
        for i in range(8):
            a.e(f"v_pk_mul_f32 {vr(O+2*i,2)}, {vr(O+2*i,2)}, v[6:7] op_sel_hi:[1,0]")
        for i in range(8):
            a.e(f"v_cvt_pk_bf16_f32 v{P+i}, v{O+2*i}, v{O+2*i+1}")
        a.e(f"""
        buffer_store_dwordx4 {vr(P,4)}, v3, s[32:35], s{so} offen sc1
        buffer_store_dwordx4 {vr(P+4,4)}, v3, s[32:35], s{so} offen offset:1024 sc1
        """)
    softmax_check(a, OA, LA, "K_fallback")
    norm_store(OA, LA, PA, 45)
    softmax_check(a, OB, LB, "K_fallback")
    a.label("K_normB")
    norm_store(OB, LB, PB, 46)
    a.norm_store = norm_store
    SETS = [dict(X0=160, X1=176, W=192), dict(X0=208, X1=224, W=240)]
    ACC = [72, 88]
    B = [104, 120]
    YA = [24, 40]
    YF_ = 160
    SELB = [56, 60]
    lane_parts(a)
    a.e(f"""
    s_lshl_b32 s50, s{S_TB}, 8
    s_lshl_b32 s55, s{S_CB}, 2
    s_add_u32 s55, s55, s60              ; ct
    s_lshl_b32 s51, s55, 3
    s_add_u32 s50, s50, s51
    s_add_u32 s50, s50, {WS_OFL}
    v_lshl_add_u32 v20, v7, 2, v8        ; 4hf + r
    v_lshlrev_b32 v22, 1, v6             ; (g&1)*2
    v_lshrrev_b32 v23, 1, v9             ; c>>1
    s_lshl_b32 s53, s60, 2
    v_add3_u32 v22, v22, v23, s53        ; chunk
    v_lshlrev_b32 v23, 2, v8
    v_xor_b32 v22, v22, v23
    v_lshlrev_b32 v22, 4, v22
    v_lshl_add_u32 v22, v20, 8, v22
    v_and_b32 v23, 1, v9
    v_lshl_add_u32 v9, v23, 3, v22
    v_mov_b32 v4, 0
    v_and_b32 v10, 31, v1
    s_lshl_b32 s56, s{S_TB}, 6
    v_add_u32 v11, s56, v10
    s_lshl_b32 s72, s55, 6
    s_add_u32 s73, s72, 0x10000
    v_lshlrev_b32 v6, 11, v11
    v_lshl_add_u32 v6, v7, 4, v6
    v_add_u32 v16, s53, v7
    v_and_b32 v17, 15, v10
    v_xor_b32 v16, v16, v17
    v_lshlrev_b32 v16, 4, v16
    v_lshl_add_u32 v16, v10, 8, v16
    v_add_u32 v16, {L_XT}, v16
    v_xor_b32 v17, 32, v16
    v_lshlrev_b32 v19, 4, v7
    v_add_u32 v19, {F_SEL}, v19
    v_add_u32 v12, {L_ORING}, v3
    s_lshr_b32 s56, s60, 1
    s_lshl_b32 s56, s56, 13
    s_and_b32 s57, s60, 1
    s_lshl_b32 s57, s57, 11
    s_add_u32 s56, s56, s57
    v_add_u32 v18, s56, v12
    v_mov_b32 v13, v9
    s_mov_b32 s44, {L_ORING}
    s_mov_b32 s43, 0
    s_mov_b32 s49, 0
    """)
    srd(a, R_A, P_OUT, 2048 * 1024 * 2)
    a.e(f"""
    s_barrier
    ds_write_b128 v18, {vr(PA,4)}
    ds_write_b128 v18, {vr(PA+4,4)} offset:1024
    ds_write_b128 v18, {vr(PB,4)} offset:4096
    ds_write_b128 v18, {vr(PB+4,4)} offset:5120
    ds_read_b128 v[24:27], v19
    ds_read_b128 v[136:139], v16
    ds_read_b128 v[140:143], v17
    ds_read_b128 v[144:147], v16 offset:8192
    ds_read_b128 v[148:151], v17 offset:8192
    v_sub_u32 v11, 2047, v11
    v_subrev_u32 v19, 32, v11
    s_waitcnt lgkmcnt(0)
    """)

    def b_term():
        a.e(f"""
        v_sub_f32 v14, 1.0, v{VG0}
        v_sub_f32 v15, 1.0, v{VG1}
        """)
        for i in range(4):
            a.e(f"v_and_b32 v{28+i}, 0x7ff, v{24+i}")
        for t in range(2):
            tv = [11, 19][t]
            a.e(f"""
            v_cmp_eq_u32 s[64:65], v28, v{tv}
            v_cmp_eq_u32 s[66:67], v29, v{tv}
            v_cmp_eq_u32 s[68:69], v30, v{tv}
            v_cmp_eq_u32 vcc, v31, v{tv}
            s_or_b64 s[64:65], s[64:65], s[66:67]
            s_or_b64 s[68:69], s[68:69], vcc
            s_or_b64 s[64:65], s[64:65], s[68:69]
            s_or_b32 s{74+t}, s64, s65
            """)
        for t in range(2):
            for i in range(8):
                a.e(f"""
                v_lshlrev_b32 v{B[t]+2*i}, 16, v{136+8*t+i}
                v_and_b32 v{B[t]+1+2*i}, 0xffff0000, v{136+8*t+i}
                """)
        a.e("""
        s_or_b32 s71, s74, s75
        s_cmp_lg_u32 s71, 0
        s_cbranch_scc1 K_y
        """)
        a.label("K_yback")
        for t in range(2):
            for i in range(8):
                a.e(f"v_pk_mul_f32 {vr(B[t]+2*i,2)}, {vr(B[t]+2*i,2)}, v[14:15] op_sel:[0,{t}] op_sel_hi:[1,{t}]")

    def p3_stage(par, extra, mode=0):
        cur, prev = SETS[par], SETS[1 - par]
        if mode != 2:
            a.e("s_barrier")
        mms = []
        for i in range(4):
            z = mode == 2 and i == 0
            mms.append(mfma32(ACC[0], prev["W"] + 4 * i, prev["X0"] + 4 * i, None if z else ACC[0]))
            mms.append(mfma32(ACC[1], prev["W"] + 4 * i, prev["X1"] + 4 * i, None if z else ACC[1]))
        if mode == 1:
            mms = [""] * 8
        rds = []
        for i in range(4):
            rds += [f"ds_read_b128 {vr(cur['X0']+4*i,4)}, v12 offset:{i*1024}",
                    f"ds_read_b64_tr_b16 {vr(cur['W']+4*i,2)}, v13 offset:{i*4096}",
                    f"ds_read_b64_tr_b16 {vr(cur['W']+4*i+2,2)}, v13 offset:{i*4096+2048}",
                    f"ds_read_b128 {vr(cur['X1']+4*i,4)}, v12 offset:{4096+i*1024}"]
        adv = [f"s_add_u32 s44, s44, 0x2000", f"s_cmp_eq_u32 s44, {L_ORING+32768}", f"s_cselect_b32 s44, {L_XT}, s44",
               f"s_cmp_eq_u32 s44, {L_XT+16384}", f"s_cselect_b32 s44, {L_ORING}, s44",
               "s_add_u32 s43, s43, 0x4000", "s_cmp_eq_u32 s43, 0x10000", "s_cselect_b32 s43, 0x18000, s43",
               "s_cmp_eq_u32 s43, 0x20000", "s_cselect_b32 s43, 0, s43"]
        mm2 = [m + "\n" + "\n".join(adv[2 * g:2 * g + 2]) if g < 5 else m for g, m in enumerate(mms)]
        gemm_stage2(a, mm2, rds, ["v_add_u32 v12, s44, v3", "v_add_u32 v13, s43, v9", "s_add_u32 s49, s49, 1"] + extra)
    p3_stage(0, [], 1)
    p3_stage(1, [], 2)
    a.e("""
    s_waitcnt vmcnt(0) lgkmcnt(0)
    s_barrier
    """)
    b_term()
    a.e("s_barrier")
    a.e(".p2align 6")
    a.label("P3_loop")
    p3_stage(0, [])
    p3_stage(1, ["s_cmp_lt_u32 s49, 16"])
    a.e("""
    s_cbranch_scc1 P3_loop
    s_waitcnt lgkmcnt(0)
    """)
    stamp(a, 5)
    for t in range(2):
        for i in range(4):
            a.e(mfma32(ACC[t], SETS[1]["W"] + 4 * i, SETS[1]["X0" if t == 0 else "X1"] + 4 * i, ACC[t]))
    a.e("s_nop 7")
    for t in range(2):
        g_ = [VG0, VG1][t]
        for i in range(4):
            a.e(f"v_permlane32_swap_b32 v{ACC[t]+i}, v{ACC[t]+4+i}")
        for i in range(4):
            a.e(f"v_permlane32_swap_b32 v{ACC[t]+8+i}, v{ACC[t]+12+i}")
        for i in range(16):
            a.e(f"v_fmac_f32 v{B[t]+i}, v{ACC[t]+i}, v{g_}")
        for i in range(8):
            a.e(f"v_cvt_pk_bf16_f32 v{24+8*t+i}, v{B[t]+2*i}, v{B[t]+1+2*i}")
        a.e(f"""
        buffer_store_dwordx4 {vr(24+8*t,4)}, v6, s[{R_A}:{R_A+3}], s{72+t} offen
        buffer_store_dwordx4 {vr(28+8*t,4)}, v6, s[{R_A}:{R_A+3}], s{72+t} offen offset:32
        """)
    a.label("K_fin")
    if os.environ.get("DBGT"):
        srd(a, R_A, P_DBG, 256)
        a.e(f"""
        s_cmp_lg_u32 s42, 5
        s_cbranch_scc1 K_end
        s_waitcnt vmcnt(0)
        s_memrealtime s[50:51]
        s_waitcnt lgkmcnt(0)
        s_mov_b64 exec, 1
        v_mov_b32 v4, s50
        v_mov_b32 v5, 8
        buffer_atomic_umax v4, v5, s[{R_A}:{R_A+3}], 0 offen sc1
        """)
    if PROF:
        a.e("s_waitcnt vmcnt(0)")
    stamp_flush(a, 0)
    a.label("K_end")
    a.e("s_endpgm")
    a.label("K_poll")
    a.e(f"""
    s_cmp_gt_u32 s49, 16
    s_cbranch_scc1 K_ok
    ds_read_b32 v4, v{VFL}
    s_waitcnt lgkmcnt(0)
    v_readfirstlane_b32 s47, v4
    s_nop 0
    s_cmp_ge_u32 s47, s49
    s_cbranch_scc1 K_ok
    s_branch K_poll
    """)
    a.label("K_y")
    a.e(f"""
    s_mul_i32 s56, s55, 7168
    s_add_u32 s56, s56, {WS_YF}
    s_add_u32 s57, s56, 4096
    s_mov_b32 s58, 0
    """)
    for i in range(4):
        a.e(f"""
        v_and_b32 v{24+i}, 0xffff0000, v{24+i}
        v_ashrrev_i32 v20, 31, v{24+i}
        v_not_b32 v20, v20
        v_or_b32 v20, 0x80000000, v20
        v_xor_b32 v{24+i}, v{24+i}, v20
        v_and_b32 v{24+i}, 0xffff0000, v{24+i}
        v_mul_f32 v{24+i}, {fbits(-LOG2E):#x}, v{24+i}
        v_exp_f32 v{24+i}, v{24+i}
        s_nop 0
        v_add_f32 v{24+i}, 1.0, v{24+i}
        v_rcp_f32 v{24+i}, v{24+i}
        """)
    for t in range(2):
        tv = [11, 19][t]
        a.e(f"""
        v_cmp_eq_u32 s[64:65], v28, v{tv}
        v_cmp_eq_u32 s[66:67], v29, v{tv}
        v_cmp_eq_u32 s[68:69], v30, v{tv}
        v_cmp_eq_u32 vcc, v31, v{tv}
        v_cndmask_b32 v20, 0, v24, s[64:65]
        v_cndmask_b32 v21, 0, v25, s[66:67]
        v_cndmask_b32 v22, 0, v26, s[68:69]
        v_cndmask_b32 v23, 0, v27, vcc
        v_cvt_pk_bf16_f32 v{SELB[t]}, v20, v21
        v_cvt_pk_bf16_f32 v{SELB[t]+1}, v22, v23
        v_cvt_pk_bf16_f32 v{SELB[t]+2}, v20, v21
        v_cvt_pk_bf16_f32 v{SELB[t]+3}, v22, v23
        """)
    a.label("K_ychk")
    for k in range(7):
        a.e(f"buffer_load_dwordx4 {vr(YF_+4*k,4)}, v3, s[32:35], s{56+k//4} offen offset:{(k%4)*1024} sc1")
    a.e("s_waitcnt vmcnt(0)")
    a.e(f"v_max3_u32 v20, v{YF_}, v{YF_+1}, v{YF_+2}")
    for i in range(3, 27, 2):
        a.e(f"v_max3_u32 v20, v{YF_+i}, v{YF_+i+1}, v20")
    a.e(f"""
    v_max_u32 v20, v{YF_+27}, v20
    v_cmp_eq_u32 vcc, -1, v20
    s_add_u32 s58, s58, 1
    s_cmp_ge_u32 s58, {SPIN}
    s_cbranch_scc1 K_ygo
    s_cbranch_vccnz K_ychk
    """)
    a.label("K_ygo")
    for k in range(7):
        for t in range(2):
            a.e(mfma32(YA[t], YF_ + 4 * k, SELB[t], None if k == 0 else YA[t]))
    a.e("s_nop 15")
    for t in range(2):
        for i in range(4):
            a.e(f"v_permlane32_swap_b32 v{YA[t]+i}, v{YA[t]+4+i}")
        for i in range(4):
            a.e(f"v_permlane32_swap_b32 v{YA[t]+8+i}, v{YA[t]+12+i}")
        a.e(f"""
        s_mov_b32 exec_lo, s{74+t}
        s_mov_b32 exec_hi, s{74+t}
        """)
        for i in range(16):
            a.e(f"v_add_f32 v{B[t]+i}, v{B[t]+i}, v{YA[t]+i}")
        a.e("s_mov_b64 exec, -1")
    a.e("s_branch K_yback")


def gen_fallback(a):
    a.label("K_fallback")
    for r in range(OA, OA + 40):
        a.e(f"v_mov_b32 v{r}, 0")
    MA, MB = VM, VFL
    a.e(f"""
    v_mov_b32 v{MA}, 0xff800000
    v_mov_b32 v{MB}, 0xff800000
    s_mov_b32 s49, 0
    s_mov_b32 s48, {WS_KVF}
    """)
    a.label("K_fb_loop")
    a.e(f"""
    buffer_load_dwordx4 {vr(KB[0],4)}, v3, s[32:35], s48 offen sc1
    buffer_load_dwordx4 {vr(KB[0]+4,4)}, v3, s[32:35], s48 offen offset:1024 sc1
    buffer_load_dwordx4 {vr(VB[0],4)}, v3, s[32:35], s48 offen offset:2048 sc1
    buffer_load_dwordx4 {vr(VB[0]+4,4)}, v3, s[32:35], s48 offen offset:3072 sc1
    s_add_u32 s48, s48, 0x1000
    s_waitcnt vmcnt(0)
    """)
    for (Q, O, L, M) in ((QA, OA, LA, MA), (QB, OB, LB, MB)):
        a.e(mfma32(SA, KB[0], Q, None))
        a.e(mfma32(SA, KB[0] + 4, Q + 4, SA))
        a.e("s_nop 15")
        a.e(f"v_max3_f32 v4, v{SA}, v{SA+1}, v{M}")
        for i in range(2, 16, 2):
            a.e(f"v_max3_f32 v4, v{SA+i}, v{SA+i+1}, v4")
        a.e(f"""
        v_mov_b32 v5, v4
        s_nop 1
        v_permlane32_swap_b32 v4, v5
        s_nop 1
        v_max_f32 v4, v4, v5
        v_sub_f32 v5, v{M}, v4
        v_exp_f32 v5, v5                     ; alpha
        v_mov_b32 v{M}, v4
        """)
        for i in range(16):
            a.e(f"v_sub_f32 v{SA+i}, v{SA+i}, v4")
        for i in range(16):
            a.e(f"v_exp_f32 v{SA+i}, v{SA+i}")
        for i in range(16):
            a.e(f"v_mul_f32 v{O+i}, v{O+i}, v5")
        for i in range(4):
            a.e(f"v_mul_f32 v{L+i}, v{L+i}, v5")
        for i in range(8):
            a.e(f"v_cvt_pk_bf16_f32 v{PA+i}, v{SA+2*i}, v{SA+2*i+1}")
        a.e("s_nop 1")
        a.e(mfma32(O, VB[0], PA, O))
        a.e(mfma32(O, VB[0] + 4, PA + 4, O))
        a.e(smf(L, PA))
        a.e("s_nop 15")
    a.e(f"""
    s_add_u32 s49, s49, 1
    s_cmp_lt_u32 s49, 64
    s_cbranch_scc1 K_fb_loop
    v_add_f32 v{LA}, v{LA}, v{LA+1}
    v_add_f32 v{LB}, v{LB}, v{LB+1}
    """)
    a.norm_store(OA, LA, PA, 45)
    a.e("s_branch K_normB")


def gen_aux(a):
    KEY = 16
    a.label("K_A0")
    lds_wait(a, "K_wS1", F_READY, 2)
    a.e(f"s_mov_b32 s50, {WS_KEY}")
    a.e(f"s_mov_b32 s51, {WS_KEY+4096}")
    for j in range(8):
        a.e(f"buffer_load_dwordx4 {vr(KEY+4*j,4)}, v3, s[32:35], s{50+j//4} offen offset:{(j%4)*1024} sc1")
    srd(a, R_B, P_GATE, 1024 * 3584 * 2)
    srd(a, R_C, P_UP, 1024 * 3584 * 2)
    a.e(f"""
    s_and_b32 s74, s62, 3                ; kq
    v_lshrrev_b32 v4, 3, v1
    v_mul_u32_u24 v4, 7168, v4
    v_and_b32 v5, 7, v1
    v_lshl_add_u32 v4, v5, 4, v4
    s_lshr_b32 s47, s62, 2
    s_lshl_b32 s47, s47, 7
    s_mul_i32 s48, s74, {256*7168}
    s_add_u32 s47, s47, s48
    s_mov_b32 s48, 0
    s_lshl_b32 s75, s74, 9               ; kq*512
    v_mov_b32 v10, 0
    s_mov_b32 s49, 0
    s_mov_b32 s52, {L_XS}
    s_waitcnt vmcnt(0)
    """)
    stamp(a, 2)
    a.label("K2_top")
    a.e("""
    s_cmp_eq_u32 s61, 0
    s_cbranch_scc1 K2_top_nodma
    """)
    if GUTH:
        a.e(f"s_waitcnt vmcnt({GUTH})")
    for i in range(4):
        a.e(f"""
        s_add_u32 m0, s48, {L_GATE}
        s_nop 0
        buffer_load_dwordx4 v4, s[64:67], s47 offen lds
        s_add_u32 m0, s48, {L_UP}
        s_add_u32 s48, s48, 1024
        buffer_load_dwordx4 v4, s[68:71], s47 offen lds
        s_add_u32 s47, s47, {8*7168}
        """)
    a.label("K2_top_nodma")
    a.e(f"v_max3_u32 v11, v{KEY}, v{KEY+1}, v{KEY+2}")
    a.e(f"v_max3_u32 v12, v{KEY+3}, v{KEY+4}, v{KEY+5}")
    for i in range(6, 30, 4):
        a.e(f"v_max3_u32 v11, v{KEY+i}, v{KEY+i+1}, v11")
        a.e(f"v_max3_u32 v12, v{KEY+i+2}, v{KEY+i+3}, v12")
    a.e(f"v_max3_u32 v11, v{KEY+30}, v{KEY+31}, v11")
    a.e("v_max_u32 v11, v11, v12")
    for ctl in ("row_shr:1", "row_shr:2", "row_shr:4", "row_shr:8", "row_bcast:15 row_mask:0xa", "row_bcast:31 row_mask:0xc"):
        a.e("s_nop 1")
        a.e(f"v_max_u32_dpp v11, v11, v11 {ctl}")
    a.e(f"""
    s_nop 1
    v_readlane_b32 s53, v11, 63
    s_lshl_b64 exec, 1, s49
    s_nop 0
    s_and_b32 s54, s53, 0x7ff
    v_mov_b32 v10, s53
    s_mov_b32 exec_lo, -1
    s_mov_b32 exec_hi, 0
    s_sub_u32 s54, 2047, s54             ; token
    s_lshl_b32 s55, s54, 11
    s_mov_b32 m0, s52
    s_add_u32 s55, s55, s75
    buffer_load_dwordx4 v3, s[36:39], s55 offen lds
    s_lshr_b32 s72, s54, 8
    s_add_u32 s52, s52, {XS_STRIDE}
    s_lshl_b32 s72, s72, 2
    s_and_b32 s73, s54, 3
    s_add_u32 s72, s72, s73
    s_bfe_u32 s73, s54, 0x60002
    s_lshl_b64 exec, 1, s73
    s_set_gpr_idx_on s72, 0x8
    v_mov_b32 v{KEY}, 0
    s_set_gpr_idx_off
    s_mov_b64 exec, -1
    s_add_u32 s49, s49, 1
    s_cmp_lt_u32 s49, 8
    s_cbranch_scc1 K2_top
    """)
    stamp(a, 3)
    a.e(f"""
    v_lshlrev_b32 v12, 2, v1
    v_add_u32 v12, {F_SEL}, v12
    s_mov_b64 exec, 0xff
    ds_write_b32 v12, v10
    s_mov_b64 exec, -1
    v_lshrrev_b32 v13, 4, v1
    v_and_b32 v12, 15, v1
    v_xor_b32 v12, v12, v13              ; p ^ (lane>>4)
    s_lshl_b32 s53, s40, 6
    v_add_u32 v13, s53, v13
    v_lshlrev_b32 v13, 11, v13
    s_lshl_b32 s53, s41, 8
    v_add_u32 v13, s53, v13
    v_lshl_add_u32 v16, v12, 4, v13
    v_xor_b32 v17, 64, v16
    v_xor_b32 v18, 128, v16
    v_xor_b32 v19, 192, v16
    v_add_u32 v17, 0x1c00, v17
    v_add_u32 v18, 0x3800, v18
    v_add_u32 v19, 0x5400, v19
    s_waitcnt vmcnt(0)
    """)
    stamp(a, 4)
    lds_set(a, F_A1)
    for g in range(4):
        a.e(f"s_mov_b32 m0, {L_XT + g*4096}")
        a.e(f"s_mov_b32 s47, {g*32768}")
        for q in range(4):
            a.e(f"buffer_load_dwordx4 v{16+q}, s[36:39], s47 offen offset:{q*1024} lds")
    a.e("""
    s_waitcnt vmcnt(0) lgkmcnt(0)
    s_branch K_p3ld
    """)
    a.label("K_A2")
    a.e("""
    s_cmp_eq_u32 s61, 0
    s_cbranch_scc1 K_p3ld
    s_mov_b32 s49, 0
    """)
    ACC = 16
    lds_wait(a, "K2_wA1", F_A1, 16)
    stamp(a, 2)
    a.label("K2_up")
    a.e("ds_read_b128 v[48:51], v13")
    for t in range(8):
        j, M = t // 2, t % 2
        a.e(f"""
        ds_read_b64_tr_b16 {vr(52+4*t,2)}, v12 offset:{M*32768+j*32}
        ds_read_b64_tr_b16 {vr(54+4*t,2)}, v12 offset:{M*32768+j*32+512}
        """)
        if t >= 4:
            a.e("s_waitcnt lgkmcnt(8)")
            a.e(mfma16(ACC + 4 * (t - 4), 52 + 4 * (t - 4), 48, ACC + 4 * (t - 4)))
    a.e("""
    v_add_u32 v12, 4096, v12
    v_add_u32 v13, 64, v13
    s_add_u32 s49, s49, 1
    s_cmp_lt_u32 s49, 8
    """)
    for t in range(4, 8):
        a.e(f"s_waitcnt lgkmcnt({14-2*t})")
        a.e(mfma16(ACC + 4 * t, 52 + 4 * t, 48, ACC + 4 * t))
    a.e("s_cbranch_scc1 K2_up")
    stamp(a, 3)
    lds_set(a, F_A2)
    a.e(f"""
    s_andn2_b32 s48, s62, 3
    s_lshl_b32 s48, s48, 12
    s_and_b32 s47, s62, 3
    s_lshl_b32 s47, s47, 10
    s_add_u32 s48, s48, s47
    s_add_u32 s48, s48, {WS_PX}
    s_mov_b32 exec_lo, 0x00ff00ff
    s_mov_b32 exec_hi, 0x00ff00ff
    """)
    for j in range(4):
        for M in range(2):
            a.e(f"buffer_store_dwordx4 {vr(ACC+8*j+4*M,4)}, v11, s[32:35], s48 offen offset:{M*512} sc1")
        if j < 3:
            a.e("s_add_u32 s48, s48, 0x1000")
    a.e("""
    s_mov_b64 exec, -1
    s_waitcnt lgkmcnt(0)
    """)
    a.e("s_branch K_p3ld")
    a.label("K_A1")
    srd(a, R_A, P_WO, 1024 * 1024 * 2)
    a.e("""
    s_cmp_eq_u32 s61, 0
    s_cbranch_scc1 K2_wo
    """)
    srd(a, R_B, P_DOWN, 1024 * 3584 * 2)
    a.e(f"""
    s_lshr_b32 s72, s62, 4               ; ks
    s_and_b32 s73, s62, 15               ; cgp
    s_lshl_b32 s47, s72, 19              ; ks*256*2048
    s_lshl_b32 s48, s73, 7
    s_add_u32 s47, s47, s48
    v_lshrrev_b32 v4, 3, v1
    v_lshlrev_b32 v4, 11, v4
    v_and_b32 v5, 7, v1
    v_lshl_add_u32 v4, v5, 4, v4
    v_lshrrev_b32 v7, 4, v1              ; G
    v_lshl_add_u32 v13, v7, 3, v5
    v_lshlrev_b32 v13, 4, v13            ; ((l&7) + 8G)*16
    v_bfe_u32 v8, v1, 2, 2               ; r
    v_lshl_add_u32 v12, v7, 2, v8        ; 4G + r
    v_lshlrev_b32 v12, 7, v12
    v_and_b32 v9, 3, v1
    v_lshl_add_u32 v12, v9, 3, v12
    """)
    lds_wait(a, "K2_wA1b", F_A1, 16)
    a.e("""
    v_lshrrev_b32 v5, 1, v1
    v_lshlrev_b32 v5, 11, v5
    v_and_b32 v6, 1, v1
    v_lshl_add_u32 v5, v6, 6, v5
    """)
    for q in range(8):
        a.e(f"s_add_u32 s48, s47, {q*32*2048}")
        a.e(f"buffer_load_dword v{16+q}, v5, s[64:67], s48 offen")
    lds_wait(a, "K2_wA2", F_A2, 8)
    stamp(a, 2)
    a.e(f"""
    s_mov_b32 m0, {L_DOWN}
    s_mov_b32 s49, 0
    """)
    a.label("K2_dn_dma")
    a.e(f"""
    buffer_load_dwordx4 v4, s[64:67], s47 offen lds
    s_add_u32 m0, m0, 1024
    s_add_u32 s47, s47, 0x4000
    s_add_u32 s49, s49, 1
    s_cmp_lt_u32 s49, 32
    s_cbranch_scc1 K2_dn_dma
    s_lshl_b32 s48, s62, 12
    s_add_u32 s48, s48, {WS_PX}
    """)
    gather32(a, "K2_px", 16, 13, 48)
    stamp(a, 3)
    for i in range(8):
        a.e(f"v_add_f32 v{16+i}, v{16+i}, v{24+i}")
    for i in range(8):
        a.e(f"v_add_f32 v{32+i}, v{32+i}, v{40+i}")
    for i in range(8):
        a.e(f"v_add_f32 v{16+i}, v{16+i}, v{32+i}")
    for i in range(4):
        a.e(f"v_mul_f32 v{24+i}, {fbits(-LOG2E):#x}, v{16+i}")
    for i in range(4):
        a.e(f"v_exp_f32 v{24+i}, v{24+i}")
    for i in range(4):
        a.e(f"v_add_f32 v{24+i}, 1.0, v{24+i}")
    for i in range(4):
        a.e(f"v_rcp_f32 v{24+i}, v{24+i}")
    for i in range(4):
        a.e(f"v_mul_f32 v{16+i}, v{16+i}, v{20+i}")
    for i in range(4):
        a.e(f"v_mul_f32 v{16+i}, v{16+i}, v{24+i}")
    a.e(f"""
    v_cvt_pk_bf16_f32 v48, v16, v17
    v_cvt_pk_bf16_f32 v49, v18, v19
    v_min_u32 v48, -2, v48
    v_min_u32 v49, -2, v49
    s_lshr_b32 s48, s62, 1
    s_lshl_b32 s48, s48, 9
    s_and_b32 s47, s62, 1
    s_lshl_b32 s47, s47, 3
    s_add_u32 s48, s48, s47
    s_add_u32 s48, s48, {WS_HX}
    s_mov_b32 exec_lo, 0x00ff00ff
    s_mov_b32 exec_hi, 0x00ff00ff
    buffer_store_dwordx2 v[48:49], v13, s[32:35], s48 offen sc1
    s_mov_b64 exec, -1
    s_lshl_b32 s48, s72, 12
    s_add_u32 s48, s48, {WS_HX}
    """)
    HF = 16
    gather32(a, "K2_hx", HF, 13, 48)
    D = 96
    for q in range(8):
        b = 64 + 16 * (q % 2)
        for t in range(4):
            a.e(f"""
            ds_read_b64_tr_b16 {vr(b+4*t,2)}, v12 offset:{q*4096+t*32}
            ds_read_b64_tr_b16 {vr(b+4*t+2,2)}, v12 offset:{q*4096+2048+t*32}
            """)
            if q > 0:
                pb = 64 + 16 * ((q - 1) % 2)
                a.e("s_waitcnt lgkmcnt(8)")
                a.e(mfma16(D + 4 * t, HF + 4 * (q - 1), pb + 4 * t, None if q == 1 else D + 4 * t))
    for t in range(4):
        a.e(f"s_waitcnt lgkmcnt({6-2*t})")
        a.e(mfma16(D + 4 * t, HF + 28, 80 + 4 * t, D + 4 * t))
    a.e(f"""
    s_mul_i32 s47, s73, {2*7168}
    s_lshr_b32 s48, s72, 1
    s_lshl_b32 s48, s48, 10
    s_add_u32 s47, s47, s48
    s_and_b32 s48, s72, 1
    s_lshl_b32 s48, s48, 3
    s_add_u32 s47, s47, s48
    s_add_u32 s47, s47, {WS_YF}
    s_add_u32 s48, s47, 7168
    v_and_b32 v5, 15, v1
    v_lshl_add_u32 v5, v7, 5, v5
    v_lshlrev_b32 v5, 4, v5
    s_mov_b32 exec_hi, 0
    """)
    for t in range(4):
        a.e(f"""
        v_cvt_pk_bf16_f32 v{48+2*t}, v{D+4*t}, v{D+4*t+1}
        v_cvt_pk_bf16_f32 v{49+2*t}, v{D+4*t+2}, v{D+4*t+3}
        v_min_u32 v{48+2*t}, -2, v{48+2*t}
        v_min_u32 v{49+2*t}, -2, v{49+2*t}
        buffer_store_dwordx2 {vr(48+2*t,2)}, v5, s[32:35], s{47+t//2} offen offset:{(t%2)*256} sc1
        """)
    a.e("s_mov_b32 exec_hi, -1")
    a.label("K2_wo")
    stamp(a, 4)
    w_voffs(a)
    a.e(f"""
    v_and_b32 v20, 3, v1
    v_lshlrev_b32 v20, 8, v20
    v_add_u32 v20, {L_FL}, v20
    s_mov_b32 s45, 0
    s_lshl_b32 s48, s{S_CB}, 3
    s_mov_b32 s49, 0                     ; J
    """)
    a.e("""
    v_lshrrev_b32 v5, 2, v1
    v_lshlrev_b32 v5, 11, v5
    v_and_b32 v4, 3, v1
    v_lshl_add_u32 v5, v4, 6, v5
    v_add_u32 v5, s53, v5
    s_and_b32 s54, s40, 7
    s_mul_i32 s54, s54, 5
    s_add_u32 s54, s54, s48
    s_add_u32 s54, s54, 24
    """)
    for q in range(5):
        a.e(f"""
        s_and_b32 s55, s54, 63
        s_lshl_b32 s55, s55, 15
        buffer_load_dword v{24+q}, v5, s[36:39], s55 offen
        s_add_u32 s54, s54, 1
        """)
    a.label("K2_wld")
    a.e("""
    s_mov_b32 m0, s45
    s_lshl_b32 s47, s48, 15
    """)
    for q in range(4):
        a.e(f"buffer_load_dwordx4 v{8+q}, s[36:39], s47 offen offset:{q*1024} lds")
    a.e("""
    s_add_u32 s48, s48, 1
    s_and_b32 s48, s48, 63
    s_add_u32 s45, s45, 0x1000
    s_cmp_eq_u32 s45, 0x10000
    s_cselect_b32 s45, 0x18000, s45
    s_cmp_eq_u32 s45, 0x20000
    s_cselect_b32 s45, 0, s45
    s_add_u32 s49, s49, 1
    s_cmp_lt_u32 s49, 16
    s_cbranch_scc1 K2_wld
    s_and_b32 s50, s49, 3
    s_cmp_lg_u32 s50, 0
    s_cbranch_scc1 K2_wld
    s_cmp_ge_u32 s49, 24
    s_cbranch_scc1 K_p3ld
    s_lshr_b32 s50, s49, 2
    s_add_u32 s50, s50, 9
    """)
    a.label("K2_wpoll")
    a.e("""
    s_sleep 8
    ds_read_b32 v23, v20
    s_waitcnt lgkmcnt(0)
    v_cmp_gt_u32 vcc, s50, v23
    s_nop 1
    s_cbranch_vccnz K2_wpoll
    s_branch K2_wld
    """)
    a.label("K_p3ld")
    srd(a, R_A, P_WO, 1024 * 1024 * 2)
    w_voffs(a)
    a.e(f"""
    s_lshl_b32 s54, s{S_W}, 13
    v_add_u32 v8, s54, v8
    s_lshl_b32 s54, s{S_W}, 10           ; w*1024
    s_lshl_b32 s50, s{S_TB}, 8
    s_add_u32 s50, s50, {WS_OFL}
    s_lshl_b32 s51, s{S_TB}, 17
    s_add_u32 s51, s51, {WS_OF}
    s_add_u32 s51, s51, s54
    v_add_u32 v9, s51, v3
    v_add_u32 v10, 0x10000, v9
    s_lshl_b32 s52, s{S_CB}, 13
    s_add_u32 s52, s52, 0x1000
    s_lshl_b32 s48, s{S_CB}, 18
    s_add_u32 s48, s48, {23 << 15}
    v_lshlrev_b32 v4, 3, v1
    s_lshl_b32 s72, 1, s{S_CB}
    s_xor_b32 s73, s72, 0xff
    s_mov_b32 s49, 0
    s_waitcnt vmcnt(0)
    s_barrier
    s_barrier
    s_barrier
    s_cmp_lg_u32 s{S_W}, 3
    s_cbranch_scc1 O_noflag
    v_mov_b32 v30, s14
    v_mov_b32 v31, s15
    s_mov_b32 exec_hi, 0
    s_mov_b32 exec_lo, s72
    buffer_store_dwordx2 v[30:31], v4, s[32:35], s50 offen sc1
    s_mov_b32 exec_lo, s73
    buffer_load_dwordx2 v[6:7], v4, s[32:35], s50 offen sc1
    s_mov_b64 exec, -1
    """)
    a.label("O_noflag")

    def wpiece(J):
        pos = J % 24
        a.e(f"""
        s_add_u32 s48, s48, 0x8000
        s_add_u32 m0, s54, {pos*4096 + (0x8000 if pos >= 16 else 0)}
        s_and_b32 s48, s48, 0x1fffff
        buffer_load_dwordx4 v8, s[{R_A}:{R_A+3}], s48 offen lds
        """)

    def opiece(st):
        sl = st % 6
        base = L_ORING + sl * 8192 if sl < 4 else L_XT + (sl - 4) * 8192
        a.e(f"""
        s_add_u32 s52, s52, 0x1000
        s_add_u32 m0, s54, {base}
        s_and_b32 s52, s52, 0xffff
        buffer_load_dwordx4 v9, s[32:35], s52 offen sc1 lds
        s_add_u32 m0, s54, {base + 4096}
        s_nop 0
        buffer_load_dwordx4 v10, s[32:35], s52 offen sc1 lds
        """)
    for J in range(24, 32):
        wpiece(J)
    a.e(f"""
    s_cmp_lg_u32 s{S_W}, 3
    s_cbranch_scc1 O_ready
    s_mov_b32 exec_hi, 0
    s_mov_b32 exec_lo, s73
    s_waitcnt vmcnt(8)
    s_branch O_chk
    """)
    a.label("O_poll")
    a.e(f"""
    s_sleep {OSLEEP}
    buffer_load_dwordx2 v[6:7], v4, s[32:35], s50 offen sc1
    s_waitcnt vmcnt(0)
    """)
    a.label("O_chk")
    a.e(f"""
    v_xor_b32 v6, v30, v6
    v_xor_b32 v7, v31, v7
    v_or_b32 v6, v6, v7
    v_cmp_ne_u32 vcc, 0, v6
    s_add_u32 s49, s49, 1
    s_cbranch_vccz O_ready
    s_cmp_lt_u32 s49, {SPIN}
    s_cbranch_scc1 O_poll
    """)
    a.label("O_ready")
    a.e("""
    s_mov_b64 exec, -1
    s_barrier
    """)
    stamp(a, 5)
    for st in range(2, 8):
        opiece(st)
    a.e("""
    s_waitcnt vmcnt(10)
    s_barrier
    s_waitcnt vmcnt(8)
    s_barrier
    s_waitcnt vmcnt(6)
    s_barrier
    """)
    a.label("O_steps")
    J = 32
    for k in range(4, 12):
        for _ in range(3):
            wpiece(J)
            J += 1
        opiece(k + 4)
        a.e("""
        s_waitcnt vmcnt(7)
        s_barrier
        """)
    for k in (12, 13):
        for _ in range(4):
            wpiece(J)
            J += 1
        a.e(f"""
        s_waitcnt vmcnt({6 if k == 12 else 4})
        s_barrier
        """)
    a.e("""
    s_waitcnt vmcnt(0)
    s_barrier
    s_branch K_fin
    """)


def kd(name, vgprs, sgprs):
    acc = (vgprs + 3) // 4 * 4
    return f""".p2align 6
.amdhsa_kernel {name}
  .amdhsa_next_free_vgpr {vgprs}
  .amdhsa_next_free_sgpr {sgprs}
  .amdhsa_accum_offset {acc}
  .amdhsa_group_segment_fixed_size 0
  .amdhsa_kernarg_size 112
  .amdhsa_user_sgpr_count 2
  .amdhsa_user_sgpr_kernarg_segment_ptr 1
  .amdhsa_system_sgpr_workgroup_id_x 1
  .amdhsa_float_denorm_mode_32 3
.end_amdhsa_kernel
"""


def main(out):
    ref = open(f"cdna_kernels/{NAME}.s.ref").read().split("\n")
    head = [l for l in ref if l.startswith(";") and "@launch" not in l]
    n = NAME + "_kernel"
    txt = "\n".join(head) + "\n"
    txt += f"; @launch grid=(256,1,1) block=(512,1,1) lds={LDS_BYTES}\n"
    txt += '.amdgcn_target "amdgcn-amd-amdhsa--gfx950"\n.text\n'
    a = gen()
    errs = check_kernel(a.lines, n)
    for e in errs:
        print("HAZARD", e)
    txt += f".globl {n}\n.p2align 8\n.type {n},@function\n" + a.text()
    txt += '.section .rodata,"a"\n' + kd(n, 256, 102 if PROF else 80)
    open(out, "w").write(txt)
    print("wrote", out, "hazards:", len(errs), "lds", LDS_BYTES)


if __name__ == "__main__":
    main(sys.argv[1] if len(sys.argv) > 1 else f"cdna_kernels/{NAME}.s")
```
